```python
import torch

def _softmax(x, axis=-1):
    return torch.softmax(x, dim=axis)
def _gelu(x):
    return torch.nn.functional.gelu(x, approximate="tanh")
def _silu(x):
    return torch.nn.functional.silu(x)
def _sigmoid(x):
    return torch.sigmoid(x)
def _layernorm(x, axis=-1, eps=1e-5):
    m = x.mean(dim=axis, keepdim=True)
    v = x.var(dim=axis, keepdim=True, unbiased=False)
    return (x - m) / torch.sqrt(v + eps)
def _scatter_add(tgt, idx, src, axis=0):
    return tgt.clone().index_add_(axis, idx, src)
def _segment_sum(src, seg, n):
    out = torch.zeros((n,) + src.shape[1:], dtype=src.dtype)
    return out.index_add_(0, seg, src)
def _pad(x, pw):
    flat = tuple(v for pair in reversed(pw) for v in pair)
    return torch.nn.functional.pad(x, flat)

kernel_name = 'interleave_layers__ssm_conv_h3__linear_attn_block__prompt'

def setup_inputs():

    _w = (lambda a: (lambda t: t.to(torch.bfloat16) if t.is_floating_point() else t)(torch.as_tensor(a)))
    def _A_setup():
        B, S, D = 1, 2048, 512
        ks = 4
        return {
            "q": _w((lambda *s: torch.randn(*s, dtype=torch.bfloat16) * 0.05)(B, S, D)),
            "k": _w((lambda *s: torch.randn(*s, dtype=torch.bfloat16) * 0.4)(B, S, D)),
            "v": _w((lambda *s: torch.randn(*s, dtype=torch.bfloat16) * 0.4)(B, S, D)),
            "shift_k": _w((lambda *s: torch.randn(*s, dtype=torch.bfloat16) * 0.4)(D, ks) * 0.5),
            "ssm_k": _w((lambda *s: torch.randn(*s, dtype=torch.bfloat16) * 0.4)(D, S) * (1.0 / S ** 0.5)),
            "ssm_D": _w((lambda *s: torch.randn(*s, dtype=torch.bfloat16) * 0.4)(D)),
        }
    _A_in = _A_setup()

    def _B_setup():
        B, S, D = 1, 2048, 512
        return {
            "x": _w((lambda *s: torch.randn(*s, dtype=torch.bfloat16) * 0.05)(B, S, D)),
            "wqkv": _w((lambda *s: torch.randn(*s, dtype=torch.bfloat16) * 0.1)(D, 3 * D)),
            "wo": _w((lambda *s: torch.randn(*s, dtype=torch.bfloat16) * 0.05)(D, D)),
        }
    _B_in = _B_setup()

    return {
        "A_q": _A_in["q"],
        "A_k": _A_in["k"],
        "A_v": _A_in["v"],
        "A_shift_k": _A_in["shift_k"],
        "A_ssm_k": _A_in["ssm_k"],
        "A_ssm_D": _A_in["ssm_D"],
        "B_x": _B_in["x"],
        "B_wqkv": _B_in["wqkv"],
        "B_wo": _B_in["wo"],
    }

def reference(A_q, A_k, A_v, A_shift_k, A_ssm_k, A_ssm_D, B_x, B_wqkv, B_wo):
    def _A_ref(q, k, v, shift_k, ssm_k, ssm_D):
        B, S, D = q.shape
        ks = shift_k.shape[-1]
        k_pad = _pad(k, ((0, 0), (ks - 1, 0), (0, 0)))
        k_shift = torch.zeros_like(k)
        for t in range(ks):
            k_shift = k_shift + k_pad[:, t:t + S, :] * shift_k[:, ks - 1 - t][None, None, :]
        kv = k_shift * v
        L = 2 * S
        kv_pad = _pad(kv, ((0, 0), (0, S), (0, 0)))
        kf_pad = _pad(ssm_k, ((0, 0), (0, S)))
        kv_f = (lambda x, axes=(-2,-1): torch.fft.rfft2(x.float(), dim=axes))(kv_pad[:, None, :, :], axes=(1, 2))
        kf_f = (lambda x, axes=(-2,-1): torch.fft.rfft2(x.float(), dim=axes))(kf_pad[:, None, :], axes=(1, 2))
        kf_f = (lambda x, *d: x.permute(*d))(kf_f, 1, 2, 0)
        y_f = kv_f * kf_f[None, :, :, :]
        y = (lambda x, s, axes=(-2,-1): torch.fft.irfft2(x, s=s, dim=axes).to(torch.bfloat16))(y_f, (1, L), axes=(1, 2))[:, 0, :S, :]
        y = y + kv * ssm_D[None, None, :]
        return q * y

    def _B_ref(x, wqkv, wo):
        B, S, D = x.shape
        H = 32; Dh = D // H
        qkv = (lambda x, *d: x.permute(*d))((x @ wqkv).reshape(B, S, 3, H, Dh), 2, 0, 3, 1, 4)
        q, k, v = qkv[0], qkv[1], qkv[2]
        phi = lambda t: torch.where(t > 0, t + 1, torch.exp(t)) + 1e-6
        pq, pk = phi(q), phi(k)
        kv = torch.einsum("bhsd,bhse->bhde", pk, v)
        z = torch.einsum("bhsd->bhd", pk)
        num = torch.einsum("bhqd,bhde->bhqe", pq, kv)
        den = torch.einsum("bhqd,bhd->bhq", pq, z)[..., None] + 1e-6
        o = num / den
        return (lambda x, *d: x.permute(*d))(o, 0, 2, 1, 3).reshape(B, S, D) @ wo

    x = A_q
    x = x + _A_ref(_layernorm(x, axis=-1), A_k, A_v, A_shift_k, A_ssm_k, A_ssm_D)
    x = x + _B_ref(_layernorm(x, axis=-1), B_wqkv, B_wo)
    x = x + _A_ref(_layernorm(x, axis=-1), A_k, A_v, A_shift_k, A_ssm_k, A_ssm_D)
    x = x + _B_ref(_layernorm(x, axis=-1), B_wqkv, B_wo)
    return x
```

```python
import re

TRANS = ("v_exp_f32", "v_log_f32", "v_rcp_f32", "v_rsq_f32", "v_sqrt_f32", "v_sin_f32", "v_cos_f32")
RMW_VALU = ("v_fmac_f32", "v_dot2c_f32_bf16", "v_writelane_b32")
_reg_re = re.compile(r"^(-|abs\()?([vas])(\d+)\)?$")
_rng_re = re.compile(r"^(-|abs\()?([vas])\[(\d+):(\d+)\]\)?$")


def regs_of(tok):
    tok = tok.strip()
    m = _reg_re.match(tok)
    if m:
        return {(m.group(2), int(m.group(3)))}
    m = _rng_re.match(tok)
    if m:
        return {(m.group(2), i) for i in range(int(m.group(3)), int(m.group(4)) + 1)}
    if tok == "vcc":
        return {("s", "vcc")}
    if tok == "exec":
        return {("s", "exec")}
    if tok == "m0":
        return {("s", "m0")}
    return set()


def base_op(op):
    for suf in ("_e32", "_e64", "_dpp", "_sdwa"):
        if op.endswith(suf):
            return op[: -len(suf)]
    return op


class Ins:
    def __init__(self, text, tag=None):
        self.text = text
        self.tag = tag
        self.label = None
        self.pseudo = None
        self.defs = set()
        self.uses = set()
        self.kind = "other"
        self.op = ""
        self.mf = None
        self.target = None
        self.store_data = set()
        self.size = None
        if text.endswith(":"):
            self.label = text[:-1]
            self.kind = "label"
            return
        if text.startswith("@"):
            self.pseudo = text[1:].split()
            self.kind = "pseudo"
            return
        if text.startswith(";") or text.startswith("."):
            self.kind = "comment"
            return
        self.parse()

    def parse(self):
        t = self.text.split(";")[0].strip()
        sp = t.split(None, 1)
        self.op = op = sp[0]
        rest = sp[1] if len(sp) > 1 else ""
        parts = [p.strip() for p in re.split(r",(?![^\[(]*[\])])", rest)] if rest else []
        mods = ""
        if parts:
            last = parts[-1].split(None, 1)
            parts[-1] = last[0]
            mods = last[1] if len(last) > 1 else ""
        self.mods = mods
        self.parts = parts
        R = [regs_of(p) for p in parts]
        b = base_op(op)
        self.b = b
        U = lambda idx: set().union(*[R[i] for i in idx]) if idx else set()
        n = len(parts)
        if op.startswith("v_mfma"):
            self.kind = "mfma"
            self.defs = R[0]
            self.uses = U(range(1, n))
            passes = 8 if "32x32x16" in op or "32x32x8" in op else 4
            self.mf = dict(D=R[0], A=R[1], B=R[2], C=R[3], passes=passes)
        elif op.startswith("v_"):
            self.kind = "valu"
            if b.startswith("v_cmp"):
                self.defs = R[0]
                self.uses = U(range(1, n))
            elif b in ("v_add_co_u32", "v_sub_co_u32", "v_addc_co_u32"):
                self.defs = R[0] | R[1]
                self.uses = U(range(2, n))
            elif b.startswith("v_permlane") and b.endswith("swap_b32"):
                self.defs = R[0] | R[1]
                self.uses = R[0] | R[1]
            elif b == "v_nop":
                pass
            else:
                self.defs = R[0]
                self.uses = U(range(1, n))
                if b in RMW_VALU or "_dpp" in op or "row_" in mods or "quad_perm" in mods:
                    self.uses |= R[0]
            self.is_dpp = "_dpp" in op or "row_" in mods or "quad_perm" in mods
            self.is_trans = b in TRANS
            self.is_dot = b.startswith("v_dot")
            self.is_opsel = "_sdwa" in op and "dst_sel:DWORD" not in mods
        elif op.startswith("ds_"):
            self.kind = "ds"
            if op.startswith("ds_read") or op.startswith("ds_bpermute") or op.startswith("ds_swizzle"):
                self.defs = R[0]
                self.uses = U(range(1, n))
            else:
                self.uses = U(range(n))
        elif op.startswith("buffer_") or op.startswith("global_"):
            self.kind = "vmem"
            self.is_dma = bool(re.search(r"\blds\b", mods)) or "load_lds" in op
            if op in ("buffer_wbl2", "buffer_inv"):
                pass
            elif self.is_dma:
                self.uses = U(range(n)) | {("s", "m0")}
            elif "load" in op:
                self.defs = R[0]
                self.uses = U(range(1, n))
            elif "atomic" in op:
                self.uses = U(range(n))
                if "sc0" in mods:
                    self.defs = R[0]
            else:
                self.uses = U(range(n))
                if op.endswith("x3") or op.endswith("x4"):
                    self.store_data = R[0] if op.startswith("buffer_") else R[1]
        elif op.startswith("s_load") or op in ("s_memtime", "s_memrealtime"):
            self.kind = "smem"
            self.defs = R[0]
            self.uses = U(range(1, n))
        elif op == "s_waitcnt":
            self.kind = "wait"
            s = rest
            m = re.search(r"vmcnt\((\d+)\)", s)
            self.vm = int(m.group(1)) if m else None
            m = re.search(r"lgkmcnt\((\d+)\)", s)
            self.lg = int(m.group(1)) if m else None
        elif op == "s_nop":
            self.kind = "nop"
            self.n = int(parts[0]) + 1
        elif op in ("s_branch",) or op.startswith("s_cbranch"):
            self.kind = "branch"
            self.target = parts[0]
            if "vcc" in op:
                self.uses = {("s", "vcc")}
        elif op == "s_endpgm":
            self.kind = "end"
        elif op.startswith("s_"):
            self.kind = "salu"
            if op.startswith("s_cmp") or op.startswith("s_bitcmp") or op in ("s_barrier", "s_setprio", "s_sleep"):
                self.uses = U(range(n))
            else:
                self.defs = R[0]
                self.uses = U(range(1, n))
                if "saveexec" in op:
                    self.defs |= {("s", "exec")}
        else:
            raise ValueError("unknown instruction: " + self.text)


class State:
    def __init__(self):
        self.vm = {}
        self.lg = {}
        self.smem = False
        self.hz = {}

    def copy(self):
        s = State()
        s.vm = dict(self.vm)
        s.lg = dict(self.lg)
        s.smem = self.smem
        s.hz = dict(self.hz)
        return s

    def merge(self, o):
        changed = False
        for mine, other in ((self.vm, o.vm), (self.lg, o.lg)):
            for k, a in other.items():
                if k not in mine or a < mine[k]:
                    mine[k] = a
                    changed = True
        if o.smem and not self.smem:
            self.smem = True
            changed = True
        for k, age in o.hz.items():
            if k not in self.hz or age < self.hz[k]:
                self.hz[k] = age
                changed = True
        return changed


MAXHZ = 24


def need_states(st, ins):
    need = 0
    vdefs = ins.defs
    vuses = ins.uses
    for (typ, regs, extra), age in st.hz.items():
        req = 0
        if typ == "valu_v":
            if ins.kind == "mfma" and regs & vuses:
                req = 2
            elif ins.kind == "valu":
                if (ins.b.startswith("v_permlane") or ins.is_dpp) and regs & vuses:
                    req = 2
                elif ins.b in ("v_readfirstlane_b32", "v_readlane_b32") and regs & vuses:
                    req = 1
        elif typ == "trans":
            if ins.kind in ("valu",) and not ins.is_trans and regs & vuses:
                req = 1
        elif typ == "opsel":
            if ins.kind == "valu" and regs & (vuses | vdefs):
                req = 1
        elif typ == "dot":
            if ins.kind in ("valu", "mfma", "vmem", "ds") and regs & (vuses | vdefs):
                req = 3
                if ins.kind == "valu" and ins.b == extra:
                    srcab = set()
                    for p in ins.parts[1:3]:
                        srcab |= regs_of(p)
                    req = 3 if regs & srcab else 0
        elif typ == "valu_s":
            if ins.kind == "vmem" and regs & vuses:
                req = 5
            elif ins.kind == "valu" and regs & vuses:
                req = 4 if ins.b in ("v_readlane_b32", "v_writelane_b32") else 2
            elif ins.kind == "mfma" and ("s", "exec") in regs:
                req = 4
            elif ins.kind in ("salu", "branch", "smem") and regs & vuses:
                req = 1
        elif typ == "m0":
            if ins.kind == "vmem" and ins.is_dma:
                req = 1
        elif typ == "store":
            if regs & vdefs:
                req = 2
        elif typ == "mfma_d":
            p = extra
            far = {2: 5, 4: 8, 8: 12, 16: 20}[p]
            if ins.kind == "mfma":
                if regs & (ins.mf["A"] | ins.mf["B"]):
                    req = far
                elif regs & ins.mf["C"]:
                    if regs == ins.mf["C"] and ins.mf["passes"] == p:
                        req = 0
                    else:
                        req = far - 2
                elif regs & ins.mf["D"]:
                    req = far - 2
            elif ins.kind in ("valu", "vmem", "ds") and regs & (vuses | vdefs):
                req = far
        elif typ == "mfma_c":
            p = extra
            if ins.kind == "valu" and regs & vdefs:
                req = {2: 1, 4: 3, 8: 7, 16: 15}[p]
        need = max(need, req - age)
    return need


def advance(st, n):
    st.hz = {k: a + n for k, a in st.hz.items() if a + n < MAXHZ}


def record(st, ins):
    advance(st, ins.n if ins.kind == "nop" else 1)
    k = ins.kind
    if k == "valu":
        vd = frozenset(r for r in ins.defs if r[0] in "va")
        sd = frozenset(r for r in ins.defs if r[0] == "s")
        if vd:
            st.hz[("valu_v", vd, None)] = 0
            if ins.is_trans:
                st.hz[("trans", vd, None)] = 0
            if ins.is_dot:
                st.hz[("dot", vd, ins.b)] = 0
            if ins.is_opsel:
                st.hz[("opsel", vd, None)] = 0
        if sd:
            st.hz[("valu_s", sd, None)] = 0
    elif k == "mfma":
        st.hz[("mfma_d", frozenset(ins.mf["D"]), ins.mf["passes"])] = 0
        if ins.mf["C"]:
            st.hz[("mfma_c", frozenset(ins.mf["C"]), ins.mf["passes"])] = 0
    elif k == "salu":
        if ("s", "m0") in ins.defs:
            st.hz[("m0", frozenset({("s", "m0")}), None)] = 0
    elif k == "vmem":
        if ins.store_data:
            st.hz[("store", frozenset(ins.store_data), None)] = 0
    if k == "vmem":
        st.vm = {key: a + 1 for key, a in st.vm.items()}
        for r in ins.defs:
            st.vm[r] = 0
        if ins.tag:
            st.vm[("tag", ins.tag)] = 0
        st.vm[("any", 0)] = 0
    elif k == "ds":
        st.lg = {key: a + 1 for key, a in st.lg.items()}
        for r in ins.defs:
            st.lg[r] = 0
        if ins.tag:
            st.lg[("tag", ins.tag)] = 0
        st.lg[("any", 0)] = 0
    elif k == "smem":
        st.smem = True
        st.lg = {key: a + 1 for key, a in st.lg.items()}
        for r in ins.defs:
            st.lg[r] = 0
    elif k == "wait":
        apply_wait(st, ins.vm, ins.lg)


def apply_wait(st, vm, lg):
    if vm is not None:
        st.vm = {k: a for k, a in st.vm.items() if a < vm}
    if lg is not None:
        if lg == 0:
            st.lg = {}
            st.smem = False
        elif not st.smem:
            st.lg = {k: a for k, a in st.lg.items() if a < lg}


def needed_wait(st, ins):
    vm = lg = None
    if ins.kind == "pseudo":
        what, tag = ins.pseudo[0], ins.pseudo[1] if len(ins.pseudo) > 1 else None
        if what == "waitvm":
            a = st.vm.get(("tag", tag)) if tag else st.vm.get(("any", 0))
            if a is not None:
                vm = a
        elif what == "waitlg":
            a = st.lg.get(("tag", tag)) if tag else (0 if st.lg else None)
            if a is not None:
                lg = a
        elif what == "waitall":
            if st.vm:
                vm = 0
            if st.lg:
                lg = 0
    else:
        for r in ins.uses:
            if r in st.vm:
                vm = st.vm[r] if vm is None else min(vm, st.vm[r])
            if r in st.lg:
                lg = st.lg[r] if lg is None else min(lg, st.lg[r])
        for r in ins.defs:
            if r in st.vm and ins.kind != "vmem":
                vm = st.vm[r] if vm is None else min(vm, st.vm[r])
            if r in st.lg and not (ins.kind == "ds" and not st.smem):
                lg = st.lg[r] if lg is None else min(lg, st.lg[r])
    if lg is not None and st.smem:
        lg = 0
    if vm is not None:
        vm = min(vm, 63)
    if lg is not None:
        lg = min(lg, 15)
    return vm, lg


class Prog:
    def __init__(self):
        self.ins = []
        self.uid = 0

    def __call__(self, text, tag=None):
        for line in text.split("\n"):
            line = line.strip()
            if line:
                self.ins.append(Ins(line, tag))

    def label(self, name):
        self.ins.append(Ins(name + ":"))

    def newlabel(self, stem):
        self.uid += 1
        return "L_%s_%d" % (stem, self.uid)

    def comment(self, text):
        self.ins.append(Ins("; " + text))

    def waitvm(self, tag=None):
        self.ins.append(Ins("@waitvm " + (tag or "")))

    def waitlg(self, tag=None):
        self.ins.append(Ins("@waitlg " + (tag or "")))

    def waitall(self):
        self.ins.append(Ins("@waitall"))

    def resolve(self):
        instates = {}
        for _ in range(50):
            out = []
            changed = False
            st = State()
            live = True
            for ins in self.ins:
                if ins.kind == "label":
                    inc = instates.get(ins.label)
                    if live:
                        if inc is not None:
                            st.merge(inc)
                    else:
                        st = inc.copy() if inc is not None else State()
                    live = True
                    out.append(ins)
                    continue
                if ins.kind == "comment":
                    out.append(ins)
                    continue
                vm, lg = needed_wait(st, ins)
                if vm is not None or lg is not None:
                    txt = "s_waitcnt" + ("" if vm is None else " vmcnt(%d)" % vm) + ("" if lg is None else " lgkmcnt(%d)" % lg)
                    w = Ins(txt)
                    out.append(w)
                    record(st, w)
                if ins.kind == "pseudo":
                    continue
                n = need_states(st, ins)
                if n > 0:
                    w = Ins("s_nop %d" % (n - 1))
                    out.append(w)
                    record(st, w)
                out.append(ins)
                record(st, ins)
                if ins.kind == "branch":
                    t = instates.get(ins.target)
                    if t is None:
                        instates[ins.target] = st.copy()
                        changed = True
                    elif t.merge(st):
                        changed = True
                    if ins.op == "s_branch":
                        live = False
                elif ins.kind == "end":
                    live = False
            if not changed:
                return out
        raise RuntimeError("no fixpoint")

    def text(self):
        lines = []
        for i in self.resolve():
            lines.append(i.text if i.kind in ("label",) else "    " + i.text)
        return "\n".join(lines) + "\n"


def vr(base, n=1, f="v"):
    return "%s%d" % (f, base) if n == 1 else "%s[%d:%d]" % (f, base, base + n - 1)


def ar(base, n=1):
    return vr(base, n, "a")


def sr(base, n=1):
    return vr(base, n, "s")
```

```python
import sys
from asmlib import Prog, vr, ar, sr

NAME = "interleave_layers__ssm_conv_h3__linear_attn_block__prompt"
PROFILE = "--prof" in sys.argv
FORCE_SLOW = "--slow" in sys.argv
OUT = [a for a in sys.argv[1:] if not a.startswith("--")]
OUT = OUT[0] if OUT else "cdna_kernels/%s.s" % NAME

EPOCH = 0
HELLO = 0x1000
FLAGB = 0x2000
KVP = 0x80000
ZP = 0x180000
YB = 0x200000
UTB = 0x400000
CLS = 0x600000
C_UTA = 0
C_X = 0x40000
C_PQ = 0xC0000
C_STATE = 0x140000
C_ST = 0x150000
C_FLAGA = 0x170000
C_FLAGX = 0x171000
C_FLAGPQ = 0x172000
PROF = 0x1800000
WS_BYTES = 0x2000000


def st_off(n):
    return C_ST + ((n + 3) % 4) * 0x8000


R1, R2, R3 = 0, 65536, 131072
HB = R2
HCOPY, HCH = 4160, 16640
UB = R3
UCH = 4608
TB = R3 + 9216
RS = R3 + 9728
EX = R1
AB = R2
OB = R2
LDS_BYTES = 163840

sQ, sK, sV, sH, sW, sWO, sWS, sOUT, sSH = 4, 8, 12, 16, 20, 24, 28, 32, 36
sD = 40
sTAG = 42
sX, sJ, sWV, sXCC, sMODE, sLIM, sCNT = 44, 45, 46, 47, 48, 49, 50
sCLS = 51
sT0, sT1, sT2, sT3 = 52, 53, 54, 55
sP = 56
sC4096, sMASK = 58, 59
sDV = 60
sG32L, sKS, sRG, sM = 61, 62, 63, 64
sEPS6, sLOG2E, sEPS5, sINV512 = 65, 66, 67, 68
sTS = 70
sERR = 72
sUSRC = 73

vL16, vL8, vXrow, vYa, vSTw, vSTr, vXw, vPQw, vSTATEw = 1, 2, 3, 4, 5, 6, 7, 8, 9
vTrW, vTrO, vDmaW, vDmaO, vTB1, vTB2, vZr, vTBw = 10, 11, 12, 13, 14, 15, 16, 17
vTAG = 18
vSEL, vONE = 20, 24
vCSK, vCSV, vCSQ = 28, 29, 30
vX, vY = 34, 50
vPROF = 66
S0 = 68
vWOB = 192
aWK, aWV, aWQ, aWOA = 0, 64, 128, 192
aH = 128

p = Prog()
tail = []
stamps = []


def stamp(name):
    if not PROFILE:
        return
    n = len(stamps)
    stamps.append(name)
    p("s_memrealtime %s" % sr(sTS, 2))
    p("s_waitcnt lgkmcnt(0)")
    p("v_writelane_b32 %s, %s, %d" % (vr(vPROF), sr(sTS), n))


def srd(base, nbytes):
    p("s_mov_b32 %s, %d" % (sr(base + 2), nbytes))
    p("s_mov_b32 %s, 0x20000" % sr(base + 3))


def sadd(dst, src, imm):
    p("s_add_u32 %s, %s, 0x%x" % (sr(dst), sr(src), imm))


def local_stores(lines, tag=None):
    slow, join = p.newlabel("slowst"), p.newlabel("joinst")
    p("s_cmp_eq_u32 %s, 0" % sr(sMODE))
    p("s_cbranch_scc1 %s" % slow)
    for l in lines:
        p(l, tag)
    p.label(join)

    def blk():
        p.label(slow)
        for l in lines:
            p(l + " sc1", tag)
        p("s_branch %s" % join)

    tail.append(blk)


def poll(issue, check, code):
    top, done = p.newlabel("poll"), p.newlabel("polldone")
    p("s_mov_b32 %s, %s" % (sr(sCNT), sr(sLIM)))
    p.label(top)
    issue()
    check()
    p("s_cbranch_vccz %s" % done)
    p("s_sub_u32 %s, %s, 1" % (sr(sCNT), sr(sCNT)))
    p("s_cbranch_scc0 %s" % top)
    p("s_mov_b32 %s, 0" % sr(sLIM))
    p("s_or_b32 %s, %s, %d" % (sr(sERR), sr(sERR), 1 << code))
    p.label(done)


def check_sentinel(regs, tmp):
    regs = list(regs)
    if len(regs) == 1:
        p("v_cmp_eq_u32 vcc, -1, %s" % vr(regs[0]))
        return
    first = True
    i = 0
    while i < len(regs):
        if first:
            if len(regs) >= 3:
                p("v_max3_u32 %s, %s, %s, %s" % (vr(tmp), vr(regs[0]), vr(regs[1]), vr(regs[2])))
                i = 3
            else:
                p("v_max_u32 %s, %s, %s" % (vr(tmp), vr(regs[0]), vr(regs[1])))
                i = 2
            first = False
        elif i + 1 < len(regs):
            p("v_max3_u32 %s, %s, %s, %s" % (vr(tmp), vr(tmp), vr(regs[i]), vr(regs[i + 1])))
            i += 2
        else:
            p("v_max_u32 %s, %s, %s" % (vr(tmp), vr(tmp), vr(regs[i])))
            i += 1
    p("v_cmp_eq_u32 vcc, -1, %s" % vr(tmp))


def unpack(dst, src):
    p("v_lshlrev_b32 %s, 16, %s" % (vr(dst), vr(src)))
    p("v_and_b32 %s, %s, %s" % (vr(dst + 1), sr(sMASK), vr(src)))


def flag_store(soff_sgpr, local=True, tagreg=vTAG):
    p("s_mov_b64 exec, 1")
    line = "buffer_store_dwordx2 %s, off, %s, %s" % (vr(tagreg, 2), sr(sWS, 4), sr(soff_sgpr))
    if local:
        local_stores([line])
    else:
        p(line + " sc1")
    p("s_mov_b64 exec, -1")


def barrier():
    p.waitlg()
    p("s_barrier")


def stage_w(part, region, tag):
    p("s_lshl_b32 %s, %s, 14" % (sr(sT0), sr(sWV)))
    p("s_add_u32 m0, %s, %d" % (sr(sT0), region))
    p("s_mul_i32 %s, %s, %d" % (sr(sT1), sr(sWV), 128 * 3072))
    p("s_lshl_b32 %s, %s, 7" % (sr(sT2), sr(sM)))
    p("s_add_u32 %s, %s, %s" % (sr(sT1), sr(sT1), sr(sT2)))
    sadd(sT1, sT1, part * 1024)
    for n in range(16):
        va = vDmaW if n % 2 == 0 else S0 + 122
        if n == 0:
            p("v_xor_b32 %s, 64, %s" % (vr(S0 + 122), vr(vDmaW)))
        p("buffer_load_dwordx4 %s, %s, %s offen lds" % (vr(va), sr(sW, 4), sr(sT1)), tag)
        if n < 15:
            p("s_add_u32 m0, m0, 1024")
            sadd(sT1, sT1, 8 * 3072)


def unstage_w(region, a0):
    for ks in range(16):
        for h in range(2):
            off = region + ks * 4096 + h * 512
            p("ds_read_b64_tr_b16 %s, %s offset:%d" % (ar(a0 + 4 * ks + 2 * h, 2), vr(vTrW if off < 65536 else S0 + 123), off & 0xFFFF))


def unstage_prep(region, reg):
    if region >= 65536:
        p("v_add_u32 %s, 0x10000, %s" % (vr(S0 + 123), vr(reg)))


def stage_wo(half, region, tag):
    p("s_lshl_b32 %s, %s, 14" % (sr(sT0), sr(sWV)))
    p("s_add_u32 m0, %s, %d" % (sr(sT0), region))
    p("s_lshl_b32 %s, %s, 16" % (sr(sT1), sr(sWV)))
    p("s_and_b32 %s, %s, 3" % (sr(sT2), sr(sJ)))
    p("s_lshl_b32 %s, %s, 8" % (sr(sT2), sr(sT2)))
    p("s_add_u32 %s, %s, %s" % (sr(sT1), sr(sT1), sr(sT2)))
    sadd(sT1, sT1, half * 256 * 1024)
    for n in range(16):
        p("buffer_load_dwordx4 %s, %s, %s offen lds" % (vr(vDmaO), sr(sWO, 4), sr(sT1)), tag)
        if n < 15:
            p("s_add_u32 m0, m0, 1024")
            sadd(sT1, sT1, 4096)


def unstage_wo(region, f, r0):
    assert region == 0
    for hd in range(16):
        for g in range(2):
            off = region + hd * 4096 + g * 2048
            p("ds_read_b64_tr_b16 %s, %s offset:%d" % (vr(r0 + 4 * hd + 2 * g, 2, f), vr(vTrO), off))


def stats_compute(a, b):
    t = b
    p("v_pk_mul_f32 %s, %s, %s" % (vr(t + 2, 2), vr(vX, 2), vr(vX, 2)))
    p("v_pk_add_f32 %s, %s, %s" % (vr(t, 2), vr(vX, 2), vr(vX + 2, 2)))
    for e in range(2, 16, 2):
        p("v_pk_fma_f32 %s, %s, %s, %s" % (vr(t + 2, 2), vr(vX + e, 2), vr(vX + e, 2), vr(t + 2, 2)))
        if e >= 4:
            p("v_pk_add_f32 %s, %s, %s" % (vr(t, 2), vr(t, 2), vr(vX + e, 2)))
    p("v_add_f32 %s, %s, %s" % (vr(t), vr(t), vr(t + 1)))
    p("v_add_f32 %s, %s, %s" % (vr(t + 2), vr(t + 2), vr(t + 3)))
    p("v_permlane32_swap_b32 %s, %s" % (vr(t), vr(t + 2)))
    p("v_add_f32 %s, %s, %s" % (vr(a), vr(t), vr(t + 2)))
    p("v_min_u32 %s, -2, %s" % (vr(a), vr(a)))


def stats_issue(buf, soff):
    for u in range(4):
        p("buffer_load_dwordx4 %s, %s, %s, %s offen offset:%d sc1" % (vr(buf + 4 * u, 4), vr(vSTr), sr(sWS, 4), sr(soff), 512 * u))


def stats_finish(buf, vR, vNM):
    for u in (0, 8):
        p("v_pk_add_f32 %s, %s, %s" % (vr(buf + u, 2), vr(buf + u, 2), vr(buf + u + 2, 2)))
        p("v_pk_add_f32 %s, %s, %s" % (vr(buf + u + 4, 2), vr(buf + u + 4, 2), vr(buf + u + 6, 2)))
    p("v_pk_add_f32 %s, %s, %s" % (vr(buf, 2), vr(buf, 2), vr(buf + 4, 2)))
    p("v_pk_add_f32 %s, %s, %s" % (vr(buf + 8, 2), vr(buf + 8, 2), vr(buf + 12, 2)))
    p("v_pk_add_f32 %s, %s, %s" % (vr(buf, 2), vr(buf, 2), vr(buf + 8, 2)))
    p("v_permlane32_swap_b32 %s, %s" % (vr(buf), vr(buf + 1)))
    p("v_add_f32 %s, %s, %s" % (vr(buf), vr(buf), vr(buf + 1)))
    p("v_mul_f32 %s, %s, %s" % (vr(buf), sr(sINV512), vr(buf)))
    p("v_mov_b32 %s, %s" % (vr(buf + 1), vr(buf)))
    p("v_permlane32_swap_b32 %s, %s" % (vr(buf), vr(buf + 1)))
    p("v_fma_f32 %s, -%s, %s, %s" % (vr(buf + 1), vr(buf), vr(buf), vr(buf + 1)))
    p("v_max_f32 %s, 0, %s" % (vr(buf + 1), vr(buf + 1)))
    p("v_add_f32 %s, %s, %s" % (vr(buf + 1), sr(sEPS5), vr(buf + 1)))
    p("v_rsq_f32 %s, %s" % (vr(vR), vr(buf + 1)))
    p("v_mul_f32 %s, -%s, %s" % (vr(vNM), vr(buf), vr(vR)))


def prologue():
    p("s_cmp_ge_u32 s2, 256")
    p("s_cbranch_scc1 L_exit")
    kern = NAME + "_kernel"
    for base, off in ((sK, 8), (sV, 16), (sWS, 88), (sSH, 24), (sH, 32), (sQ, 0), (sD, 40), (sW, 56), (sWO, 64), (sOUT, 72)):
        p("s_load_dwordx2 %s, s[0:1], %d" % (sr(base, 2), off))
    p("s_getpc_b64 %s" % sr(sP, 2))
    p("s_and_b32 %s, %s, 0xffffff00" % (sr(sP), sr(sP)))
    p("v_lshlrev_b32 %s, 7, v0" % vr(S0))
    p("v_min_u32 %s, L_exit-%s, %s" % (vr(S0), kern, vr(S0)))
    p("global_load_dword %s, %s, %s" % (vr(S0 + 1), vr(S0), sr(sP, 2)))
    if PROFILE:
        p("v_mov_b32 %s, 0" % vr(vPROF))
    p("s_and_b32 %s, s2, 7" % sr(sX))
    p("s_lshr_b32 %s, s2, 3" % sr(sJ))
    p("v_lshrrev_b32 %s, 6, v0" % vr(S0 + 2))
    p("v_and_b32 %s, 63, v0" % vr(S0 + 3))
    p("v_readfirstlane_b32 %s, %s" % (sr(sWV), vr(S0 + 2)))
    srd(sK, 2097152)
    srd(sV, 2097152)
    srd(sWS, WS_BYTES)
    srd(sSH, 4096)
    srd(sH, 2097152)
    srd(sQ, 2097152)
    srd(sW, 1572864)
    srd(sWO, 524288)
    srd(sOUT, 2097152)
    p("s_mov_b32 %s, 4096" % sr(sC4096))
    p("s_mov_b32 %s, 0xffff0000" % sr(sMASK))
    p("s_getreg_b32 %s, hwreg(HW_REG_XCC_ID, 0, 4)" % sr(sXCC))
    p("s_lshl_b32 %s, %s, 21" % (sr(sCLS), sr(sX)))
    sadd(sCLS, sCLS, CLS)
    p("s_mov_b32 %s, 200000" % sr(sLIM))
    p("s_mov_b32 %s, 0" % sr(sERR))
    p("s_mov_b32 %s, 0x358637bd" % sr(sEPS6))
    p("s_mov_b32 %s, 0x3fb8aa3b" % sr(sLOG2E))
    p("s_mov_b32 %s, 0x3727c5ac" % sr(sEPS5))
    p("s_mov_b32 %s, 0x3b000000" % sr(sINV512))
    p("s_lshr_b32 %s, %s, 2" % (sr(sG32L), sr(sJ)))
    p("s_and_b32 %s, %s, 3" % (sr(sKS), sr(sJ)))
    p("s_lshl_b32 %s, %s, 2" % (sr(sKS), sr(sKS)))
    p("s_add_u32 %s, %s, %s" % (sr(sKS), sr(sKS), sr(sWV)))
    p("s_lshr_b32 %s, %s, 3" % (sr(sRG), sr(sJ)))
    p("s_and_b32 %s, %s, 7" % (sr(sM), sr(sJ)))


vLANE = S0 + 3
vKA, vKB, vUT, vT = S0 + 4, S0 + 5, S0 + 6, S0 + 7
KK = S0 + 8
VV = S0 + 20
SH = S0 + 28
HE = S0 + 32
X0 = S0 + 44
KF = S0 + 52
WF = S0 + 74
UF = S0 + 82
UP = S0 + 98
VF = S0 + 106
FF = S0 + 112
vHA, vHB, vCL = S0 + 116, S0 + 117, S0 + 118


def p0_issue():
    l = vr(vLANE)
    t = vr(vT)
    p("s_lshl_b32 %s, %s, 7" % (sr(sT0), sr(sX)))
    p("s_lshl_b32 %s, %s, 5" % (sr(sT1), sr(sWV)))
    p("s_add_u32 %s, %s, %s" % (sr(sT0), sr(sT0), sr(sT1)))
    p("s_lshl_b32 %s, %s, 16" % (sr(sT1), sr(sJ)))
    p("s_add_u32 %s, %s, %s" % (sr(sT1), sr(sT1), sr(sT0)))
    p("v_and_b32 %s, 7, %s" % (t, l))
    p("v_lshrrev_b32 %s, 3, %s" % (vr(vKA), l))
    p("v_lshlrev_b32 %s, 13, %s" % (vr(vKA), vr(vKA)))
    p("v_lshl_add_u32 %s, %s, 2, %s" % (vr(vKB), t, vr(vKA)))
    p("v_add_u32 %s, %s, %s" % (vr(vKB), sr(sT1), vr(vKB)))
    p("v_add_u32 %s, 0xfffff400, %s" % (vr(vKA), vr(vKB)))
    p("v_lshlrev_b32 %s, 4, %s" % (vr(vUT), t))
    p("s_lshl_b32 %s, %s, 2" % (sr(sT2), sr(sT0)))
    p.waitlg()
    stamp("kernarg")
    p("s_load_dwordx2 %s, %s, %d" % (sr(sTAG, 2), sr(sWS, 2), EPOCH))
    for r in range(3):
        p("buffer_load_dword %s, %s, %s, 0 offen offset:%d" % (vr(KK + r), vr(vKA), sr(sK, 4), 1024 * r))
    for r in range(8):
        so = "0" if r < 4 else sr(sC4096)
        p("buffer_load_dword %s, %s, %s, %s offen offset:%d" % (vr(KK + 3 + r), vr(vKB), sr(sK, 4), so, 1024 * (r % 4)))
    p("buffer_load_dwordx4 %s, %s, %s, %s offen" % (vr(SH, 4), vr(vUT), sr(sSH, 4), sr(sT2)))
    for r in range(8):
        so = "0" if r < 4 else sr(sC4096)
        p("buffer_load_dword %s, %s, %s, %s offen offset:%d" % (vr(VV + r), vr(vKB), sr(sV, 4), so, 1024 * (r % 4)))
    p("s_lshl_b32 %s, %s, 5" % (sr(sT0), sr(sX)))
    p("s_add_u32 %s, %s, %s" % (sr(sT0), sr(sT0), sr(sJ)))
    p("s_lshl_b32 %s, %s, 2" % (sr(sT1), sr(sT0)))
    p("s_add_u32 %s, %s, %s" % (sr(sD), sr(sD), sr(sT1)))
    p("s_addc_u32 %s, %s, 0" % (sr(sD + 1), sr(sD + 1)))
    p("s_load_dword %s, %s, 0" % (sr(sDV), sr(sD, 2)))
    p("s_lshl_b32 %s, %s, 13" % (sr(sT0), sr(sT0)))
    p("v_lshlrev_b32 %s, 5, v0" % vr(vHA))
    p("v_add_u32 %s, %s, %s" % (vr(vHA), sr(sT0), vr(vHA)))
    p("v_add_u32 %s, -8, %s" % (vr(vHB), vr(vHA)))
    p("buffer_load_dwordx2 %s, %s, %s, 0 offen" % (vr(HE, 2), vr(vHB), sr(sH, 4)))
    p("buffer_load_dwordx4 %s, %s, %s, 0 offen" % (vr(HE + 2, 4), vr(vHA), sr(sH, 4)))
    p("buffer_load_dwordx4 %s, %s, %s, 0 offen offset:16" % (vr(HE + 6, 4), vr(vHA), sr(sH, 4)))
    p("s_lshl_b32 %s, %s, 18" % (sr(sT0), sr(sX)))
    p("s_lshl_b32 %s, %s, 15" % (sr(sT1), sr(sG32L)))
    p("s_add_u32 %s, %s, %s" % (sr(sT0), sr(sT0), sr(sT1)))
    p("s_lshl_b32 %s, %s, 6" % (sr(sT1), sr(sKS)))
    p("s_add_u32 %s, %s, %s" % (sr(sT0), sr(sT0), sr(sT1)))
    p("v_and_b32 %s, 31, %s" % (t, l))
    p("v_lshlrev_b32 %s, 10, %s" % (vr(vXrow), t))
    p("v_and_b32 %s, 32, %s" % (t, l))
    p("v_add3_u32 %s, %s, %s, %s" % (vr(vXrow), vr(vXrow), t, sr(sT0)))
    p("buffer_load_dwordx4 %s, %s, %s, 0 offen" % (vr(X0, 4), vr(vXrow), sr(sQ, 4)))
    p("buffer_load_dwordx4 %s, %s, %s, 0 offen offset:16" % (vr(X0 + 4, 4), vr(vXrow), sr(sQ, 4)))


def clears():
    for r in range(4):
        p("v_mov_b32 %s, -1" % vr(FF + r))
    p("v_lshlrev_b32 %s, 4, v0" % vr(vCL))
    st = "buffer_store_dwordx4 %s, %s, %s, %%s offen sc1" % (vr(FF, 4), vr(vCL), sr(sWS, 4))
    p("s_lshl_b32 %s, %s, 5" % (sr(sT0), sr(sX)))
    p("s_add_u32 %s, %s, %s" % (sr(sT0), sr(sT0), sr(sJ)))
    p("s_lshl_b32 %s, %s, 13" % (sr(sT0), sr(sT0)))
    sadd(sT0, sT0, YB)
    p(st % sr(sT0))
    sadd(sT0, sT0, 4096)
    p(st % sr(sT0))
    p("s_mul_i32 %s, s2, 4608" % sr(sT0))
    sadd(sT0, sT0, KVP)
    p(st % sr(sT0))
    p("s_mul_i32 %s, %s, 5120" % (sr(sT1), sr(sJ)))
    p("s_add_u32 %s, %s, %s" % (sr(sT1), sr(sT1), sr(sCLS)))
    sadd(sT1, sT1, C_STATE)
    p(st % sr(sT1))
    skip = p.newlabel("clr")
    p("s_cmp_lg_u32 %s, 0" % sr(sWV))
    p("s_cbranch_scc1 %s" % skip)
    sadd(sT1, sT1, 4096)
    p(st % sr(sT1))
    sadd(sT0, sT0, 4096)
    p("s_mov_b32 exec_hi, 0")
    p(st % sr(sT0))
    p("s_mov_b64 exec, -1")
    p.label(skip)


def addresses():
    l = vr(vLANE)
    t, t2, t3 = vr(vT), vr(VF), vr(VF + 1)
    p("v_lshlrev_b32 %s, 4, %s" % (vr(vL16), l))
    p("v_lshlrev_b32 %s, 3, %s" % (vr(vL8), l))
    p("s_lshl_b32 %s, %s, 17" % (sr(sT0), sr(sKS)))
    p("s_lshl_b32 %s, %s, 10" % (sr(sT1), sr(sX)))
    p("s_add_u32 %s, %s, %s" % (sr(sT0), sr(sT0), sr(sT1)))
    p("s_lshl_b32 %s, %s, 7" % (sr(sT1), sr(sG32L)))
    p("s_add_u32 %s, %s, %s" % (sr(sT0), sr(sT0), sr(sT1)))
    p("v_and_b32 %s, 31, %s" % (t, l))
    p("v_lshrrev_b32 %s, 5, %s" % (t2, l))
    p("v_lshlrev_b32 %s, 16, %s" % (t3, t2))
    p("v_lshl_add_u32 %s, %s, 2, %s" % (vr(vYa), t, t3))
    p("v_add_u32 %s, %s, %s" % (vr(vYa), sr(sT0), vr(vYa)))
    p("s_lshl_b32 %s, %s, 12" % (sr(sT0), sr(sG32L)))
    p("s_lshr_b32 %s, %s, 1" % (sr(sT1), sr(sKS)))
    p("s_lshl_b32 %s, %s, 9" % (sr(sT1), sr(sT1)))
    p("s_add_u32 %s, %s, %s" % (sr(sT0), sr(sT0), sr(sT1)))
    p("s_and_b32 %s, %s, 1" % (sr(sT1), sr(sKS)))
    p("s_lshl_b32 %s, %s, 3" % (sr(sT1), sr(sT1)))
    p("s_add_u32 %s, %s, %s" % (sr(sT0), sr(sT0), sr(sT1)))
    p("v_lshlrev_b32 %s, 2, %s" % (t3, t2))
    p("v_lshl_add_u32 %s, %s, 4, %s" % (vr(vSTw), t, t3))
    p("v_add_u32 %s, %s, %s" % (vr(vSTw), sr(sT0), vr(vSTw)))
    p("v_lshlrev_b32 %s, 11, %s" % (t3, t2))
    p("v_lshl_add_u32 %s, %s, 4, %s" % (vr(vSTr), t, t3))
    p("s_and_b32 %s, %s, 1" % (sr(sT0), sr(sWV)))
    p("s_lshl_b32 %s, %s, 7" % (sr(sT0), sr(sT0)))
    sadd(sT0, sT0, TB)
    p("v_lshlrev_b32 %s, 8, %s" % (t3, t2))
    p("v_lshl_add_u32 %s, %s, 2, %s" % (vr(vTBw), t, t3))
    p("v_add_u32 %s, %s, %s" % (vr(vTBw), sr(sT0), vr(vTBw)))
    p("s_lshl_b32 %s, %s, 15" % (sr(sT0), sr(sG32L)))
    p("s_lshl_b32 %s, %s, 10" % (sr(sT1), sr(sKS)))
    p("s_add_u32 %s, %s, %s" % (sr(sT0), sr(sT0), sr(sT1)))
    p("v_lshrrev_b32 %s, 4, %s" % (t3, t))
    p("v_lshlrev_b32 %s, 14, %s" % (vr(vXw), t3))
    p("v_lshl_add_u32 %s, %s, 9, %s" % (vr(vXw), t2, vr(vXw)))
    p("v_and_b32 %s, 15, %s" % (t, l))
    p("v_lshl_add_u32 %s, %s, 4, %s" % (vr(vXw), t, vr(vXw)))
    p("v_add_u32 %s, %s, %s" % (vr(vXw), sr(sT0), vr(vXw)))
    p("v_lshrrev_b32 %s, 4, %s" % (t2, l))
    p("v_lshrrev_b32 %s, 1, %s" % (t3, t2))
    p("v_lshlrev_b32 %s, 9, %s" % (vr(vSTATEw), t3))
    p("v_lshl_add_u32 %s, %s, 4, %s" % (vr(vSTATEw), t, vr(vSTATEw)))
    p("v_and_b32 %s, 1, %s" % (t3, t2))
    p("v_lshl_add_u32 %s, %s, 3, %s" % (vr(vSTATEw), t3, vr(vSTATEw)))
    p("s_lshl_b32 %s, %s, 16" % (sr(sT0), sr(sRG)))
    p("s_lshl_b32 %s, %s, 2" % (sr(sT1), sr(sM)))
    p("s_add_u32 %s, %s, %s" % (sr(sT1), sr(sT1), sr(sWV)))
    p("s_lshl_b32 %s, %s, 10" % (sr(sT1), sr(sT1)))
    p("s_add_u32 %s, %s, %s" % (sr(sT0), sr(sT0), sr(sT1)))
    p("v_add_u32 %s, %s, %s" % (vr(vPQw), sr(sT0), vr(vSTATEw)))
    p("v_lshlrev_b32 %s, 4, %s" % (vr(vTB1), t2))
    p("v_add_u32 %s, 0x%x, %s" % (vr(vTB1), TB, vr(vTB1)))
    p("v_lshlrev_b32 %s, 2, %s" % (vr(vTB2), t))
    p("v_add_u32 %s, 0x%x, %s" % (vr(vTB2), TB, vr(vTB2)))
    p("v_lshlrev_b32 %s, 4, %s" % (t3, t2))
    p("v_lshl_add_u32 %s, %s, 6, %s" % (vr(vZr), t, t3))
    a, b = vr(VF + 2), vr(VF + 3)
    p("v_and_b32 %s, 1, %s" % (a, t))
    p("v_lshlrev_b32 %s, 4, %s" % (a, a))
    p("v_mov_b32 %s, 0x3f80" % b)
    p("v_lshlrev_b32 %s, %s, %s" % (a, a, b))
    p("v_lshrrev_b32 %s, 1, %s" % (b, t))
    p("v_lshlrev_b32 %s, 1, %s" % (t3, t2))
    p("v_cmp_eq_u32 vcc, %s, %s" % (b, t3))
    p("v_cndmask_b32 %s, 0, %s, vcc" % (vr(vSEL), a))
    p("v_add_u32 %s, 1, %s" % (t3, t3))
    p("v_cmp_eq_u32 vcc, %s, %s" % (b, t3))
    p("v_cndmask_b32 %s, 0, %s, vcc" % (vr(vSEL + 1), a))
    p("v_mov_b32 %s, %s" % (vr(vSEL + 2), vr(vSEL)))
    p("v_mov_b32 %s, %s" % (vr(vSEL + 3), vr(vSEL + 1)))
    for r in range(4):
        p("v_mov_b32 %s, 0x3f803f80" % vr(vONE + r))
    p("v_lshrrev_b32 %s, 2, %s" % (a, t))
    p("v_lshl_add_u32 %s, %s, 3, %s" % (a, t2, a))
    p("v_bfe_u32 %s, %s, 1, 1" % (b, a))
    p("v_and_b32 %s, 1, %s" % (t3, t2))
    p("v_lshl_add_u32 %s, %s, 1, %s" % (b, t3, b))
    p("v_xor_b32 %s, %s, %s" % (b, sr(sWV), b))
    p("v_lshlrev_b32 %s, 7, %s" % (a, a))
    p("v_lshl_add_u32 %s, %s, 5, %s" % (a, b, a))
    p("v_and_b32 %s, 3, %s" % (b, t))
    p("v_lshl_add_u32 %s, %s, 3, %s" % (vr(vTrW), b, a))
    p("v_lshrrev_b32 %s, 2, %s" % (a, t))
    p("v_xor_b32 %s, %s, %s" % (b, sr(sWV), a))
    p("v_lshlrev_b32 %s, 6, %s" % (b, b))
    p("v_lshl_add_u32 %s, %s, 8, %s" % (b, a, b))
    p("v_lshrrev_b32 %s, 1, %s" % (a, t2))
    p("v_lshl_add_u32 %s, %s, 10, %s" % (b, a, b))
    p("v_and_b32 %s, 1, %s" % (a, t2))
    p("v_lshl_add_u32 %s, %s, 4, %s" % (b, a, b))
    p("v_and_b32 %s, 1, %s" % (a, t))
    p("v_lshl_add_u32 %s, %s, 5, %s" % (b, a, b))
    p("v_bfe_u32 %s, %s, 1, 1" % (a, t))
    p("v_lshl_add_u32 %s, %s, 3, %s" % (vr(vTrO), a, b))
    p("v_lshlrev_b32 %s, 2, %s" % (a, t2))
    p("v_xor_b32 %s, %s, %s" % (a, t, a))
    p("v_lshlrev_b32 %s, 4, %s" % (a, a))
    p("v_lshl_add_u32 %s, %s, 10, %s" % (vr(vDmaO), t2, a))


def dmaw_address():
    l = vr(vLANE)
    a, b = vr(VF), vr(VF + 1)
    p("v_lshrrev_b32 %s, 3, %s" % (a, l))
    p("v_and_b32 %s, 2, %s" % (b, a))
    p("v_mul_u32_u24 %s, 0xc00, %s" % (a, a))
    p("v_xor_b32 %s, %s, %s" % (b, l, b))
    p("v_and_b32 %s, 7, %s" % (b, b))
    p("v_lshl_add_u32 %s, %s, 4, %s" % (vr(vDmaW), b, a))


def p0_compute():
    for d in range(4):
        src0 = SH + (d >> 1)
        src1 = SH + 2 + (d >> 1)
        if d & 1:
            p("v_and_b32 %s, %s, %s" % (vr(WF + 2 * d), sr(sMASK), vr(src0)))
            p("v_and_b32 %s, %s, %s" % (vr(WF + 2 * d + 1), sr(sMASK), vr(src1)))
        else:
            p("v_lshlrev_b32 %s, 16, %s" % (vr(WF + 2 * d), vr(src0)))
            p("v_lshlrev_b32 %s, 16, %s" % (vr(WF + 2 * d + 1), vr(src1)))
    for r in range(11):
        unpack(KF + 2 * r, KK + r)
    for t in range(8):
        p("v_pk_mul_f32 %s, %s, %s" % (vr(UF + 2 * t, 2), vr(KF + 2 * t, 2), vr(WF + 6, 2)))
    for d in (2, 1, 0):
        for t in range(8):
            p("v_pk_fma_f32 %s, %s, %s, %s" % (vr(UF + 2 * t, 2), vr(KF + 2 * (t + 3 - d), 2), vr(WF + 2 * d, 2), vr(UF + 2 * t, 2)))
    for t in range(8):
        unpack(KF + 2 * t, VV + t)
    for t in range(8):
        p("v_pk_mul_f32 %s, %s, %s" % (vr(UF + 2 * t, 2), vr(UF + 2 * t, 2), vr(KF + 2 * t, 2)))
    for c in range(2):
        for n in range(4):
            p("v_cvt_pk_bf16_f32 %s, %s, %s" % (vr(UP + 4 * c + n), vr(UF + 2 * (7 - 2 * n) + c), vr(UF + 2 * (6 - 2 * n) + c)))


def ut_address():
    l = vr(vLANE)
    t = vr(vT)
    p("s_lshl_b32 %s, %s, 16" % (sr(sT0), sr(sWV)))
    p("s_lshl_b32 %s, %s, 7" % (sr(sT1), sr(sJ)))
    p("s_sub_u32 %s, %s, %s" % (sr(sT0), sr(sT0), sr(sT1)))
    sadd(sT0, sT0, 4080)
    p("v_and_b32 %s, 7, %s" % (t, l))
    p("v_lshlrev_b32 %s, 13, %s" % (vr(vUT), t))
    p("v_lshrrev_b32 %s, 3, %s" % (t, l))
    p("v_lshlrev_b32 %s, 4, %s" % (t, t))
    p("v_sub_u32 %s, %s, %s" % (vr(vUT), vr(vUT), t))
    p("v_add_u32 %s, %s, %s" % (vr(vUT), sr(sT0), vr(vUT)))


def ut_store(soff, sc, tag=None):
    p("buffer_store_dwordx4 %s, %s, %s, %s offen%s" % (vr(UP, 4), vr(vUT), sr(sWS, 4), sr(soff), sc), tag)
    sadd(sT3, soff, 4096)
    p("buffer_store_dwordx4 %s, %s, %s, %s offen%s" % (vr(UP + 4, 4), vr(vUT), sr(sWS, 4), sr(sT3), sc), tag)


def h_copies():
    A, B = KF, KF + 8
    C = KF + 16
    t = vr(vT)
    wa = vr(vHA)
    p("v_and_b32 %s, 127, v0" % t)
    p("s_lshr_b32 %s, %s, 1" % (sr(sT0), sr(sWV)))
    p("s_lshl_b32 %s, %s, 16" % (sr(sT1), sr(sDV)))
    p("s_and_b32 %s, %s, %s" % (sr(sT2), sr(sDV), sr(sMASK)))
    p("s_cmp_eq_u32 %s, 0" % sr(sT0))
    p("s_cselect_b32 %s, %s, %s" % (sr(sT1), sr(sT1), sr(sT2)))
    p("v_cmp_eq_u32 vcc, 0, %s" % t)
    p("v_lshlrev_b32 %s, 16, %s" % (vr(C), vr(HE + 2)))
    p("v_add_f32 %s, %s, %s" % (vr(C), sr(sT1), vr(C)))
    p("v_cvt_pk_bf16_f32 %s, %s, %s" % (vr(C), vr(C), vr(C)))
    p("v_bfi_b32 %s, %s, %s, %s" % (vr(C), sr(sMASK), vr(HE + 2), vr(C)))
    p("v_cndmask_b32 %s, %s, %s, vcc" % (vr(HE + 2), vr(HE + 2), vr(C)))
    p("v_cndmask_b32_e64 %s, %s, 0, vcc" % (vr(HE), vr(HE)))
    p("v_cndmask_b32_e64 %s, %s, 0, vcc" % (vr(HE + 1), vr(HE + 1)))
    p("s_mul_i32 %s, %s, %d" % (sr(sT0), sr(sT0), HCH))
    sadd(sT0, sT0, HB + 32)
    p("v_lshlrev_b32 %s, 5, %s" % (wa, t))
    p("v_add_u32 %s, %s, %s" % (wa, sr(sT0), wa))
    p("ds_write_b128 %s, %s offset:%d" % (wa, vr(HE + 2, 4), 3 * HCOPY))
    p("ds_write_b128 %s, %s offset:%d" % (wa, vr(HE + 6, 4), 3 * HCOPY + 16))
    for n in range(8):
        p("v_alignbit_b32 %s, %s, %s, 16" % (vr(A + n), vr(HE + n + 1), vr(HE + n)))
    p("ds_write_b128 %s, %s offset:%d" % (wa, vr(A, 4), 0))
    p("ds_write_b128 %s, %s offset:%d" % (wa, vr(A + 4, 4), 16))
    for n in range(8):
        p("v_alignbit_b32 %s, %s, %s, 16" % (vr(B + n), vr(HE + n + 2), vr(HE + n + 1)))
    p("ds_write_b128 %s, %s offset:%d" % (wa, vr(B, 4), 2 * HCOPY))
    p("ds_write_b128 %s, %s offset:%d" % (wa, vr(B + 4, 4), 2 * HCOPY + 16))
    for n in range(8):
        p("v_mov_b32 %s, %s" % (vr(UF + n), vr(HE + n + 1)))
    p("ds_write_b128 %s, %s offset:%d" % (wa, vr(UF, 4), HCOPY))
    p("ds_write_b128 %s, %s offset:%d" % (wa, vr(UF + 4, 4), HCOPY + 16))


def lds_zero():
    z = KF
    t, a = vr(vT), vr(vHB)
    for r in range(4):
        p("v_mov_b32 %s, 0" % vr(z + r))
    skip = p.newlabel("zero")
    skip2 = p.newlabel("zero")
    p("s_cmp_lg_u32 %s, 0" % sr(sWV))
    p("s_cbranch_scc1 %s" % skip)
    p("v_lshrrev_b32 %s, 5, v0" % t)
    p("v_mul_u32_u24 %s, %d, %s" % (a, UCH - 512, t))
    p("v_lshl_add_u32 %s, v0, 4, %s" % (a, a))
    p("v_add_u32 %s, 0x%x, %s" % (a, UB + 4096, a))
    p("ds_write_b128 %s, %s" % (a, vr(z, 4)))
    p.label(skip)
    p("s_cmp_lg_u32 %s, 1" % sr(sWV))
    p("s_cbranch_scc1 %s" % skip2)
    p("v_bfe_u32 %s, v0, 1, 3" % t)
    p("v_mul_u32_u24 %s, %d, %s" % (a, HCOPY, t))
    p("v_and_b32 %s, 1, v0" % t)
    p("v_lshl_add_u32 %s, %s, 4, %s" % (a, t, a))
    p("v_add_u32 %s, 0x%x, %s" % (a, HB, a))
    p("ds_write_b128 %s, %s" % (a, vr(z, 4)))
    p.label(skip2)


def afrag_preload():
    l = vr(vLANE)
    a, t, t2 = vr(vHA), vr(vT), vr(vHB)
    p("s_lshr_b32 %s, %s, 1" % (sr(sT0), sr(sWV)))
    p("s_mul_i32 %s, %s, %d" % (sr(sT0), sr(sT0), HCH))
    p("s_and_b32 %s, %s, 1" % (sr(sT1), sr(sWV)))
    p("s_lshl_b32 %s, %s, 8" % (sr(sT1), sr(sT1)))
    p("s_add_u32 %s, %s, %s" % (sr(sT0), sr(sT0), sr(sT1)))
    sadd(sT0, sT0, HB + 8)
    p("v_and_b32 %s, 3, %s" % (t, l))
    p("v_mul_u32_u24 %s, %d, %s" % (a, HCOPY, t))
    p("v_and_b32 %s, 12, %s" % (t, l))
    p("v_lshl_add_u32 %s, %s, 1, %s" % (a, t, a))
    p("v_and_b32 %s, 48, %s" % (t, l))
    p("v_add3_u32 %s, %s, %s, %s" % (a, a, t, sr(sT0)))
    for rho in range(4):
        for aa in range(8):
            off = 512 * aa + 64 * rho
            r = aH + 4 * (8 * rho + aa)
            p("ds_read_b64 %s, %s offset:%d" % (ar(r, 2), a, off))
            p("ds_read_b64 %s, %s offset:%d" % (ar(r + 2, 2), a, off + 8))


def handoff_ut():
    F = KF
    E = KF + 4
    FB = KF + 8
    top, fast, got = p.newlabel("h1"), p.newlabel("h1fast"), p.newlabel("h1got")
    slow, slowtop = p.newlabel("h1slow"), p.newlabel("h1slowtop")
    p("s_add_u32 %s, %s, %s" % (sr(sP), sr(sTAG), sr(sXCC)))
    p("s_addc_u32 %s, %s, 0" % (sr(sP + 1), sr(sTAG + 1)))
    sadd(sT0, sCLS, C_FLAGA)
    p("v_and_b32 %s, 0xff, %s" % (vr(E), vr(vL8)))
    p("s_mov_b32 %s, %d" % (sr(sCNT), 0 if FORCE_SLOW else 48))
    p.label(top)
    p("buffer_load_dwordx2 %s, %s, %s, %s offen sc1" % (vr(F, 2), vr(E), sr(sWS, 4), sr(sT0)))
    p("v_cmp_ne_u64 vcc, %s, %s" % (sr(sP, 2), vr(F, 2)))
    if not FORCE_SLOW:
        p("s_cbranch_vccz %s" % fast)
    p("s_sub_u32 %s, %s, 1" % (sr(sCNT), sr(sCNT)))
    p("s_cbranch_scc0 %s" % top)
    p("s_branch %s" % slow)
    p.label(fast)
    p("s_mov_b32 %s, 1" % sr(sMODE))
    sadd(sUSRC, sCLS, C_UTA)
    p.label(got)

    def blk():
        p.label(slow)
        p("s_lshl_b32 %s, %s, 18" % (sr(sUSRC), sr(sX)))
        sadd(sUSRC, sUSRC, UTB)
        ut_store(sUSRC, " sc1")
        p.waitvm()
        p("s_lshl_b32 %s, %s, 10" % (sr(sT1), sr(sX)))
        sadd(sT1, sT1, FLAGB)
        p("s_lshl_b32 %s, %s, 2" % (sr(sT2), sr(sJ)))
        p("s_add_u32 %s, %s, %s" % (sr(sT2), sr(sT2), sr(sWV)))
        p("s_lshl_b32 %s, %s, 3" % (sr(sT2), sr(sT2)))
        p("s_add_u32 %s, %s, %s" % (sr(sT2), sr(sT2), sr(sT1)))
        flag_store(sT2, local=False)
        p("s_mov_b32 %s, %s" % (sr(sCNT), sr(sLIM)))
        p("s_mov_b32 %s, 0" % sr(sMODE))
        p.label(slowtop)
        p("buffer_load_dwordx2 %s, %s, %s, %s offen sc1" % (vr(F, 2), vr(E), sr(sWS, 4), sr(sT0)))
        p("buffer_load_dwordx2 %s, %s, %s, %s offen sc1" % (vr(FB, 2), vr(vL8), sr(sWS, 4), sr(sT1)))
        p("buffer_load_dwordx2 %s, %s, %s, %s offen offset:512 sc1" % (vr(FB + 2, 2), vr(vL8), sr(sWS, 4), sr(sT1)))
        if not FORCE_SLOW:
            p("v_cmp_ne_u64 vcc, %s, %s" % (sr(sP, 2), vr(F, 2)))
            p("s_cbranch_vccz %s" % fast)
        p("v_cmp_ne_u64 vcc, %s, %s" % (sr(sTAG, 2), vr(FB, 2)))
        p("v_cmp_ne_u64 %s, %s, %s" % (sr(sTS, 2), sr(sTAG, 2), vr(FB + 2, 2)))
        p("s_or_b64 vcc, vcc, %s" % sr(sTS, 2))
        p("s_cbranch_vccz %s" % got)
        p("s_sub_u32 %s, %s, 1" % (sr(sCNT), sr(sCNT)))
        p("s_cbranch_scc0 %s" % slowtop)
        p("s_mov_b32 %s, 0" % sr(sLIM))
        p("s_or_b32 %s, %s, 1" % (sr(sERR), sr(sERR)))
        p("s_branch %s" % got)

    tail.append(blk)
    p("s_lshl_b32 %s, %s, 13" % (sr(sT0), sr(sJ)))
    p("s_add_u32 %s, %s, %s" % (sr(sT0), sr(sT0), sr(sUSRC)))
    p("s_lshl_b32 %s, %s, 11" % (sr(sT1), sr(sWV)))
    p("s_add_u32 %s, %s, %s" % (sr(sT0), sr(sT0), sr(sT1)))
    p("s_lshr_b32 %s, %s, 1" % (sr(sT2), sr(sWV)))
    p("s_lshl_b32 %s, %s, 9" % (sr(sT2), sr(sT2)))
    p("s_add_u32 %s, %s, %s" % (sr(sT1), sr(sT1), sr(sT2)))
    p("s_add_u32 m0, %s, %d" % (sr(sT1), UB))
    p("buffer_load_dwordx4 %s, %s, %s offen sc1 lds" % (vr(vL16), sr(sWS, 4), sr(sT0)))
    p("buffer_load_dwordx4 %s, %s, %s offen offset:1024 sc1 lds" % (vr(vL16), sr(sWS, 4), sr(sT0)))


CACC = S0 + 8
CB = S0 + 40
CR = S0 + 72
vCB, vCE, vYw = S0 + 4, S0 + 5, S0 + 6


def conv_addresses():
    l = vr(vLANE)
    t = vr(vT)
    p("s_lshr_b32 %s, %s, 1" % (sr(sT0), sr(sWV)))
    p("s_mul_i32 %s, %s, %d" % (sr(sT0), sr(sT0), UCH))
    p("s_and_b32 %s, %s, 1" % (sr(sT1), sr(sWV)))
    p("s_lshl_b32 %s, %s, 8" % (sr(sT1), sr(sT1)))
    p("s_add_u32 %s, %s, %s" % (sr(sT0), sr(sT0), sr(sT1)))
    sadd(sT0, sT0, UB + 480)
    p("v_and_b32 %s, 15, %s" % (t, l))
    p("v_lshlrev_b32 %s, 5, %s" % (vr(vCB), t))
    p("v_sub_u32 %s, %s, %s" % (vr(vCB), sr(sT0), vr(vCB)))
    p("v_lshlrev_b32 %s, 6, %s" % (vr(vYw), t))
    p("v_and_b32 %s, 48, %s" % (t, l))
    p("v_add_u32 %s, %s, %s" % (vr(vCB), vr(vCB), t))
    p("v_add_u32 %s, %s, %s" % (vr(vYw), vr(vYw), t))


def conv(extra):
    def rd(m, rho):
        p("ds_read_b128 %s, %s offset:%d" % (vr(CB + 4 * m, 4), vr(vCB), 512 * (7 - m) + 64 * rho))

    def mm(a, m, rho, first):
        acc = vr(CACC + 4 * (a + m), 4)
        p("v_mfma_f32_16x16x32_bf16 %s, %s, %s, %s" % (acc, ar(aH + 4 * (8 * rho + a), 4), vr(CB + 4 * m, 4), "0" if first else acc))

    for m in range(8):
        rd(m, 0)
    extra()
    for rho in range(3):
        for m in range(8):
            for a in range(8 - m):
                mm(a, m, rho, rho == 0 and m == 0)
            rd(m, rho + 1)
    p("s_lshl_b32 %s, %s, 5" % (sr(sT0), sr(sX)))
    p("s_add_u32 %s, %s, %s" % (sr(sT0), sr(sT0), sr(sJ)))
    p("s_lshl_b32 %s, %s, 13" % (sr(sT0), sr(sT0)))
    sadd(sT0, sT0, YB)
    labs = [p.newlabel("cv%d" % w) for w in range(4)]
    join = p.newlabel("cvjoin")
    for w in range(1, 4):
        p("s_cmp_eq_u32 %s, %d" % (sr(sWV), w))
        p("s_cbranch_scc1 %s" % labs[w])
    for w in range(4):
        p.label(labs[w])
        keep = (w, 7 - w)
        send = [jt for jt in range(7, -1, -1) if jt not in keep]
        pend = []
        for jt in send + list(keep):
            for a in range(jt + 1):
                mm(a, jt - a, 3, False)
            if pend:
                j2 = pend.pop()
                d = min(j2, 7 - j2)
                slot = (w - d - 1) % 4
                p("ds_write_b128 %s, %s offset:%d" % (vr(vL16), vr(CACC + 4 * j2, 4), EX + (d * 3 + slot) * 2048 + (0 if j2 < 4 else 1024)))
            if jt in send:
                pend.append(jt)
        barrier()
        for slot in range(3):
            for k2 in range(2):
                p("ds_read_b128 %s, %s offset:%d" % (vr(CR + 8 * slot + 4 * k2, 4), vr(vL16), EX + (w * 3 + slot) * 2048 + 1024 * k2))
        partner = w ^ 1
        others = [o for o in range(4) if (o >> 1) != (w >> 1)]
        sl = lambda o: (o - w - 1) % 4
        for k2 in range(2):
            jt = keep[k2]
            own = CACC + 4 * jt
            pr = CR + 8 * sl(partner) + 4 * k2
            o0 = CR + 8 * sl(others[0]) + 4 * k2
            o1 = CR + 8 * sl(others[1]) + 4 * k2
            for e in (0, 2):
                p("v_pk_add_f32 %s, %s, %s" % (vr(own + e, 2), vr(own + e, 2), vr(pr + e, 2)))
                p("v_pk_add_f32 %s, %s, %s" % (vr(o0 + e, 2), vr(o0 + e, 2), vr(o1 + e, 2)))
            lo, hi = (own, o0) if (w >> 1) == 0 else (o0, own)
            for e in range(4):
                p("v_cvt_pk_bf16_f32 %s, %s, %s" % (vr(pr + e), vr(lo + e), vr(hi + e)))
            for e in range(4):
                p("v_min_u32 %s, -2, %s" % (vr(pr + e), vr(pr + e)))
            if jt >= 4:
                sadd(sT0, sT0, 4096)
            p("buffer_store_dwordx4 %s, %s, %s, %s offen offset:%d sc1" % (vr(pr, 4), vr(vYw), sr(sWS, 4), sr(sT0), 1024 * (jt % 4)))
        if w < 3:
            p("s_branch %s" % join)
    p.label(join)


def hello_check():
    F = S0 + 8
    p("s_mov_b32 %s, 0x%x" % (sr(sT0), HELLO))

    def issue():
        for u in range(4):
            p("buffer_load_dwordx2 %s, %s, %s, %s offen offset:%d sc1" % (vr(F + 2 * u, 2), vr(vL8), sr(sWS, 4), sr(sT0), 512 * u))

    def check():
        p("v_cmp_ne_u64 vcc, %s, %s" % (sr(sTAG, 2), vr(F, 2)))
        for u in range(1, 4):
            p("v_cmp_ne_u64 %s, %s, %s" % (sr(sP, 2), sr(sTAG, 2), vr(F + 2 * u, 2)))
            p("s_or_b64 vcc, vcc, %s" % sr(sP, 2))

    poll(issue, check, 1)


def colsum(a0, dst, transposed):
    acc = S0 + 8
    for ks in range(16):
        A, B = vr(vONE, 4), ar(a0 + 4 * ks, 4)
        if transposed:
            A, B = B, A
        p("v_mfma_f32_16x16x32_bf16 %s, %s, %s, %s" % (vr(acc, 4), A, B, "0" if ks == 0 else vr(acc, 4)))
    for e in range(4 if transposed else 1):
        p("v_mov_b32 %s, %s" % (vr(dst + e), vr(acc + e)))


N0 = S0 + 32


def normalise(vR, vNM):
    for e in range(0, 16, 2):
        p("v_pk_fma_f32 %s, %s, %s, %s op_sel_hi:[1,0,0]" % (vr(N0 + e, 2), vr(vX + e, 2), vr(vR, 2), vr(vNM, 2)))


def gate_and_publish(L):
    XP = S0 + 48
    for e in range(0, 16, 2):
        p("v_pk_fma_f32 %s, %s, %s, %s" % (vr(vX + e, 2), vr(N0 + e, 2), vr(vY + e, 2), vr(vX + e, 2)))
    for e in range(8):
        p("v_cvt_pk_bf16_f32 %s, %s, %s" % (vr(XP + e), vr(vX + 2 * e), vr(vX + 2 * e + 1)))
    sadd(sT0, sCLS, C_X + L * 0x40000)
    local_stores(
        [
            "buffer_store_dwordx4 %s, %s, %s, %s offen" % (vr(XP, 4), vr(vXw), sr(sWS, 4), sr(sT0)),
            "buffer_store_dwordx4 %s, %s, %s, %s offen offset:256" % (vr(XP + 4, 4), vr(vXw), sr(sWS, 4), sr(sT0)),
        ],
        "xst",
    )
    stats_compute(S0 + 56, S0 + 58)
    p("s_lshl_b32 %s, %s, 4" % (sr(sT1), sr(sG32L)))
    p("s_add_u32 %s, %s, %s" % (sr(sT1), sr(sT1), sr(sKS)))
    p("s_lshl_b32 %s, %s, 3" % (sr(sT1), sr(sT1)))
    p("s_add_u32 %s, %s, %s" % (sr(sT1), sr(sT1), sr(sCLS)))
    sadd(sT1, sT1, C_FLAGX + L * 0x400)
    p.waitvm("xst")
    flag_store(sT1)
    sadd(sT0, sCLS, st_off(1 + 2 * L))
    local_stores(["buffer_store_dword %s, %s, %s, %s offen" % (vr(S0 + 56), vr(vSTw), sr(sWS, 4), sr(sT0))])


GA = S0 + 8
GK, GV, GQ = S0 + 40, S0 + 56, S0 + 72
GT = S0 + 88


def gemm_kv(L):
    F = GT
    p("s_lshl_b32 %s, %s, 1" % (sr(sT0), sr(sRG)))
    p("s_lshr_b32 %s, %s, 1" % (sr(sT1), sr(sWV)))
    p("s_add_u32 %s, %s, %s" % (sr(sT0), sr(sT0), sr(sT1)))
    p("s_lshl_b32 %s, %s, 7" % (sr(sT0), sr(sT0)))
    p("s_add_u32 %s, %s, %s" % (sr(sT0), sr(sT0), sr(sCLS)))
    sadd(sT0, sT0, C_FLAGX + L * 0x400)
    p("v_and_b32 %s, 0x7f, %s" % (vr(F + 2), vr(vL8)))
    p("s_lshl_b32 %s, %s, 16" % (sr(sT1), sr(sRG)))
    p("s_lshl_b32 %s, %s, 14" % (sr(sT2), sr(sWV)))
    p("s_add_u32 %s, %s, %s" % (sr(sT1), sr(sT1), sr(sT2)))
    p("s_add_u32 %s, %s, %s" % (sr(sT1), sr(sT1), sr(sCLS)))
    sadd(sT1, sT1, C_X + L * 0x40000)
    p("s_add_u32 m0, %s, %d" % (sr(sT2), AB))
    poll(
        lambda: p("buffer_load_dwordx2 %s, %s, %s, %s offen sc1" % (vr(F, 2), vr(F + 2), sr(sWS, 4), sr(sT0))),
        lambda: p("v_cmp_ne_u64 vcc, %s, %s" % (sr(sTAG, 2), vr(F, 2))),
        3,
    )
    stamp("xflag%d" % L)
    for s in range(4):
        for k2 in range(4):
            p("buffer_load_dwordx4 %s, %s, %s offen offset:%d sc1 lds" % (vr(vL16), sr(sWS, 4), sr(sT1), 1024 * k2), "a%d" % s)
        if s < 3:
            p("s_add_u32 m0, m0, 4096")
            sadd(sT1, sT1, 4096)
    p("s_lshl_b32 %s, %s, 1" % (sr(sT0), sr(sRG)))
    p("s_and_b32 %s, %s, 1" % (sr(sT1), sr(sWV)))
    p("s_add_u32 %s, %s, %s" % (sr(sT0), sr(sT0), sr(sT1)))
    p("s_lshl_b32 %s, %s, 12" % (sr(sT0), sr(sT0)))
    p("s_add_u32 %s, %s, %s" % (sr(sT0), sr(sT0), sr(sCLS)))
    sadd(sT3, sT0, st_off(1 + 2 * L))
    p("v_add_u32 %s, 0x%x, %s" % (vr(S0 + 123), AB, vr(vL16)))

    def rd(ks):
        for tt in range(4):
            p("ds_read_b128 %s, %s offset:%d" % (vr(GA + 16 * (ks & 1) + 4 * tt, 4), vr(S0 + 123), tt * 16384 + ks * 1024))

    p.waitvm("a0")
    barrier()
    if L == 0:
        stage_wo(0, R1, "wo")
    rd(0)
    for ks in range(16):
        if ks < 15:
            if (ks + 1) % 4 == 0:
                p.waitvm("a%d" % ((ks + 1) // 4))
                if ks + 1 == 12:
                    poll(lambda: stats_issue(GT, sT3), lambda: check_sentinel(range(GT, GT + 16), GT + 16), 4)
                    stats_finish(GT, GT + 16, GT + 17)
                    p("v_cmp_gt_u32 vcc, 0x200, %s" % vr(vL16))
                    p("v_cndmask_b32 %s, %s, %s, vcc" % (vr(GT + 16), vr(GT + 17), vr(GT + 16)))
                    p("ds_write_b32 %s, %s" % (vr(vTBw), vr(GT + 16)))
                    p.waitlg()
                p("s_barrier")
            rd(ks + 1)
        for tt in range(4):
            A = vr(GA + 16 * (ks & 1) + 4 * tt, 4)
            for acc, w in ((GK, aWK), (GV, aWV)):
                d = vr(acc + 4 * tt, 4)
                p("v_mfma_f32_16x16x32_bf16 %s, %s, %s, %s" % (d, A, ar(w + 4 * ks, 4), "0" if ks == 0 else d))
    stamp("gemmkv%d" % L)
    for tt in range(4):
        p("ds_read_b128 %s, %s offset:%d" % (vr(GT + 8 * tt, 4), vr(vTB1), 64 * tt))
        p("ds_read_b128 %s, %s offset:%d" % (vr(GT + 8 * tt + 4, 4), vr(vTB1), 256 + 64 * tt))
    PK, PV, T = GA, GA + 8, GA + 16
    for tt in range(4):
        Rr, NM = GT + 8 * tt, GT + 8 * tt + 4
        k0, v0 = GK + 4 * tt, GV + 4 * tt
        for e in range(4):
            p("v_fma_f32 %s, %s, %s, %s" % (vr(T + e), vr(NM + e), vr(vCSK), sr(sEPS6)))
        for e in (0, 2):
            p("v_pk_fma_f32 %s, %s, %s, %s" % (vr(k0 + e, 2), vr(k0 + e, 2), vr(Rr + e, 2), vr(T + e, 2)))
        for e in range(4):
            p("v_mul_f32 %s, %s, %s" % (vr(T + e), sr(sLOG2E), vr(k0 + e)))
        for e in range(4):
            p("v_exp_f32_e64 %s, %s clamp" % (vr(T + e), vr(T + e)))
        for e in range(4):
            p("v_max_f32 %s, %s, %s" % (vr(k0 + e), sr(sEPS6), vr(k0 + e)))
        for e in (0, 2):
            p("v_pk_add_f32 %s, %s, %s" % (vr(k0 + e, 2), vr(k0 + e, 2), vr(T + e, 2)))
        for e in range(4):
            p("v_mul_f32 %s, %s, %s" % (vr(T + 4 + e), vr(NM + e), vr(vCSV)))
        for e in (0, 2):
            p("v_pk_fma_f32 %s, %s, %s, %s" % (vr(v0 + e, 2), vr(v0 + e, 2), vr(Rr + e, 2), vr(T + 4 + e, 2)))
        for e in (0, 2):
            p("v_cvt_pk_bf16_f32 %s, %s, %s" % (vr(PK + 2 * tt + e // 2), vr(k0 + e), vr(k0 + e + 1)))
            p("v_cvt_pk_bf16_f32 %s, %s, %s" % (vr(PV + 2 * tt + e // 2), vr(v0 + e), vr(v0 + e + 1)))
    KV, Z = GK, GK + 4
    p("v_mfma_f32_16x16x32_bf16 %s, %s, %s, 0" % (vr(KV, 4), vr(PK, 4), vr(PV, 4)))
    p("v_mfma_f32_16x16x32_bf16 %s, %s, %s, %s" % (vr(KV, 4), vr(PK + 4, 4), vr(PV + 4, 4), vr(KV, 4)))
    p("v_mfma_f32_16x16x32_bf16 %s, %s, %s, 0" % (vr(Z, 4), vr(PK, 4), vr(vONE, 4)))
    p("v_mfma_f32_16x16x32_bf16 %s, %s, %s, %s" % (vr(Z, 4), vr(PK + 4, 4), vr(vONE, 4), vr(Z, 4)))
    p("s_lshl_b32 %s, %s, 2" % (sr(sT0), sr(sM)))
    p("s_add_u32 %s, %s, %s" % (sr(sT0), sr(sT0), sr(sWV)))
    p("s_lshl_b32 %s, %s, 5" % (sr(sT0), sr(sT0)))
    p("s_lshl_b32 %s, %s, 2" % (sr(sT1), sr(sX)))
    p("s_add_u32 %s, %s, %s" % (sr(sT0), sr(sT0), sr(sT1)))
    p("s_add_u32 %s, %s, %s" % (sr(sT0), sr(sT0), sr(sRG)))
    p("s_lshl_b32 %s, %s, 9" % (sr(sT1), sr(sT0)))
    sadd(sT1, sT1, KVP + L * 0x80000)
    p("s_lshl_b32 %s, %s, 6" % (sr(sT2), sr(sT0)))
    sadd(sT2, sT2, ZP + L * 0x10000)
    p("v_cvt_pk_bf16_f32 %s, %s, %s" % (vr(T), vr(KV), vr(KV + 1)))
    p("v_cvt_pk_bf16_f32 %s, %s, %s" % (vr(T + 1), vr(KV + 2), vr(KV + 3)))
    p("v_min_u32 %s, -2, %s" % (vr(T), vr(T)))
    p("v_min_u32 %s, -2, %s" % (vr(T + 1), vr(T + 1)))
    p("buffer_store_dwordx2 %s, %s, %s, %s offen sc1" % (vr(T, 2), vr(vL8), sr(sWS, 4), sr(sT1)))
    for e in range(4):
        p("v_min_u32 %s, -2, %s" % (vr(Z + e), vr(Z + e)))
    p("s_mov_b32 exec_lo, 0x00010001")
    p("s_mov_b32 exec_hi, 0x00010001")
    p("buffer_store_dwordx4 %s, %s, %s, %s offen sc1" % (vr(Z, 4), vr(vZr), sr(sWS, 4), sr(sT2)))
    p("s_mov_b64 exec, -1")
    stamp("kvpub%d" % L)


def gemm_q(L):
    def rd(ks):
        for tt in range(4):
            p("ds_read_b128 %s, %s offset:%d" % (vr(GA + 16 * (ks & 1) + 4 * tt, 4), vr(S0 + 123), tt * 16384 + ks * 1024))

    p("v_add_u32 %s, 0x%x, %s" % (vr(S0 + 123), AB, vr(vL16)))
    for tt in range(4):
        p("ds_read_b32 %s, %s offset:%d" % (vr(GT + 2 * tt), vr(vTB2), 64 * tt))
        p("ds_read_b32 %s, %s offset:%d" % (vr(GT + 2 * tt + 1), vr(vTB2), 256 + 64 * tt))
    rd(0)
    for ks in range(16):
        if ks < 15:
            rd(ks + 1)
        for tt in range(4):
            B = vr(GA + 16 * (ks & 1) + 4 * tt, 4)
            d = vr(GQ + 4 * tt, 4)
            p("v_mfma_f32_16x16x32_bf16 %s, %s, %s, %s" % (d, ar(aWQ + 4 * ks, 4), B, "0" if ks == 0 else d))
    T = GA
    PQ = GA + 8
    sadd(sT0, sCLS, C_PQ + L * 0x40000)
    sadd(sT1, sT0, 32768)
    lines = []
    for tt in range(4):
        Rr, NM = GT + 2 * tt, GT + 2 * tt + 1
        q0 = GQ + 4 * tt
        for e in range(4):
            p("v_fma_f32 %s, %s, %s, %s" % (vr(T + e), vr(NM), vr(vCSQ + e), sr(sEPS6)))
        for e in range(4):
            p("v_fma_f32 %s, %s, %s, %s" % (vr(q0 + e), vr(q0 + e), vr(Rr), vr(T + e)))
        for e in range(4):
            p("v_mul_f32 %s, %s, %s" % (vr(T + e), sr(sLOG2E), vr(q0 + e)))
        for e in range(4):
            p("v_exp_f32_e64 %s, %s clamp" % (vr(T + e), vr(T + e)))
        for e in range(4):
            p("v_max_f32 %s, %s, %s" % (vr(q0 + e), sr(sEPS6), vr(q0 + e)))
        for e in (0, 2):
            p("v_pk_add_f32 %s, %s, %s" % (vr(q0 + e, 2), vr(q0 + e, 2), vr(T + e, 2)))
        for e in (0, 2):
            p("v_cvt_pk_bf16_f32 %s, %s, %s" % (vr(PQ + 2 * tt + e // 2), vr(q0 + e), vr(q0 + e + 1)))
        lines.append(
            "buffer_store_dwordx2 %s, %s, %s, %s offen offset:%d" % (vr(PQ + 2 * tt, 2), vr(vPQw), sr(sWS, 4), sr(sT0 if tt < 2 else sT1), 256 * (tt & 1))
        )
    local_stores(lines, "pqst")
    p("s_lshl_b32 %s, %s, 5" % (sr(sT0), sr(sRG)))
    p("s_lshl_b32 %s, %s, 2" % (sr(sT1), sr(sM)))
    p("s_add_u32 %s, %s, %s" % (sr(sT0), sr(sT0), sr(sT1)))
    p("s_add_u32 %s, %s, %s" % (sr(sT0), sr(sT0), sr(sWV)))
    p("s_lshl_b32 %s, %s, 3" % (sr(sT0), sr(sT0)))
    p("s_add_u32 %s, %s, %s" % (sr(sT0), sr(sT0), sr(sCLS)))
    sadd(sT0, sT0, C_FLAGPQ + L * 0x400)
    p.waitvm("pqst")
    flag_store(sT0)


OPQ = S0 + 8
OST = S0 + 40
OD = S0 + 72
OF = S0 + 104


def head_off(u):
    return (u & 3) * 1024 + (u >> 2) * 16384


def reduce_state(L):
    P = OST
    ZL = OST + 16
    D = OST + 24
    RC = OD
    T = OD + 12
    p("s_lshl_b32 %s, %s, 5" % (sr(sT0), sr(sJ)))
    p("s_lshl_b32 %s, %s, 6" % (sr(sT2), sr(sT0)))
    sadd(sT2, sT2, ZP + L * 0x10000)
    p("s_lshl_b32 %s, %s, 3" % (sr(sT1), sr(sWV)))
    p("s_add_u32 %s, %s, %s" % (sr(sT0), sr(sT0), sr(sT1)))
    p("s_lshl_b32 %s, %s, 9" % (sr(sT0), sr(sT0)))
    sadd(sT0, sT0, KVP + L * 0x80000)

    def issue():
        for u in range(8):
            p("buffer_load_dwordx2 %s, %s, %s, %s offen offset:%d sc1" % (vr(P + 2 * u, 2), vr(vL8), sr(sWS, 4), sr(sT0), 512 * u))

    poll(issue, lambda: check_sentinel(range(P, P + 16), T), 5)
    stamp("kvgot%d" % L)
    for u in range(4):
        p("v_mfma_f32_16x16x32_bf16 %s, %s, %s, %s" % (vr(D, 4), vr(vSEL, 4), vr(P + 4 * u, 4), "0" if u == 0 else vr(D, 4)))
    p("s_lshl_b32 %s, %s, 10" % (sr(sT1), sr(sWV)))
    sadd(sT1, sT1, RS)
    p("v_add_u32 %s, %s, %s" % (vr(T), sr(sT1), vr(vL16)))
    p("s_lshl_b32 %s, %s, 10" % (sr(sT3), sr(sJ)))
    p("s_add_u32 %s, %s, %s" % (sr(sT3), sr(sT3), sr(sCLS)))
    sadd(sT3, sT3, C_STATE + L * 0x8000)
    p("ds_write_b128 %s, %s" % (vr(T), vr(D, 4)))
    barrier()
    w1, done = p.newlabel("red1"), p.newlabel("reddone")
    p("s_cmp_eq_u32 %s, 1" % sr(sWV))
    p("s_cbranch_scc1 %s" % w1)
    p("s_cmp_lg_u32 %s, 0" % sr(sWV))
    p("s_cbranch_scc1 %s" % done)
    for u in range(3):
        p("ds_read_b128 %s, %s offset:%d" % (vr(RC + 4 * u, 4), vr(T), 1024 * (u + 1)))
    for e in (0, 2):
        p("v_pk_add_f32 %s, %s, %s" % (vr(D + e, 2), vr(D + e, 2), vr(RC + e, 2)))
        p("v_pk_add_f32 %s, %s, %s" % (vr(RC + 4 + e, 2), vr(RC + 4 + e, 2), vr(RC + 8 + e, 2)))
    for e in (0, 2):
        p("v_pk_add_f32 %s, %s, %s" % (vr(D + e, 2), vr(D + e, 2), vr(RC + 4 + e, 2)))
    p("v_cvt_pk_bf16_f32 %s, %s, %s" % (vr(D), vr(D), vr(D + 1)))
    p("v_cvt_pk_bf16_f32 %s, %s, %s" % (vr(D + 1), vr(D + 2), vr(D + 3)))
    p("v_min_u32 %s, -2, %s" % (vr(D), vr(D)))
    p("v_min_u32 %s, -2, %s" % (vr(D + 1), vr(D + 1)))
    local_stores(["buffer_store_dwordx2 %s, %s, %s, %s offen" % (vr(D, 2), vr(vSTATEw), sr(sWS, 4), sr(sT3))])
    p("s_branch %s" % done)
    p.label(w1)

    def issue_z():
        for u in range(2):
            p("buffer_load_dwordx4 %s, %s, %s, %s offen offset:%d sc1" % (vr(ZL + 4 * u, 4), vr(vZr), sr(sWS, 4), sr(sT2), 1024 * u))

    poll(issue_z, lambda: check_sentinel(range(ZL, ZL + 8), T), 6)
    for e in (0, 2):
        p("v_pk_add_f32 %s, %s, %s" % (vr(ZL + e, 2), vr(ZL + e, 2), vr(ZL + 4 + e, 2)))
    for sh in (8, 4, 2, 1):
        for e in range(4):
            p("v_add_f32_dpp %s, %s, %s row_ror:%d row_mask:0xf bank_mask:0xf" % (vr(ZL + e), vr(ZL + e), vr(ZL + e), sh))
    p("v_cvt_pk_bf16_f32 %s, %s, %s" % (vr(ZL), vr(ZL), vr(ZL + 1)))
    p("v_cvt_pk_bf16_f32 %s, %s, %s" % (vr(ZL + 1), vr(ZL + 2), vr(ZL + 3)))
    p("v_min_u32 %s, -2, %s" % (vr(ZL), vr(ZL)))
    p("v_min_u32 %s, -2, %s" % (vr(ZL + 1), vr(ZL + 1)))
    local_stores(["buffer_store_dwordx2 %s, %s, %s, %s offen offset:256" % (vr(ZL, 2), vr(vSTATEw), sr(sWS, 4), sr(sT3))])
    p.label(done)


def load_pq(L):
    F = OD
    p("s_lshl_b32 %s, %s, 8" % (sr(sT0), sr(sRG)))
    p("s_add_u32 %s, %s, %s" % (sr(sT0), sr(sT0), sr(sCLS)))
    sadd(sT0, sT0, C_FLAGPQ + L * 0x400)
    p("v_and_b32 %s, 0xff, %s" % (vr(F + 2), vr(vL8)))
    poll(
        lambda: p("buffer_load_dwordx2 %s, %s, %s, %s offen sc1" % (vr(F, 2), vr(F + 2), sr(sWS, 4), sr(sT0))),
        lambda: p("v_cmp_ne_u64 vcc, %s, %s" % (sr(sTAG, 2), vr(F, 2))),
        7,
    )
    p("s_lshl_b32 %s, %s, 15" % (sr(sT0), sr(sG32L)))
    p("s_lshl_b32 %s, %s, 12" % (sr(sT1), sr(sWV)))
    p("s_add_u32 %s, %s, %s" % (sr(sT0), sr(sT0), sr(sT1)))
    p("s_add_u32 %s, %s, %s" % (sr(sT0), sr(sT0), sr(sCLS)))
    sadd(sT0, sT0, C_PQ + L * 0x40000)
    sadd(sT1, sT0, 16384)
    for u in range(8):
        p("buffer_load_dwordx4 %s, %s, %s, %s offen offset:%d sc1" % (vr(OPQ + 4 * u, 4), vr(vL16), sr(sWS, 4), sr(sT0 if u < 4 else sT1), 1024 * (u & 3)))


def attn_out(L):
    T = OF + 12
    p("s_lshl_b32 %s, %s, 12" % (sr(sT2), sr(sWV)))
    p("s_add_u32 %s, %s, %s" % (sr(sT0), sr(sT2), sr(sCLS)))
    sadd(sT0, sT0, C_STATE + L * 0x8000)
    sadd(sT1, sT0, 16384)
    sadd(sT2, sT2, OB)
    p("v_add_u32 %s, %s, %s" % (vr(S0 + 122), sr(sT2), vr(vL16)))
    p("v_add_u32 %s, 0x%x, %s" % (vr(S0 + 123), OB, vr(vL16)))

    def issue():
        for u in range(8):
            p("buffer_load_dwordx4 %s, %s, %s, %s offen offset:%d sc1" % (vr(OST + 4 * u, 4), vr(vL16), sr(sWS, 4), sr(sT0 if u < 4 else sT1), 1024 * (u & 3)))

    poll(issue, lambda: check_sentinel([OST + 2 * n for n in range(16)], T), 8)
    stamp("stgot%d" % L)

    def mm(u):
        p("v_mfma_f32_32x32x16_bf16 %s, %s, %s, 0" % (vr(OD + 16 * (u & 1), 16), vr(OST + 4 * u, 4), vr(OPQ + 4 * u, 4)))

    def fin(u):
        d = OD + 16 * (u & 1)
        of = OF + 4 * (u & 1)
        p("v_add_f32 %s, %s, %s" % (vr(d + 8), sr(sEPS6), vr(d + 8)))
        p("v_rcp_f32 %s, %s" % (vr(d + 8), vr(d + 8)))
        for e in range(0, 8, 2):
            p("v_pk_mul_f32 %s, %s, %s op_sel_hi:[1,0]" % (vr(d + e, 2), vr(d + e, 2), vr(d + 8, 2)))
        for e in range(4):
            p("v_cvt_pk_bf16_f32 %s, %s, %s" % (vr(of + e), vr(d + 2 * e), vr(d + 2 * e + 1)))
        p("ds_write_b128 %s, %s offset:%d" % (vr(S0 + 122), vr(of, 4), head_off(u)))

    def wreg(h):
        return ar(aWOA + 4 * h, 4) if h < 16 else vr(vWOB + 4 * (h - 16), 4)

    def breg(h):
        return (OST + 4 * (h % 4)) if (h // 4) % 2 == 0 else (OPQ + 4 * (h % 4))

    def rdb(h):
        p("ds_read_b128 %s, %s offset:%d" % (vr(breg(h), 4), vr(S0 + 123), 1024 * h))

    def wm(h):
        p("v_mfma_f32_32x32x16_bf16 %s, %s, %s, %s" % (vr(vX, 16), wreg(h), vr(breg(h), 4), vr(vX, 16)))

    mm(0)
    for u in range(4):
        mm(u + 1)
        fin(u)
    barrier()
    for h in range(8):
        rdb(h)
    for u in range(4, 8):
        if u < 7:
            mm(u + 1)
        for h in range(4 * (u - 4), 4 * (u - 4) + 4):
            wm(h)
            if h + 8 < 16:
                rdb(h + 8)
        fin(u)
    barrier()
    for h in range(16, 24):
        rdb(h)
    for h in range(16, 32):
        wm(h)
        if h + 8 < 32:
            rdb(h + 8)
    stamp("wo%d" % L)


def stats_hop():
    stats_compute(S0 + 8, S0 + 10)
    sadd(sT0, sCLS, st_off(2))
    local_stores(["buffer_store_dword %s, %s, %s, %s offen" % (vr(S0 + 8), vr(vSTw), sr(sWS, 4), sr(sT0))])
    p("s_lshl_b32 %s, %s, 12" % (sr(sT1), sr(sG32L)))
    p("s_add_u32 %s, %s, %s" % (sr(sT1), sr(sT1), sr(sT0)))
    B = S0 + 12
    poll(lambda: stats_issue(B, sT1), lambda: check_sentinel(range(B, B + 16), S0 + 28), 9)
    stats_finish(B, S0 + 28, S0 + 30)
    normalise(S0 + 28, S0 + 30)
    stamp("stats2")


def main():
    prologue()
    p0_issue()
    clears()
    dmaw_address()
    stage_w(1, R1, "wk")
    addresses()
    lds_zero()
    ut_address()
    stamp("issued")
    p0_compute()
    sadd(sT0, sCLS, C_UTA)
    ut_store(sT0, "")
    stamp("p0")
    p("s_add_u32 %s, %s, 16" % (sr(sTAG), sr(sTAG)))
    p("s_addc_u32 %s, %s, 0" % (sr(sTAG + 1), sr(sTAG + 1)))
    p("v_mov_b32 %s, %s" % (vr(vTAG), sr(sTAG)))
    p("v_mov_b32 %s, %s" % (vr(vTAG + 1), sr(sTAG + 1)))
    h_copies()
    for e in range(8):
        unpack(vX + 2 * e, X0 + e)
    stats_compute(VF, KF)
    p.waitvm()
    barrier()
    skip = p.newlabel("fa")
    p("s_cmp_lg_u32 %s, 0" % sr(sWV))
    p("s_cbranch_scc1 %s" % skip)
    p("s_add_u32 %s, %s, %s" % (sr(sP), sr(sTAG), sr(sXCC)))
    p("s_addc_u32 %s, %s, 0" % (sr(sP + 1), sr(sTAG + 1)))
    p("v_mov_b32 %s, %s" % (vr(KF), sr(sP)))
    p("v_mov_b32 %s, %s" % (vr(KF + 1), sr(sP + 1)))
    p("s_lshl_b32 %s, %s, 3" % (sr(sT0), sr(sJ)))
    p("s_add_u32 %s, %s, %s" % (sr(sT0), sr(sT0), sr(sCLS)))
    sadd(sT0, sT0, C_FLAGA)
    p("s_mov_b64 exec, 1")
    p("buffer_store_dwordx2 %s, off, %s, %s" % (vr(KF, 2), sr(sWS, 4), sr(sT0)))
    p("s_mov_b64 exec, -1")
    p.label(skip)
    stamp("flagA")
    sadd(sT0, sCLS, st_off(0))
    p("buffer_store_dword %s, %s, %s, %s offen sc1" % (vr(VF), vr(vSTw), sr(sWS, 4), sr(sT0)))
    afrag_preload()
    unstage_w(R1, aWK)
    handoff_ut()
    stamp("utflag")
    conv_addresses()
    p.waitvm()
    barrier()
    skip = p.newlabel("hello")
    p("s_cmp_lg_u32 %s, 1" % sr(sWV))
    p("s_cbranch_scc1 %s" % skip)
    p("s_lshl_b32 %s, s2, 3" % sr(sT0))
    sadd(sT0, sT0, HELLO)
    flag_store(sT0, local=False)
    p.label(skip)
    stamp("convstart")
    conv(lambda: stage_w(2, R2, "wv"))
    stamp("convdone")
    p.waitvm("wv")
    barrier()
    stage_w(0, R1, "wq")
    unstage_prep(R2, vTrW)
    unstage_w(R2, aWV)
    hello_check()
    stamp("hello")
    p("s_lshl_b32 %s, %s, 12" % (sr(sT1), sr(sG32L)))
    p("s_add_u32 %s, %s, %s" % (sr(sT1), sr(sT1), sr(sCLS)))
    sadd(sT1, sT1, st_off(0))
    stats_issue(S0 + 12, sT1)
    colsum(aWK, vCSK, False)
    colsum(aWV, vCSV, False)
    stats_finish(S0 + 12, S0 + 28, S0 + 30)
    normalise(S0 + 28, S0 + 30)
    YR = S0 + 8
    stamp("ypoll")

    def issue_y():
        p("s_mov_b32 %s, 0x%x" % (sr(sT0), YB))
        for u in range(8):
            p("buffer_load_dword %s, %s, %s, %s offen sc1" % (vr(YR + u), vr(vYa), sr(sWS, 4), sr(sT0)))
            if u < 7:
                sadd(sT0, sT0, 8192)

    poll(issue_y, lambda: check_sentinel(range(YR, YR + 8), S0 + 16), 2)
    stamp("ygot")
    for u in range(8):
        unpack(vY + 2 * u, YR + u)
    for L in range(2):
        gate_and_publish(L)
        stamp("xpub%d" % L)
        if L == 0:
            barrier()
            unstage_w(R1, aWQ)
            colsum(aWQ, vCSQ, True)
        else:
            barrier()
        gemm_kv(L)
        if L == 0:
            p.waitvm("wo")
            barrier()
            unstage_wo(R1, "a", aWOA)
            barrier()
            stage_wo(1, R1, "wo")
        gemm_q(L)
        if L == 0:
            p.waitvm("wo")
            barrier()
            unstage_wo(R1, "v", vWOB)
        stamp("qdone%d" % L)
        load_pq(L)
        reduce_state(L)
        stamp("stpub%d" % L)
        attn_out(L)
        if L == 0:
            stats_hop()
    XP = S0 + 8
    for e in range(8):
        p("v_cvt_pk_bf16_f32 %s, %s, %s" % (vr(XP + e), vr(vX + 2 * e), vr(vX + 2 * e + 1)))
    p("buffer_store_dwordx4 %s, %s, %s, 0 offen" % (vr(XP, 4), vr(vXrow), sr(sOUT, 4)))
    p("buffer_store_dwordx4 %s, %s, %s, 0 offen offset:16" % (vr(XP + 4, 4), vr(vXrow), sr(sOUT, 4)))
    skip = p.newlabel("epoch")
    p("s_or_b32 %s, s2, %s" % (sr(sT0), sr(sWV)))
    p("s_cmp_lg_u32 %s, 0" % sr(sT0))
    p("s_cbranch_scc1 %s" % skip)
    p("s_mov_b32 %s, %d" % (sr(sT0), EPOCH))
    flag_store(sT0, local=False)
    p.label(skip)
    if PROFILE:
        p.waitvm()
        stamp("end")
        p("v_writelane_b32 %s, %s, 63" % (vr(vPROF), sr(sERR)))
        p("v_writelane_b32 %s, %s, 62" % (vr(vPROF), sr(sMODE)))
        p("v_writelane_b32 %s, %s, 61" % (vr(vPROF), sr(sXCC)))
        p("s_lshl_b32 %s, s2, 10" % sr(sT0))
        sadd(sT0, sT0, PROF)
        p("v_lshlrev_b32 %s, 2, v0" % vr(S0))
        p("buffer_store_dword %s, %s, %s, %s offen" % (vr(vPROF), vr(S0), sr(sWS, 4), sr(sT0)))
    p("s_endpgm")
    i = 0
    while i < len(tail):
        tail[i]()
        i += 1
    p.label("L_exit")
    p("s_endpgm")


main()

HEAD = open("cdna_kernels/%s.s.ref" % NAME).read().split("; Override launch geometry")[0]
body = p.text()
src = (
    HEAD
    + "; One persistent launch, one workgroup per CU; generated by a script (phases hand data over through d_ws).\n"
    + "; @launch grid=(256,1,1) block=(256,1,1) lds=%d\n" % LDS_BYTES
    + """.amdgcn_target "amdgcn-amd-amdhsa--gfx950"
.text
.globl {n}_kernel
.p2align 8
.type {n}_kernel,@function
{n}_kernel:
""".format(n=NAME)
    + body
    + """.section .rodata,"a"
.p2align 6
.amdhsa_kernel {n}_kernel
  .amdhsa_next_free_vgpr 512
  .amdhsa_next_free_sgpr 102
  .amdhsa_accum_offset 256
  .amdhsa_group_segment_fixed_size 0
  .amdhsa_kernarg_size 96
  .amdhsa_user_sgpr_count 2
  .amdhsa_user_sgpr_kernarg_segment_ptr 1
  .amdhsa_system_sgpr_workgroup_id_x 1
  .amdhsa_float_denorm_mode_32 3
.end_amdhsa_kernel
""".format(n=NAME)
)
open(OUT, "w").write(src)
if PROFILE:
    open(OUT + ".stamps", "w").write("\n".join(stamps))
print("wrote", OUT, "instructions:", sum(1 for l in body.split("\n") if l.startswith("    ") and not l.strip().startswith(";")))
```

```python
import sys
from asmlib import Prog, vr, ar, sr

NAME = "interleave_layers__ssm_conv_h3__linear_attn_block__prompt"
PROFILE = "--prof" in sys.argv
FORCE_SLOW = "--slow" in sys.argv
SPIN = [a.split("=")[1] for a in sys.argv if a.startswith("--spin=")]
SPIN = SPIN[0] if SPIN else None
OUT = [a for a in sys.argv[1:] if not a.startswith("--")]
OUT = OUT[0] if OUT else "cdna_kernels/%s.s" % NAME

EPOCH = 0
HELLO = 0x1000
FLAGB = 0x2000
KVP = 0x80000
ZP = 0x180000
YB = 0x200000
UTB = 0x400000
CLS = 0x600000
C_UTA = 0
C_X = 0x40000
C_PQ = 0xC0000
C_STATE = 0x140000
C_ST = 0x150000
C_FLAGA = 0x170000
C_FLAGX = 0x171000
C_FLAGPQ = 0x172000
PROF = 0x1800000
WS_BYTES = 0x2000000


def st_off(n):
    return C_ST + ((n + 3) % 4) * 0x8000


R1, R2, R3 = 0, 65536, 131072
HB = R2
HCOPY, HCH = 4160, 16640
UB = R3
UCH = 4608
TB = R3 + 9216
RS = R3 + 9728
EX = R1
AB = R2
OB = R2
LDS_BYTES = 163840

sQ, sK, sV, sH, sW, sWO, sWS, sOUT, sSH = 4, 8, 12, 16, 20, 24, 28, 32, 36
sD = 40
sTAG = 42
sX, sJ, sWV, sXCC, sMODE, sLIM, sCNT = 44, 45, 46, 47, 48, 49, 50
sCLS = 51
sT0, sT1, sT2, sT3 = 52, 53, 54, 55
sP = 56
sC4096, sMASK = 58, 59
sDV = 60
sG32L, sKS, sRG, sM = 61, 62, 63, 64
sEPS6, sLOG2E, sEPS5, sINV512 = 65, 66, 67, 68
sTS = 70
sERR = 72
sUSRC = 73

vL16, vL8, vXrow, vYa, vSTw, vSTr, vXw, vPQw, vSTATEw = 1, 2, 3, 4, 5, 6, 7, 8, 9
vTrW, vTrO, vDmaW, vDmaO, vTB1, vTB2, vZr, vTBw = 10, 11, 12, 13, 14, 15, 16, 17
vTAG = 18
vSEL, vONE = 20, 24
vCSK, vCSV, vCSQ = 28, 29, 30
vX, vY = 34, 50
vPROF = 66
S0 = 68
vWOB = 192
aWK, aWV, aWQ, aWOA = 0, 64, 128, 192
aH = 128

p = Prog()
tail = []
stamps = []


def stamp(name):
    if SPIN == name:
        p("s_memrealtime s[74:75]")
        p("s_waitcnt lgkmcnt(0)")
    if not PROFILE:
        return
    n = len(stamps)
    stamps.append(name)
    p("s_memrealtime %s" % sr(sTS, 2))
    p("s_waitcnt lgkmcnt(0)")
    p("v_writelane_b32 %s, %s, %d" % (vr(vPROF), sr(sTS), n))


def srd(base, nbytes):
    p("s_mov_b32 %s, %d" % (sr(base + 2), nbytes))
    p("s_mov_b32 %s, 0x20000" % sr(base + 3))


def sadd(dst, src, imm):
    p("s_add_u32 %s, %s, 0x%x" % (sr(dst), sr(src), imm))


def local_stores(lines, tag=None):
    slow, join = p.newlabel("slowst"), p.newlabel("joinst")
    p("s_cmp_eq_u32 %s, 0" % sr(sMODE))
    p("s_cbranch_scc1 %s" % slow)
    for l in lines:
        p(l, tag)
    p.label(join)

    def blk():
        p.label(slow)
        for l in lines:
            p(l + " sc1", tag)
        p("s_branch %s" % join)

    tail.append(blk)


def poll(issue, check, code):
    top, done = p.newlabel("poll"), p.newlabel("polldone")
    p("s_mov_b32 %s, %s" % (sr(sCNT), sr(sLIM)))
    p.label(top)
    issue()
    check()
    p("s_cbranch_vccz %s" % done)
    p("s_sub_u32 %s, %s, 1" % (sr(sCNT), sr(sCNT)))
    p("s_cbranch_scc0 %s" % top)
    p("s_mov_b32 %s, 0" % sr(sLIM))
    p("s_or_b32 %s, %s, %d" % (sr(sERR), sr(sERR), 1 << code))
    p.label(done)


def check_sentinel(regs, tmp):
    regs = list(regs)
    if len(regs) == 1:
        p("v_cmp_eq_u32 vcc, -1, %s" % vr(regs[0]))
        return
    first = True
    i = 0
    while i < len(regs):
        if first:
            if len(regs) >= 3:
                p("v_max3_u32 %s, %s, %s, %s" % (vr(tmp), vr(regs[0]), vr(regs[1]), vr(regs[2])))
                i = 3
            else:
                p("v_max_u32 %s, %s, %s" % (vr(tmp), vr(regs[0]), vr(regs[1])))
                i = 2
            first = False
        elif i + 1 < len(regs):
            p("v_max3_u32 %s, %s, %s, %s" % (vr(tmp), vr(tmp), vr(regs[i]), vr(regs[i + 1])))
            i += 2
        else:
            p("v_max_u32 %s, %s, %s" % (vr(tmp), vr(tmp), vr(regs[i])))
            i += 1
    p("v_cmp_eq_u32 vcc, -1, %s" % vr(tmp))


def unpack(dst, src):
    p("v_lshlrev_b32 %s, 16, %s" % (vr(dst), vr(src)))
    p("v_and_b32 %s, %s, %s" % (vr(dst + 1), sr(sMASK), vr(src)))


def flag_store(soff_sgpr, local=True, tagreg=vTAG):
    p("s_mov_b64 exec, 1")
    line = "buffer_store_dwordx2 %s, off, %s, %s" % (vr(tagreg, 2), sr(sWS, 4), sr(soff_sgpr))
    if local:
        local_stores([line])
    else:
        p(line + " sc1")
    p("s_mov_b64 exec, -1")


def barrier():
    p.waitlg()
    p("s_barrier")


def stage_w(part, region, tag):
    p("s_lshl_b32 %s, %s, 14" % (sr(sT0), sr(sWV)))
    p("s_add_u32 m0, %s, %d" % (sr(sT0), region))
    p("s_mul_i32 %s, %s, %d" % (sr(sT1), sr(sWV), 128 * 3072))
    p("s_lshl_b32 %s, %s, 7" % (sr(sT2), sr(sM)))
    p("s_add_u32 %s, %s, %s" % (sr(sT1), sr(sT1), sr(sT2)))
    sadd(sT1, sT1, part * 1024)
    for n in range(16):
        va = vDmaW if n % 2 == 0 else S0 + 122
        if n == 0:
            p("v_xor_b32 %s, 64, %s" % (vr(S0 + 122), vr(vDmaW)))
        p("buffer_load_dwordx4 %s, %s, %s offen lds" % (vr(va), sr(sW, 4), sr(sT1)), tag)
        if n < 15:
            p("s_add_u32 m0, m0, 1024")
            sadd(sT1, sT1, 8 * 3072)


def unstage_w(region, a0):
    for ks in range(16):
        for h in range(2):
            off = region + ks * 4096 + h * 512
            p("ds_read_b64_tr_b16 %s, %s offset:%d" % (ar(a0 + 4 * ks + 2 * h, 2), vr(vTrW if off < 65536 else S0 + 123), off & 0xFFFF))


def unstage_prep(region, reg):
    if region >= 65536:
        p("v_add_u32 %s, 0x10000, %s" % (vr(S0 + 123), vr(reg)))


def stage_wo(half, region, tag):
    p("s_lshl_b32 %s, %s, 14" % (sr(sT0), sr(sWV)))
    p("s_add_u32 m0, %s, %d" % (sr(sT0), region))
    p("s_lshl_b32 %s, %s, 16" % (sr(sT1), sr(sWV)))
    p("s_and_b32 %s, %s, 3" % (sr(sT2), sr(sJ)))
    p("s_lshl_b32 %s, %s, 8" % (sr(sT2), sr(sT2)))
    p("s_add_u32 %s, %s, %s" % (sr(sT1), sr(sT1), sr(sT2)))
    sadd(sT1, sT1, half * 256 * 1024)
    for n in range(16):
        p("buffer_load_dwordx4 %s, %s, %s offen lds" % (vr(vDmaO), sr(sWO, 4), sr(sT1)), tag)
        if n < 15:
            p("s_add_u32 m0, m0, 1024")
            sadd(sT1, sT1, 4096)


def unstage_wo(region, f, r0):
    assert region == 0
    for hd in range(16):
        for g in range(2):
            off = region + hd * 4096 + g * 2048
            p("ds_read_b64_tr_b16 %s, %s offset:%d" % (vr(r0 + 4 * hd + 2 * g, 2, f), vr(vTrO), off))


def stats_compute(a, b):
    t = b
    p("v_pk_mul_f32 %s, %s, %s" % (vr(t + 2, 2), vr(vX, 2), vr(vX, 2)))
    p("v_pk_add_f32 %s, %s, %s" % (vr(t, 2), vr(vX, 2), vr(vX + 2, 2)))
    for e in range(2, 16, 2):
        p("v_pk_fma_f32 %s, %s, %s, %s" % (vr(t + 2, 2), vr(vX + e, 2), vr(vX + e, 2), vr(t + 2, 2)))
        if e >= 4:
            p("v_pk_add_f32 %s, %s, %s" % (vr(t, 2), vr(t, 2), vr(vX + e, 2)))
    p("v_add_f32 %s, %s, %s" % (vr(t), vr(t), vr(t + 1)))
    p("v_add_f32 %s, %s, %s" % (vr(t + 2), vr(t + 2), vr(t + 3)))
    p("v_permlane32_swap_b32 %s, %s" % (vr(t), vr(t + 2)))
    p("v_add_f32 %s, %s, %s" % (vr(a), vr(t), vr(t + 2)))
    p("v_min_u32 %s, -2, %s" % (vr(a), vr(a)))


def stats_issue(buf, soff):
    for u in range(4):
        p("buffer_load_dwordx4 %s, %s, %s, %s offen offset:%d sc1" % (vr(buf + 4 * u, 4), vr(vSTr), sr(sWS, 4), sr(soff), 512 * u))


def stats_finish(buf, vR, vNM):
    for u in (0, 8):
        p("v_pk_add_f32 %s, %s, %s" % (vr(buf + u, 2), vr(buf + u, 2), vr(buf + u + 2, 2)))
        p("v_pk_add_f32 %s, %s, %s" % (vr(buf + u + 4, 2), vr(buf + u + 4, 2), vr(buf + u + 6, 2)))
    p("v_pk_add_f32 %s, %s, %s" % (vr(buf, 2), vr(buf, 2), vr(buf + 4, 2)))
    p("v_pk_add_f32 %s, %s, %s" % (vr(buf + 8, 2), vr(buf + 8, 2), vr(buf + 12, 2)))
    p("v_pk_add_f32 %s, %s, %s" % (vr(buf, 2), vr(buf, 2), vr(buf + 8, 2)))
    p("v_permlane32_swap_b32 %s, %s" % (vr(buf), vr(buf + 1)))
    p("v_add_f32 %s, %s, %s" % (vr(buf), vr(buf), vr(buf + 1)))
    p("v_mul_f32 %s, %s, %s" % (vr(buf), sr(sINV512), vr(buf)))
    p("v_mov_b32 %s, %s" % (vr(buf + 1), vr(buf)))
    p("v_permlane32_swap_b32 %s, %s" % (vr(buf), vr(buf + 1)))
    p("v_fma_f32 %s, -%s, %s, %s" % (vr(buf + 1), vr(buf), vr(buf), vr(buf + 1)))
    p("v_max_f32 %s, 0, %s" % (vr(buf + 1), vr(buf + 1)))
    p("v_add_f32 %s, %s, %s" % (vr(buf + 1), sr(sEPS5), vr(buf + 1)))
    p("v_rsq_f32 %s, %s" % (vr(vR), vr(buf + 1)))
    p("v_mul_f32 %s, -%s, %s" % (vr(vNM), vr(buf), vr(vR)))


def prologue():
    p("s_cmp_ge_u32 s2, 256")
    p("s_cbranch_scc1 L_exit")
    kern = NAME + "_kernel"
    if SPIN == "entry":
        p("s_memrealtime s[74:75]")
    for base, off in ((sK, 8), (sV, 16), (sWS, 88), (sSH, 24), (sH, 32), (sQ, 0), (sD, 40), (sW, 56), (sWO, 64), (sOUT, 72)):
        p("s_load_dwordx2 %s, s[0:1], %d" % (sr(base, 2), off))
    p("s_getpc_b64 %s" % sr(sP, 2))
    p("s_and_b32 %s, %s, 0xffffff00" % (sr(sP), sr(sP)))
    p("v_lshlrev_b32 %s, 7, v0" % vr(S0))
    p("v_min_u32 %s, L_exit-%s, %s" % (vr(S0), kern, vr(S0)))
    p("global_load_dword %s, %s, %s" % (vr(S0 + 1), vr(S0), sr(sP, 2)))
    if PROFILE:
        p("v_mov_b32 %s, 0" % vr(vPROF))
    p("s_and_b32 %s, s2, 7" % sr(sX))
    p("s_lshr_b32 %s, s2, 3" % sr(sJ))
    p("v_lshrrev_b32 %s, 6, v0" % vr(S0 + 2))
    p("v_and_b32 %s, 63, v0" % vr(S0 + 3))
    p("v_readfirstlane_b32 %s, %s" % (sr(sWV), vr(S0 + 2)))
    srd(sK, 2097152)
    srd(sV, 2097152)
    srd(sWS, WS_BYTES)
    srd(sSH, 4096)
    srd(sH, 2097152)
    srd(sQ, 2097152)
    srd(sW, 1572864)
    srd(sWO, 524288)
    srd(sOUT, 2097152)
    p("s_mov_b32 %s, 4096" % sr(sC4096))
    p("s_mov_b32 %s, 0xffff0000" % sr(sMASK))
    p("s_getreg_b32 %s, hwreg(HW_REG_XCC_ID, 0, 4)" % sr(sXCC))
    p("s_lshl_b32 %s, %s, 21" % (sr(sCLS), sr(sX)))
    sadd(sCLS, sCLS, CLS)
    p("s_mov_b32 %s, 200000" % sr(sLIM))
    p("s_mov_b32 %s, 0" % sr(sERR))
    p("s_mov_b32 %s, 0x358637bd" % sr(sEPS6))
    p("s_mov_b32 %s, 0x3fb8aa3b" % sr(sLOG2E))
    p("s_mov_b32 %s, 0x3727c5ac" % sr(sEPS5))
    p("s_mov_b32 %s, 0x3b000000" % sr(sINV512))
    p("s_lshr_b32 %s, %s, 2" % (sr(sG32L), sr(sJ)))
    p("s_and_b32 %s, %s, 3" % (sr(sKS), sr(sJ)))
    p("s_lshl_b32 %s, %s, 2" % (sr(sKS), sr(sKS)))
    p("s_add_u32 %s, %s, %s" % (sr(sKS), sr(sKS), sr(sWV)))
    p("s_lshr_b32 %s, %s, 3" % (sr(sRG), sr(sJ)))
    p("s_and_b32 %s, %s, 7" % (sr(sM), sr(sJ)))


vLANE = S0 + 3
vKA, vKB, vUT, vT = S0 + 4, S0 + 5, S0 + 6, S0 + 7
KK = S0 + 8
VV = S0 + 20
SH = S0 + 28
HE = S0 + 32
X0 = S0 + 44
KF = S0 + 52
WF = S0 + 74
UF = S0 + 82
UP = S0 + 98
VF = S0 + 106
FF = S0 + 112
vHA, vHB, vCL = S0 + 116, S0 + 117, S0 + 118


def p0_issue():
    l = vr(vLANE)
    t = vr(vT)
    p("s_lshl_b32 %s, %s, 7" % (sr(sT0), sr(sX)))
    p("s_lshl_b32 %s, %s, 5" % (sr(sT1), sr(sWV)))
    p("s_add_u32 %s, %s, %s" % (sr(sT0), sr(sT0), sr(sT1)))
    p("s_lshl_b32 %s, %s, 16" % (sr(sT1), sr(sJ)))
    p("s_add_u32 %s, %s, %s" % (sr(sT1), sr(sT1), sr(sT0)))
    p("v_and_b32 %s, 7, %s" % (t, l))
    p("v_lshrrev_b32 %s, 3, %s" % (vr(vKA), l))
    p("v_lshlrev_b32 %s, 13, %s" % (vr(vKA), vr(vKA)))
    p("v_lshl_add_u32 %s, %s, 2, %s" % (vr(vKB), t, vr(vKA)))
    p("v_add_u32 %s, %s, %s" % (vr(vKB), sr(sT1), vr(vKB)))
    p("v_add_u32 %s, 0xfffff400, %s" % (vr(vKA), vr(vKB)))
    p("v_lshlrev_b32 %s, 4, %s" % (vr(vUT), t))
    p("s_lshl_b32 %s, %s, 2" % (sr(sT2), sr(sT0)))
    p.waitlg()
    stamp("kernarg")
    p("s_load_dwordx2 %s, %s, %d" % (sr(sTAG, 2), sr(sWS, 2), EPOCH))
    for r in range(3):
        p("buffer_load_dword %s, %s, %s, 0 offen offset:%d" % (vr(KK + r), vr(vKA), sr(sK, 4), 1024 * r))
    for r in range(8):
        so = "0" if r < 4 else sr(sC4096)
        p("buffer_load_dword %s, %s, %s, %s offen offset:%d" % (vr(KK + 3 + r), vr(vKB), sr(sK, 4), so, 1024 * (r % 4)))
    p("buffer_load_dwordx4 %s, %s, %s, %s offen" % (vr(SH, 4), vr(vUT), sr(sSH, 4), sr(sT2)))
    for r in range(8):
        so = "0" if r < 4 else sr(sC4096)
        p("buffer_load_dword %s, %s, %s, %s offen offset:%d" % (vr(VV + r), vr(vKB), sr(sV, 4), so, 1024 * (r % 4)))
    p("s_lshl_b32 %s, %s, 5" % (sr(sT0), sr(sX)))
    p("s_add_u32 %s, %s, %s" % (sr(sT0), sr(sT0), sr(sJ)))
    p("s_lshl_b32 %s, %s, 2" % (sr(sT1), sr(sT0)))
    p("s_add_u32 %s, %s, %s" % (sr(sD), sr(sD), sr(sT1)))
    p("s_addc_u32 %s, %s, 0" % (sr(sD + 1), sr(sD + 1)))
    p("s_load_dword %s, %s, 0" % (sr(sDV), sr(sD, 2)))
    p("s_lshl_b32 %s, %s, 13" % (sr(sT0), sr(sT0)))
    p("v_lshlrev_b32 %s, 5, v0" % vr(vHA))
    p("v_add_u32 %s, %s, %s" % (vr(vHA), sr(sT0), vr(vHA)))
    p("v_add_u32 %s, -8, %s" % (vr(vHB), vr(vHA)))
    p("buffer_load_dwordx2 %s, %s, %s, 0 offen" % (vr(HE, 2), vr(vHB), sr(sH, 4)))
    p("buffer_load_dwordx4 %s, %s, %s, 0 offen" % (vr(HE + 2, 4), vr(vHA), sr(sH, 4)))
    p("buffer_load_dwordx4 %s, %s, %s, 0 offen offset:16" % (vr(HE + 6, 4), vr(vHA), sr(sH, 4)))
    p("s_lshl_b32 %s, %s, 18" % (sr(sT0), sr(sX)))
    p("s_lshl_b32 %s, %s, 15" % (sr(sT1), sr(sG32L)))
    p("s_add_u32 %s, %s, %s" % (sr(sT0), sr(sT0), sr(sT1)))
    p("s_lshl_b32 %s, %s, 6" % (sr(sT1), sr(sKS)))
    p("s_add_u32 %s, %s, %s" % (sr(sT0), sr(sT0), sr(sT1)))
    p("v_and_b32 %s, 31, %s" % (t, l))
    p("v_lshlrev_b32 %s, 10, %s" % (vr(vXrow), t))
    p("v_and_b32 %s, 32, %s" % (t, l))
    p("v_add3_u32 %s, %s, %s, %s" % (vr(vXrow), vr(vXrow), t, sr(sT0)))
    p("buffer_load_dwordx4 %s, %s, %s, 0 offen" % (vr(X0, 4), vr(vXrow), sr(sQ, 4)))
    p("buffer_load_dwordx4 %s, %s, %s, 0 offen offset:16" % (vr(X0 + 4, 4), vr(vXrow), sr(sQ, 4)))


def clears():
    for r in range(4):
        p("v_mov_b32 %s, -1" % vr(FF + r))
    p("v_lshlrev_b32 %s, 4, v0" % vr(vCL))
    st = "buffer_store_dwordx4 %s, %s, %s, %%s offen sc1" % (vr(FF, 4), vr(vCL), sr(sWS, 4))
    p("s_lshl_b32 %s, %s, 5" % (sr(sT0), sr(sX)))
    p("s_add_u32 %s, %s, %s" % (sr(sT0), sr(sT0), sr(sJ)))
    p("s_lshl_b32 %s, %s, 13" % (sr(sT0), sr(sT0)))
    sadd(sT0, sT0, YB)
    p(st % sr(sT0))
    sadd(sT0, sT0, 4096)
    p(st % sr(sT0))
    p("s_mul_i32 %s, s2, 4608" % sr(sT0))
    sadd(sT0, sT0, KVP)
    p(st % sr(sT0))
    p("s_mul_i32 %s, %s, 5120" % (sr(sT1), sr(sJ)))
    p("s_add_u32 %s, %s, %s" % (sr(sT1), sr(sT1), sr(sCLS)))
    sadd(sT1, sT1, C_STATE)
    p(st % sr(sT1))
    skip = p.newlabel("clr")
    p("s_cmp_lg_u32 %s, 0" % sr(sWV))
    p("s_cbranch_scc1 %s" % skip)
    sadd(sT1, sT1, 4096)
    p(st % sr(sT1))
    sadd(sT0, sT0, 4096)
    p("s_mov_b32 exec_hi, 0")
    p(st % sr(sT0))
    p("s_mov_b64 exec, -1")
    p.label(skip)


def addresses():
    l = vr(vLANE)
    t, t2, t3 = vr(vT), vr(VF), vr(VF + 1)
    p("v_lshlrev_b32 %s, 4, %s" % (vr(vL16), l))
    p("v_lshlrev_b32 %s, 3, %s" % (vr(vL8), l))
    p("s_lshl_b32 %s, %s, 17" % (sr(sT0), sr(sKS)))
    p("s_lshl_b32 %s, %s, 10" % (sr(sT1), sr(sX)))
    p("s_add_u32 %s, %s, %s" % (sr(sT0), sr(sT0), sr(sT1)))
    p("s_lshl_b32 %s, %s, 7" % (sr(sT1), sr(sG32L)))
    p("s_add_u32 %s, %s, %s" % (sr(sT0), sr(sT0), sr(sT1)))
    p("v_and_b32 %s, 31, %s" % (t, l))
    p("v_lshrrev_b32 %s, 5, %s" % (t2, l))
    p("v_lshlrev_b32 %s, 16, %s" % (t3, t2))
    p("v_lshl_add_u32 %s, %s, 2, %s" % (vr(vYa), t, t3))
    p("v_add_u32 %s, %s, %s" % (vr(vYa), sr(sT0), vr(vYa)))
    p("s_lshl_b32 %s, %s, 12" % (sr(sT0), sr(sG32L)))
    p("s_lshr_b32 %s, %s, 1" % (sr(sT1), sr(sKS)))
    p("s_lshl_b32 %s, %s, 9" % (sr(sT1), sr(sT1)))
    p("s_add_u32 %s, %s, %s" % (sr(sT0), sr(sT0), sr(sT1)))
    p("s_and_b32 %s, %s, 1" % (sr(sT1), sr(sKS)))
    p("s_lshl_b32 %s, %s, 3" % (sr(sT1), sr(sT1)))
    p("s_add_u32 %s, %s, %s" % (sr(sT0), sr(sT0), sr(sT1)))
    p("v_lshlrev_b32 %s, 2, %s" % (t3, t2))
    p("v_lshl_add_u32 %s, %s, 4, %s" % (vr(vSTw), t, t3))
    p("v_add_u32 %s, %s, %s" % (vr(vSTw), sr(sT0), vr(vSTw)))
    p("v_lshlrev_b32 %s, 11, %s" % (t3, t2))
    p("v_lshl_add_u32 %s, %s, 4, %s" % (vr(vSTr), t, t3))
    p("s_and_b32 %s, %s, 1" % (sr(sT0), sr(sWV)))
    p("s_lshl_b32 %s, %s, 7" % (sr(sT0), sr(sT0)))
    sadd(sT0, sT0, TB)
    p("v_lshlrev_b32 %s, 8, %s" % (t3, t2))
    p("v_lshl_add_u32 %s, %s, 2, %s" % (vr(vTBw), t, t3))
    p("v_add_u32 %s, %s, %s" % (vr(vTBw), sr(sT0), vr(vTBw)))
    p("s_lshl_b32 %s, %s, 15" % (sr(sT0), sr(sG32L)))
    p("s_lshl_b32 %s, %s, 10" % (sr(sT1), sr(sKS)))
    p("s_add_u32 %s, %s, %s" % (sr(sT0), sr(sT0), sr(sT1)))
    p("v_lshrrev_b32 %s, 4, %s" % (t3, t))
    p("v_lshlrev_b32 %s, 14, %s" % (vr(vXw), t3))
    p("v_lshl_add_u32 %s, %s, 9, %s" % (vr(vXw), t2, vr(vXw)))
    p("v_and_b32 %s, 15, %s" % (t, l))
    p("v_lshl_add_u32 %s, %s, 4, %s" % (vr(vXw), t, vr(vXw)))
    p("v_add_u32 %s, %s, %s" % (vr(vXw), sr(sT0), vr(vXw)))
    p("v_lshrrev_b32 %s, 4, %s" % (t2, l))
    p("v_lshrrev_b32 %s, 1, %s" % (t3, t2))
    p("v_lshlrev_b32 %s, 9, %s" % (vr(vSTATEw), t3))
    p("v_lshl_add_u32 %s, %s, 4, %s" % (vr(vSTATEw), t, vr(vSTATEw)))
    p("v_and_b32 %s, 1, %s" % (t3, t2))
    p("v_lshl_add_u32 %s, %s, 3, %s" % (vr(vSTATEw), t3, vr(vSTATEw)))
    p("s_lshl_b32 %s, %s, 16" % (sr(sT0), sr(sRG)))
    p("s_lshl_b32 %s, %s, 2" % (sr(sT1), sr(sM)))
    p("s_add_u32 %s, %s, %s" % (sr(sT1), sr(sT1), sr(sWV)))
    p("s_lshl_b32 %s, %s, 10" % (sr(sT1), sr(sT1)))
    p("s_add_u32 %s, %s, %s" % (sr(sT0), sr(sT0), sr(sT1)))
    p("v_add_u32 %s, %s, %s" % (vr(vPQw), sr(sT0), vr(vSTATEw)))
    p("v_lshlrev_b32 %s, 4, %s" % (vr(vTB1), t2))
    p("v_add_u32 %s, 0x%x, %s" % (vr(vTB1), TB, vr(vTB1)))
    p("v_lshlrev_b32 %s, 2, %s" % (vr(vTB2), t))
    p("v_add_u32 %s, 0x%x, %s" % (vr(vTB2), TB, vr(vTB2)))
    p("v_lshlrev_b32 %s, 4, %s" % (t3, t2))
    p("v_lshl_add_u32 %s, %s, 6, %s" % (vr(vZr), t, t3))
    a, b = vr(VF + 2), vr(VF + 3)
    p("v_and_b32 %s, 1, %s" % (a, t))
    p("v_lshlrev_b32 %s, 4, %s" % (a, a))
    p("v_mov_b32 %s, 0x3f80" % b)
    p("v_lshlrev_b32 %s, %s, %s" % (a, a, b))
    p("v_lshrrev_b32 %s, 1, %s" % (b, t))
    p("v_lshlrev_b32 %s, 1, %s" % (t3, t2))
    p("v_cmp_eq_u32 vcc, %s, %s" % (b, t3))
    p("v_cndmask_b32 %s, 0, %s, vcc" % (vr(vSEL), a))
    p("v_add_u32 %s, 1, %s" % (t3, t3))
    p("v_cmp_eq_u32 vcc, %s, %s" % (b, t3))
    p("v_cndmask_b32 %s, 0, %s, vcc" % (vr(vSEL + 1), a))
    p("v_mov_b32 %s, %s" % (vr(vSEL + 2), vr(vSEL)))
    p("v_mov_b32 %s, %s" % (vr(vSEL + 3), vr(vSEL + 1)))
    for r in range(4):
        p("v_mov_b32 %s, 0x3f803f80" % vr(vONE + r))
    p("v_lshrrev_b32 %s, 2, %s" % (a, t))
    p("v_lshl_add_u32 %s, %s, 3, %s" % (a, t2, a))
    p("v_bfe_u32 %s, %s, 1, 1" % (b, a))
    p("v_and_b32 %s, 1, %s" % (t3, t2))
    p("v_lshl_add_u32 %s, %s, 1, %s" % (b, t3, b))
    p("v_xor_b32 %s, %s, %s" % (b, sr(sWV), b))
    p("v_lshlrev_b32 %s, 7, %s" % (a, a))
    p("v_lshl_add_u32 %s, %s, 5, %s" % (a, b, a))
    p("v_and_b32 %s, 3, %s" % (b, t))
    p("v_lshl_add_u32 %s, %s, 3, %s" % (vr(vTrW), b, a))
    p("v_lshrrev_b32 %s, 2, %s" % (a, t))
    p("v_xor_b32 %s, %s, %s" % (b, sr(sWV), a))
    p("v_lshlrev_b32 %s, 6, %s" % (b, b))
    p("v_lshl_add_u32 %s, %s, 8, %s" % (b, a, b))
    p("v_lshrrev_b32 %s, 1, %s" % (a, t2))
    p("v_lshl_add_u32 %s, %s, 10, %s" % (b, a, b))
    p("v_and_b32 %s, 1, %s" % (a, t2))
    p("v_lshl_add_u32 %s, %s, 4, %s" % (b, a, b))
    p("v_and_b32 %s, 1, %s" % (a, t))
    p("v_lshl_add_u32 %s, %s, 5, %s" % (b, a, b))
    p("v_bfe_u32 %s, %s, 1, 1" % (a, t))
    p("v_lshl_add_u32 %s, %s, 3, %s" % (vr(vTrO), a, b))
    p("v_lshlrev_b32 %s, 2, %s" % (a, t2))
    p("v_xor_b32 %s, %s, %s" % (a, t, a))
    p("v_lshlrev_b32 %s, 4, %s" % (a, a))
    p("v_lshl_add_u32 %s, %s, 10, %s" % (vr(vDmaO), t2, a))


def dmaw_address():
    l = vr(vLANE)
    a, b = vr(VF), vr(VF + 1)
    p("v_lshrrev_b32 %s, 3, %s" % (a, l))
    p("v_and_b32 %s, 2, %s" % (b, a))
    p("v_mul_u32_u24 %s, 0xc00, %s" % (a, a))
    p("v_xor_b32 %s, %s, %s" % (b, l, b))
    p("v_and_b32 %s, 7, %s" % (b, b))
    p("v_lshl_add_u32 %s, %s, 4, %s" % (vr(vDmaW), b, a))


def p0_compute():
    for d in range(4):
        src0 = SH + (d >> 1)
        src1 = SH + 2 + (d >> 1)
        if d & 1:
            p("v_and_b32 %s, %s, %s" % (vr(WF + 2 * d), sr(sMASK), vr(src0)))
            p("v_and_b32 %s, %s, %s" % (vr(WF + 2 * d + 1), sr(sMASK), vr(src1)))
        else:
            p("v_lshlrev_b32 %s, 16, %s" % (vr(WF + 2 * d), vr(src0)))
            p("v_lshlrev_b32 %s, 16, %s" % (vr(WF + 2 * d + 1), vr(src1)))
    for r in range(11):
        unpack(KF + 2 * r, KK + r)
    for t in range(8):
        p("v_pk_mul_f32 %s, %s, %s" % (vr(UF + 2 * t, 2), vr(KF + 2 * t, 2), vr(WF + 6, 2)))
    for d in (2, 1, 0):
        for t in range(8):
            p("v_pk_fma_f32 %s, %s, %s, %s" % (vr(UF + 2 * t, 2), vr(KF + 2 * (t + 3 - d), 2), vr(WF + 2 * d, 2), vr(UF + 2 * t, 2)))
    for t in range(8):
        unpack(KF + 2 * t, VV + t)
    for t in range(8):
        p("v_pk_mul_f32 %s, %s, %s" % (vr(UF + 2 * t, 2), vr(UF + 2 * t, 2), vr(KF + 2 * t, 2)))
    for c in range(2):
        for n in range(4):
            p("v_cvt_pk_bf16_f32 %s, %s, %s" % (vr(UP + 4 * c + n), vr(UF + 2 * (7 - 2 * n) + c), vr(UF + 2 * (6 - 2 * n) + c)))


def ut_address():
    l = vr(vLANE)
    t = vr(vT)
    p("s_lshl_b32 %s, %s, 16" % (sr(sT0), sr(sWV)))
    p("s_lshl_b32 %s, %s, 7" % (sr(sT1), sr(sJ)))
    p("s_sub_u32 %s, %s, %s" % (sr(sT0), sr(sT0), sr(sT1)))
    sadd(sT0, sT0, 4080)
    p("v_and_b32 %s, 7, %s" % (t, l))
    p("v_lshlrev_b32 %s, 13, %s" % (vr(vUT), t))
    p("v_lshrrev_b32 %s, 3, %s" % (t, l))
    p("v_lshlrev_b32 %s, 4, %s" % (t, t))
    p("v_sub_u32 %s, %s, %s" % (vr(vUT), vr(vUT), t))
    p("v_add_u32 %s, %s, %s" % (vr(vUT), sr(sT0), vr(vUT)))


def ut_store(soff, sc, tag=None):
    p("buffer_store_dwordx4 %s, %s, %s, %s offen%s" % (vr(UP, 4), vr(vUT), sr(sWS, 4), sr(soff), sc), tag)
    sadd(sT3, soff, 4096)
    p("buffer_store_dwordx4 %s, %s, %s, %s offen%s" % (vr(UP + 4, 4), vr(vUT), sr(sWS, 4), sr(sT3), sc), tag)


def h_copies():
    A, B = KF, KF + 8
    C = KF + 16
    t = vr(vT)
    wa = vr(vHA)
    p("v_and_b32 %s, 127, v0" % t)
    p("s_lshr_b32 %s, %s, 1" % (sr(sT0), sr(sWV)))
    p("s_lshl_b32 %s, %s, 16" % (sr(sT1), sr(sDV)))
    p("s_and_b32 %s, %s, %s" % (sr(sT2), sr(sDV), sr(sMASK)))
    p("s_cmp_eq_u32 %s, 0" % sr(sT0))
    p("s_cselect_b32 %s, %s, %s" % (sr(sT1), sr(sT1), sr(sT2)))
    p("v_cmp_eq_u32 vcc, 0, %s" % t)
    p("v_lshlrev_b32 %s, 16, %s" % (vr(C), vr(HE + 2)))
    p("v_add_f32 %s, %s, %s" % (vr(C), sr(sT1), vr(C)))
    p("v_cvt_pk_bf16_f32 %s, %s, %s" % (vr(C), vr(C), vr(C)))
    p("v_bfi_b32 %s, %s, %s, %s" % (vr(C), sr(sMASK), vr(HE + 2), vr(C)))
    p("v_cndmask_b32 %s, %s, %s, vcc" % (vr(HE + 2), vr(HE + 2), vr(C)))
    p("v_cndmask_b32_e64 %s, %s, 0, vcc" % (vr(HE), vr(HE)))
    p("v_cndmask_b32_e64 %s, %s, 0, vcc" % (vr(HE + 1), vr(HE + 1)))
    p("s_mul_i32 %s, %s, %d" % (sr(sT0), sr(sT0), HCH))
    sadd(sT0, sT0, HB + 32)
    p("v_lshlrev_b32 %s, 5, %s" % (wa, t))
    p("v_add_u32 %s, %s, %s" % (wa, sr(sT0), wa))
    p("ds_write_b128 %s, %s offset:%d" % (wa, vr(HE + 2, 4), 3 * HCOPY))
    p("ds_write_b128 %s, %s offset:%d" % (wa, vr(HE + 6, 4), 3 * HCOPY + 16))
    for n in range(8):
        p("v_alignbit_b32 %s, %s, %s, 16" % (vr(A + n), vr(HE + n + 1), vr(HE + n)))
    p("ds_write_b128 %s, %s offset:%d" % (wa, vr(A, 4), 0))
    p("ds_write_b128 %s, %s offset:%d" % (wa, vr(A + 4, 4), 16))
    for n in range(8):
        p("v_alignbit_b32 %s, %s, %s, 16" % (vr(B + n), vr(HE + n + 2), vr(HE + n + 1)))
    p("ds_write_b128 %s, %s offset:%d" % (wa, vr(B, 4), 2 * HCOPY))
    p("ds_write_b128 %s, %s offset:%d" % (wa, vr(B + 4, 4), 2 * HCOPY + 16))
    for n in range(8):
        p("v_mov_b32 %s, %s" % (vr(UF + n), vr(HE + n + 1)))
    p("ds_write_b128 %s, %s offset:%d" % (wa, vr(UF, 4), HCOPY))
    p("ds_write_b128 %s, %s offset:%d" % (wa, vr(UF + 4, 4), HCOPY + 16))


def lds_zero():
    z = KF
    t, a = vr(vT), vr(vHB)
    for r in range(4):
        p("v_mov_b32 %s, 0" % vr(z + r))
    skip = p.newlabel("zero")
    skip2 = p.newlabel("zero")
    p("s_cmp_lg_u32 %s, 0" % sr(sWV))
    p("s_cbranch_scc1 %s" % skip)
    p("v_lshrrev_b32 %s, 5, v0" % t)
    p("v_mul_u32_u24 %s, %d, %s" % (a, UCH - 512, t))
    p("v_lshl_add_u32 %s, v0, 4, %s" % (a, a))
    p("v_add_u32 %s, 0x%x, %s" % (a, UB + 4096, a))
    p("ds_write_b128 %s, %s" % (a, vr(z, 4)))
    p.label(skip)
    p("s_cmp_lg_u32 %s, 1" % sr(sWV))
    p("s_cbranch_scc1 %s" % skip2)
    p("v_bfe_u32 %s, v0, 1, 3" % t)
    p("v_mul_u32_u24 %s, %d, %s" % (a, HCOPY, t))
    p("v_and_b32 %s, 1, v0" % t)
    p("v_lshl_add_u32 %s, %s, 4, %s" % (a, t, a))
    p("v_add_u32 %s, 0x%x, %s" % (a, HB, a))
    p("ds_write_b128 %s, %s" % (a, vr(z, 4)))
    p.label(skip2)


def afrag_preload():
    l = vr(vLANE)
    a, t, t2 = vr(vHA), vr(vT), vr(vHB)
    p("s_lshr_b32 %s, %s, 1" % (sr(sT0), sr(sWV)))
    p("s_mul_i32 %s, %s, %d" % (sr(sT0), sr(sT0), HCH))
    p("s_and_b32 %s, %s, 1" % (sr(sT1), sr(sWV)))
    p("s_lshl_b32 %s, %s, 8" % (sr(sT1), sr(sT1)))
    p("s_add_u32 %s, %s, %s" % (sr(sT0), sr(sT0), sr(sT1)))
    sadd(sT0, sT0, HB + 8)
    p("v_and_b32 %s, 3, %s" % (t, l))
    p("v_mul_u32_u24 %s, %d, %s" % (a, HCOPY, t))
    p("v_and_b32 %s, 12, %s" % (t, l))
    p("v_lshl_add_u32 %s, %s, 1, %s" % (a, t, a))
    p("v_and_b32 %s, 48, %s" % (t, l))
    p("v_add3_u32 %s, %s, %s, %s" % (a, a, t, sr(sT0)))
    for rho in range(4):
        for aa in range(8):
            off = 512 * aa + 64 * rho
            r = aH + 4 * (8 * rho + aa)
            p("ds_read_b64 %s, %s offset:%d" % (ar(r, 2), a, off))
            p("ds_read_b64 %s, %s offset:%d" % (ar(r + 2, 2), a, off + 8))


def handoff_ut():
    F = KF
    E = KF + 4
    FB = KF + 8
    top, fast, got = p.newlabel("h1"), p.newlabel("h1fast"), p.newlabel("h1got")
    slow, slowtop = p.newlabel("h1slow"), p.newlabel("h1slowtop")
    p("s_add_u32 %s, %s, %s" % (sr(sP), sr(sTAG), sr(sXCC)))
    p("s_addc_u32 %s, %s, 0" % (sr(sP + 1), sr(sTAG + 1)))
    sadd(sT0, sCLS, C_FLAGA)
    p("v_and_b32 %s, 0xff, %s" % (vr(E), vr(vL8)))
    p("s_mov_b32 %s, %d" % (sr(sCNT), 0 if FORCE_SLOW else 48))
    p.label(top)
    p("buffer_load_dwordx2 %s, %s, %s, %s offen sc1" % (vr(F, 2), vr(E), sr(sWS, 4), sr(sT0)))
    p("v_cmp_ne_u64 vcc, %s, %s" % (sr(sP, 2), vr(F, 2)))
    if not FORCE_SLOW:
        p("s_cbranch_vccz %s" % fast)
    p("s_sub_u32 %s, %s, 1" % (sr(sCNT), sr(sCNT)))
    p("s_cbranch_scc0 %s" % top)
    p("s_branch %s" % slow)
    p.label(fast)
    p("s_mov_b32 %s, 1" % sr(sMODE))
    sadd(sUSRC, sCLS, C_UTA)
    p.label(got)

    def blk():
        p.label(slow)
        p("s_lshl_b32 %s, %s, 18" % (sr(sUSRC), sr(sX)))
        sadd(sUSRC, sUSRC, UTB)
        ut_store(sUSRC, " sc1")
        p.waitvm()
        p("s_lshl_b32 %s, %s, 10" % (sr(sT1), sr(sX)))
        sadd(sT1, sT1, FLAGB)
        p("s_lshl_b32 %s, %s, 2" % (sr(sT2), sr(sJ)))
        p("s_add_u32 %s, %s, %s" % (sr(sT2), sr(sT2), sr(sWV)))
        p("s_lshl_b32 %s, %s, 3" % (sr(sT2), sr(sT2)))
        p("s_add_u32 %s, %s, %s" % (sr(sT2), sr(sT2), sr(sT1)))
        flag_store(sT2, local=False)
        p("s_mov_b32 %s, %s" % (sr(sCNT), sr(sLIM)))
        p("s_mov_b32 %s, 0" % sr(sMODE))
        p.label(slowtop)
        p("buffer_load_dwordx2 %s, %s, %s, %s offen sc1" % (vr(F, 2), vr(E), sr(sWS, 4), sr(sT0)))
        p("buffer_load_dwordx2 %s, %s, %s, %s offen sc1" % (vr(FB, 2), vr(vL8), sr(sWS, 4), sr(sT1)))
        p("buffer_load_dwordx2 %s, %s, %s, %s offen offset:512 sc1" % (vr(FB + 2, 2), vr(vL8), sr(sWS, 4), sr(sT1)))
        if not FORCE_SLOW:
            p("v_cmp_ne_u64 vcc, %s, %s" % (sr(sP, 2), vr(F, 2)))
            p("s_cbranch_vccz %s" % fast)
        p("v_cmp_ne_u64 vcc, %s, %s" % (sr(sTAG, 2), vr(FB, 2)))
        p("v_cmp_ne_u64 %s, %s, %s" % (sr(sTS, 2), sr(sTAG, 2), vr(FB + 2, 2)))
        p("s_or_b64 vcc, vcc, %s" % sr(sTS, 2))
        p("s_cbranch_vccz %s" % got)
        p("s_sub_u32 %s, %s, 1" % (sr(sCNT), sr(sCNT)))
        p("s_cbranch_scc0 %s" % slowtop)
        p("s_mov_b32 %s, 0" % sr(sLIM))
        p("s_or_b32 %s, %s, 1" % (sr(sERR), sr(sERR)))
        p("s_branch %s" % got)

    tail.append(blk)
    p("s_lshl_b32 %s, %s, 13" % (sr(sT0), sr(sJ)))
    p("s_add_u32 %s, %s, %s" % (sr(sT0), sr(sT0), sr(sUSRC)))
    p("s_lshl_b32 %s, %s, 11" % (sr(sT1), sr(sWV)))
    p("s_add_u32 %s, %s, %s" % (sr(sT0), sr(sT0), sr(sT1)))
    p("s_lshr_b32 %s, %s, 1" % (sr(sT2), sr(sWV)))
    p("s_lshl_b32 %s, %s, 9" % (sr(sT2), sr(sT2)))
    p("s_add_u32 %s, %s, %s" % (sr(sT1), sr(sT1), sr(sT2)))
    p("s_add_u32 m0, %s, %d" % (sr(sT1), UB))
    p("buffer_load_dwordx4 %s, %s, %s offen sc1 lds" % (vr(vL16), sr(sWS, 4), sr(sT0)))
    p("buffer_load_dwordx4 %s, %s, %s offen offset:1024 sc1 lds" % (vr(vL16), sr(sWS, 4), sr(sT0)))


CACC = S0 + 8
CB = S0 + 40
CR = S0 + 72
vCB, vCE, vYw = S0 + 4, S0 + 5, S0 + 6


def conv_addresses():
    l = vr(vLANE)
    t = vr(vT)
    p("s_lshr_b32 %s, %s, 1" % (sr(sT0), sr(sWV)))
    p("s_mul_i32 %s, %s, %d" % (sr(sT0), sr(sT0), UCH))
    p("s_and_b32 %s, %s, 1" % (sr(sT1), sr(sWV)))
    p("s_lshl_b32 %s, %s, 8" % (sr(sT1), sr(sT1)))
    p("s_add_u32 %s, %s, %s" % (sr(sT0), sr(sT0), sr(sT1)))
    sadd(sT0, sT0, UB + 480)
    p("v_and_b32 %s, 15, %s" % (t, l))
    p("v_lshlrev_b32 %s, 5, %s" % (vr(vCB), t))
    p("v_sub_u32 %s, %s, %s" % (vr(vCB), sr(sT0), vr(vCB)))
    p("v_lshlrev_b32 %s, 6, %s" % (vr(vYw), t))
    p("v_and_b32 %s, 48, %s" % (t, l))
    p("v_add_u32 %s, %s, %s" % (vr(vCB), vr(vCB), t))
    p("v_add_u32 %s, %s, %s" % (vr(vYw), vr(vYw), t))


def conv(extra):
    def rd(m, rho):
        p("ds_read_b128 %s, %s offset:%d" % (vr(CB + 4 * m, 4), vr(vCB), 512 * (7 - m) + 64 * rho))

    def mm(a, m, rho, first):
        acc = vr(CACC + 4 * (a + m), 4)
        p("v_mfma_f32_16x16x32_bf16 %s, %s, %s, %s" % (acc, ar(aH + 4 * (8 * rho + a), 4), vr(CB + 4 * m, 4), "0" if first else acc))

    for m in range(8):
        rd(m, 0)
    extra()
    for rho in range(3):
        for m in range(8):
            for a in range(8 - m):
                mm(a, m, rho, rho == 0 and m == 0)
            rd(m, rho + 1)
    p("s_lshl_b32 %s, %s, 5" % (sr(sT0), sr(sX)))
    p("s_add_u32 %s, %s, %s" % (sr(sT0), sr(sT0), sr(sJ)))
    p("s_lshl_b32 %s, %s, 13" % (sr(sT0), sr(sT0)))
    sadd(sT0, sT0, YB)
    labs = [p.newlabel("cv%d" % w) for w in range(4)]
    join = p.newlabel("cvjoin")
    for w in range(1, 4):
        p("s_cmp_eq_u32 %s, %d" % (sr(sWV), w))
        p("s_cbranch_scc1 %s" % labs[w])
    for w in range(4):
        p.label(labs[w])
        keep = (w, 7 - w)
        send = [jt for jt in range(7, -1, -1) if jt not in keep]
        pend = []
        for jt in send + list(keep):
            for a in range(jt + 1):
                mm(a, jt - a, 3, False)
            if pend:
                j2 = pend.pop()
                d = min(j2, 7 - j2)
                slot = (w - d - 1) % 4
                p("ds_write_b128 %s, %s offset:%d" % (vr(vL16), vr(CACC + 4 * j2, 4), EX + (d * 3 + slot) * 2048 + (0 if j2 < 4 else 1024)))
            if jt in send:
                pend.append(jt)
        barrier()
        for slot in range(3):
            for k2 in range(2):
                p("ds_read_b128 %s, %s offset:%d" % (vr(CR + 8 * slot + 4 * k2, 4), vr(vL16), EX + (w * 3 + slot) * 2048 + 1024 * k2))
        partner = w ^ 1
        others = [o for o in range(4) if (o >> 1) != (w >> 1)]
        sl = lambda o: (o - w - 1) % 4
        for k2 in range(2):
            jt = keep[k2]
            own = CACC + 4 * jt
            pr = CR + 8 * sl(partner) + 4 * k2
            o0 = CR + 8 * sl(others[0]) + 4 * k2
            o1 = CR + 8 * sl(others[1]) + 4 * k2
            for e in (0, 2):
                p("v_pk_add_f32 %s, %s, %s" % (vr(own + e, 2), vr(own + e, 2), vr(pr + e, 2)))
                p("v_pk_add_f32 %s, %s, %s" % (vr(o0 + e, 2), vr(o0 + e, 2), vr(o1 + e, 2)))
            lo, hi = (own, o0) if (w >> 1) == 0 else (o0, own)
            for e in range(4):
                p("v_cvt_pk_bf16_f32 %s, %s, %s" % (vr(pr + e), vr(lo + e), vr(hi + e)))
            for e in range(4):
                p("v_min_u32 %s, -2, %s" % (vr(pr + e), vr(pr + e)))
            if jt >= 4:
                sadd(sT0, sT0, 4096)
            p("buffer_store_dwordx4 %s, %s, %s, %s offen offset:%d sc1" % (vr(pr, 4), vr(vYw), sr(sWS, 4), sr(sT0), 1024 * (jt % 4)))
        if w < 3:
            p("s_branch %s" % join)
    p.label(join)


def hello_check():
    F = S0 + 8
    p("s_mov_b32 %s, 0x%x" % (sr(sT0), HELLO))

    def issue():
        for u in range(4):
            p("buffer_load_dwordx2 %s, %s, %s, %s offen offset:%d sc1" % (vr(F + 2 * u, 2), vr(vL8), sr(sWS, 4), sr(sT0), 512 * u))

    def check():
        p("v_cmp_ne_u64 vcc, %s, %s" % (sr(sTAG, 2), vr(F, 2)))
        for u in range(1, 4):
            p("v_cmp_ne_u64 %s, %s, %s" % (sr(sP, 2), sr(sTAG, 2), vr(F + 2 * u, 2)))
            p("s_or_b64 vcc, vcc, %s" % sr(sP, 2))

    poll(issue, check, 1)


def colsum(a0, dst, transposed):
    acc = S0 + 8
    for ks in range(16):
        A, B = vr(vONE, 4), ar(a0 + 4 * ks, 4)
        if transposed:
            A, B = B, A
        p("v_mfma_f32_16x16x32_bf16 %s, %s, %s, %s" % (vr(acc, 4), A, B, "0" if ks == 0 else vr(acc, 4)))
    for e in range(4 if transposed else 1):
        p("v_mov_b32 %s, %s" % (vr(dst + e), vr(acc + e)))


N0 = S0 + 32


def normalise(vR, vNM):
    for e in range(0, 16, 2):
        p("v_pk_fma_f32 %s, %s, %s, %s op_sel_hi:[1,0,0]" % (vr(N0 + e, 2), vr(vX + e, 2), vr(vR, 2), vr(vNM, 2)))


def gate_and_publish(L):
    XP = S0 + 48
    for e in range(0, 16, 2):
        p("v_pk_fma_f32 %s, %s, %s, %s" % (vr(vX + e, 2), vr(N0 + e, 2), vr(vY + e, 2), vr(vX + e, 2)))
    for e in range(8):
        p("v_cvt_pk_bf16_f32 %s, %s, %s" % (vr(XP + e), vr(vX + 2 * e), vr(vX + 2 * e + 1)))
    sadd(sT0, sCLS, C_X + L * 0x40000)
    local_stores(
        [
            "buffer_store_dwordx4 %s, %s, %s, %s offen" % (vr(XP, 4), vr(vXw), sr(sWS, 4), sr(sT0)),
            "buffer_store_dwordx4 %s, %s, %s, %s offen offset:256" % (vr(XP + 4, 4), vr(vXw), sr(sWS, 4), sr(sT0)),
        ],
        "xst",
    )
    stats_compute(S0 + 56, S0 + 58)
    p("s_lshl_b32 %s, %s, 4" % (sr(sT1), sr(sG32L)))
    p("s_add_u32 %s, %s, %s" % (sr(sT1), sr(sT1), sr(sKS)))
    p("s_lshl_b32 %s, %s, 3" % (sr(sT1), sr(sT1)))
    p("s_add_u32 %s, %s, %s" % (sr(sT1), sr(sT1), sr(sCLS)))
    sadd(sT1, sT1, C_FLAGX + L * 0x400)
    p.waitvm("xst")
    flag_store(sT1)
    sadd(sT0, sCLS, st_off(1 + 2 * L))
    local_stores(["buffer_store_dword %s, %s, %s, %s offen" % (vr(S0 + 56), vr(vSTw), sr(sWS, 4), sr(sT0))])


GA = S0 + 8
GK, GV, GQ = S0 + 40, S0 + 56, S0 + 72
GT = S0 + 88


def gemm_kv(L):
    F = GT
    p("s_lshl_b32 %s, %s, 1" % (sr(sT0), sr(sRG)))
    p("s_lshr_b32 %s, %s, 1" % (sr(sT1), sr(sWV)))
    p("s_add_u32 %s, %s, %s" % (sr(sT0), sr(sT0), sr(sT1)))
    p("s_lshl_b32 %s, %s, 7" % (sr(sT0), sr(sT0)))
    p("s_add_u32 %s, %s, %s" % (sr(sT0), sr(sT0), sr(sCLS)))
    sadd(sT0, sT0, C_FLAGX + L * 0x400)
    p("v_and_b32 %s, 0x7f, %s" % (vr(F + 2), vr(vL8)))
    p("s_lshl_b32 %s, %s, 16" % (sr(sT1), sr(sRG)))
    p("s_lshl_b32 %s, %s, 14" % (sr(sT2), sr(sWV)))
    p("s_add_u32 %s, %s, %s" % (sr(sT1), sr(sT1), sr(sT2)))
    p("s_add_u32 %s, %s, %s" % (sr(sT1), sr(sT1), sr(sCLS)))
    sadd(sT1, sT1, C_X + L * 0x40000)
    p("s_add_u32 m0, %s, %d" % (sr(sT2), AB))
    poll(
        lambda: p("buffer_load_dwordx2 %s, %s, %s, %s offen sc1" % (vr(F, 2), vr(F + 2), sr(sWS, 4), sr(sT0))),
        lambda: p("v_cmp_ne_u64 vcc, %s, %s" % (sr(sTAG, 2), vr(F, 2))),
        3,
    )
    stamp("xflag%d" % L)
    for s in range(4):
        for k2 in range(4):
            p("buffer_load_dwordx4 %s, %s, %s offen offset:%d sc1 lds" % (vr(vL16), sr(sWS, 4), sr(sT1), 1024 * k2), "a%d" % s)
        if s < 3:
            p("s_add_u32 m0, m0, 4096")
            sadd(sT1, sT1, 4096)
    p("s_lshl_b32 %s, %s, 1" % (sr(sT0), sr(sRG)))
    p("s_and_b32 %s, %s, 1" % (sr(sT1), sr(sWV)))
    p("s_add_u32 %s, %s, %s" % (sr(sT0), sr(sT0), sr(sT1)))
    p("s_lshl_b32 %s, %s, 12" % (sr(sT0), sr(sT0)))
    p("s_add_u32 %s, %s, %s" % (sr(sT0), sr(sT0), sr(sCLS)))
    sadd(sT3, sT0, st_off(1 + 2 * L))
    p("v_add_u32 %s, 0x%x, %s" % (vr(S0 + 123), AB, vr(vL16)))

    def rd(ks):
        for tt in range(4):
            p("ds_read_b128 %s, %s offset:%d" % (vr(GA + 16 * (ks & 1) + 4 * tt, 4), vr(S0 + 123), tt * 16384 + ks * 1024))

    p.waitvm("a0")
    barrier()
    if L == 0:
        stage_wo(0, R1, "wo")
    rd(0)
    for ks in range(16):
        if ks < 15:
            if (ks + 1) % 4 == 0:
                p.waitvm("a%d" % ((ks + 1) // 4))
                if ks + 1 == 12:
                    poll(lambda: stats_issue(GT, sT3), lambda: check_sentinel(range(GT, GT + 16), GT + 16), 4)
                    stats_finish(GT, GT + 16, GT + 17)
                    p("v_cmp_gt_u32 vcc, 0x200, %s" % vr(vL16))
                    p("v_cndmask_b32 %s, %s, %s, vcc" % (vr(GT + 16), vr(GT + 17), vr(GT + 16)))
                    p("ds_write_b32 %s, %s" % (vr(vTBw), vr(GT + 16)))
                    p.waitlg()
                p("s_barrier")
            rd(ks + 1)
        for tt in range(4):
            A = vr(GA + 16 * (ks & 1) + 4 * tt, 4)
            for acc, w in ((GK, aWK), (GV, aWV)):
                d = vr(acc + 4 * tt, 4)
                p("v_mfma_f32_16x16x32_bf16 %s, %s, %s, %s" % (d, A, ar(w + 4 * ks, 4), "0" if ks == 0 else d))
    stamp("gemmkv%d" % L)
    for tt in range(4):
        p("ds_read_b128 %s, %s offset:%d" % (vr(GT + 8 * tt, 4), vr(vTB1), 64 * tt))
        p("ds_read_b128 %s, %s offset:%d" % (vr(GT + 8 * tt + 4, 4), vr(vTB1), 256 + 64 * tt))
    PK, PV, T = GA, GA + 8, GA + 16
    for tt in range(4):
        Rr, NM = GT + 8 * tt, GT + 8 * tt + 4
        k0, v0 = GK + 4 * tt, GV + 4 * tt
        for e in range(4):
            p("v_fma_f32 %s, %s, %s, %s" % (vr(T + e), vr(NM + e), vr(vCSK), sr(sEPS6)))
        for e in (0, 2):
            p("v_pk_fma_f32 %s, %s, %s, %s" % (vr(k0 + e, 2), vr(k0 + e, 2), vr(Rr + e, 2), vr(T + e, 2)))
        for e in range(4):
            p("v_mul_f32 %s, %s, %s" % (vr(T + e), sr(sLOG2E), vr(k0 + e)))
        for e in range(4):
            p("v_exp_f32_e64 %s, %s clamp" % (vr(T + e), vr(T + e)))
        for e in range(4):
            p("v_max_f32 %s, %s, %s" % (vr(k0 + e), sr(sEPS6), vr(k0 + e)))
        for e in (0, 2):
            p("v_pk_add_f32 %s, %s, %s" % (vr(k0 + e, 2), vr(k0 + e, 2), vr(T + e, 2)))
        for e in range(4):
            p("v_mul_f32 %s, %s, %s" % (vr(T + 4 + e), vr(NM + e), vr(vCSV)))
        for e in (0, 2):
            p("v_pk_fma_f32 %s, %s, %s, %s" % (vr(v0 + e, 2), vr(v0 + e, 2), vr(Rr + e, 2), vr(T + 4 + e, 2)))
        for e in (0, 2):
            p("v_cvt_pk_bf16_f32 %s, %s, %s" % (vr(PK + 2 * tt + e // 2), vr(k0 + e), vr(k0 + e + 1)))
            p("v_cvt_pk_bf16_f32 %s, %s, %s" % (vr(PV + 2 * tt + e // 2), vr(v0 + e), vr(v0 + e + 1)))
    KV, Z = GK, GK + 4
    p("v_mfma_f32_16x16x32_bf16 %s, %s, %s, 0" % (vr(KV, 4), vr(PK, 4), vr(PV, 4)))
    p("v_mfma_f32_16x16x32_bf16 %s, %s, %s, %s" % (vr(KV, 4), vr(PK + 4, 4), vr(PV + 4, 4), vr(KV, 4)))
    p("v_mfma_f32_16x16x32_bf16 %s, %s, %s, 0" % (vr(Z, 4), vr(PK, 4), vr(vONE, 4)))
    p("v_mfma_f32_16x16x32_bf16 %s, %s, %s, %s" % (vr(Z, 4), vr(PK + 4, 4), vr(vONE, 4), vr(Z, 4)))
    p("s_lshl_b32 %s, %s, 2" % (sr(sT0), sr(sM)))
    p("s_add_u32 %s, %s, %s" % (sr(sT0), sr(sT0), sr(sWV)))
    p("s_lshl_b32 %s, %s, 5" % (sr(sT0), sr(sT0)))
    p("s_lshl_b32 %s, %s, 2" % (sr(sT1), sr(sX)))
    p("s_add_u32 %s, %s, %s" % (sr(sT0), sr(sT0), sr(sT1)))
    p("s_add_u32 %s, %s, %s" % (sr(sT0), sr(sT0), sr(sRG)))
    p("s_lshl_b32 %s, %s, 9" % (sr(sT1), sr(sT0)))
    sadd(sT1, sT1, KVP + L * 0x80000)
    p("s_lshl_b32 %s, %s, 6" % (sr(sT2), sr(sT0)))
    sadd(sT2, sT2, ZP + L * 0x10000)
    p("v_cvt_pk_bf16_f32 %s, %s, %s" % (vr(T), vr(KV), vr(KV + 1)))
    p("v_cvt_pk_bf16_f32 %s, %s, %s" % (vr(T + 1), vr(KV + 2), vr(KV + 3)))
    p("v_min_u32 %s, -2, %s" % (vr(T), vr(T)))
    p("v_min_u32 %s, -2, %s" % (vr(T + 1), vr(T + 1)))
    p("buffer_store_dwordx2 %s, %s, %s, %s offen sc1" % (vr(T, 2), vr(vL8), sr(sWS, 4), sr(sT1)))
    for e in range(4):
        p("v_min_u32 %s, -2, %s" % (vr(Z + e), vr(Z + e)))
    p("s_mov_b32 exec_lo, 0x00010001")
    p("s_mov_b32 exec_hi, 0x00010001")
    p("buffer_store_dwordx4 %s, %s, %s, %s offen sc1" % (vr(Z, 4), vr(vZr), sr(sWS, 4), sr(sT2)))
    p("s_mov_b64 exec, -1")
    stamp("kvpub%d" % L)


def gemm_q(L):
    def rd(ks):
        for tt in range(4):
            p("ds_read_b128 %s, %s offset:%d" % (vr(GA + 16 * (ks & 1) + 4 * tt, 4), vr(S0 + 123), tt * 16384 + ks * 1024))

    p("v_add_u32 %s, 0x%x, %s" % (vr(S0 + 123), AB, vr(vL16)))
    for tt in range(4):
        p("ds_read_b32 %s, %s offset:%d" % (vr(GT + 2 * tt), vr(vTB2), 64 * tt))
        p("ds_read_b32 %s, %s offset:%d" % (vr(GT + 2 * tt + 1), vr(vTB2), 256 + 64 * tt))
    rd(0)
    for ks in range(16):
        if ks < 15:
            rd(ks + 1)
        for tt in range(4):
            B = vr(GA + 16 * (ks & 1) + 4 * tt, 4)
            d = vr(GQ + 4 * tt, 4)
            p("v_mfma_f32_16x16x32_bf16 %s, %s, %s, %s" % (d, ar(aWQ + 4 * ks, 4), B, "0" if ks == 0 else d))
    T = GA
    PQ = GA + 8
    sadd(sT0, sCLS, C_PQ + L * 0x40000)
    sadd(sT1, sT0, 32768)
    lines = []
    for tt in range(4):
        Rr, NM = GT + 2 * tt, GT + 2 * tt + 1
        q0 = GQ + 4 * tt
        for e in range(4):
            p("v_fma_f32 %s, %s, %s, %s" % (vr(T + e), vr(NM), vr(vCSQ + e), sr(sEPS6)))
        for e in range(4):
            p("v_fma_f32 %s, %s, %s, %s" % (vr(q0 + e), vr(q0 + e), vr(Rr), vr(T + e)))
        for e in range(4):
            p("v_mul_f32 %s, %s, %s" % (vr(T + e), sr(sLOG2E), vr(q0 + e)))
        for e in range(4):
            p("v_exp_f32_e64 %s, %s clamp" % (vr(T + e), vr(T + e)))
        for e in range(4):
            p("v_max_f32 %s, %s, %s" % (vr(q0 + e), sr(sEPS6), vr(q0 + e)))
        for e in (0, 2):
            p("v_pk_add_f32 %s, %s, %s" % (vr(q0 + e, 2), vr(q0 + e, 2), vr(T + e, 2)))
        for e in (0, 2):
            p("v_cvt_pk_bf16_f32 %s, %s, %s" % (vr(PQ + 2 * tt + e // 2), vr(q0 + e), vr(q0 + e + 1)))
        lines.append(
            "buffer_store_dwordx2 %s, %s, %s, %s offen offset:%d" % (vr(PQ + 2 * tt, 2), vr(vPQw), sr(sWS, 4), sr(sT0 if tt < 2 else sT1), 256 * (tt & 1))
        )
    local_stores(lines, "pqst")
    p("s_lshl_b32 %s, %s, 5" % (sr(sT0), sr(sRG)))
    p("s_lshl_b32 %s, %s, 2" % (sr(sT1), sr(sM)))
    p("s_add_u32 %s, %s, %s" % (sr(sT0), sr(sT0), sr(sT1)))
    p("s_add_u32 %s, %s, %s" % (sr(sT0), sr(sT0), sr(sWV)))
    p("s_lshl_b32 %s, %s, 3" % (sr(sT0), sr(sT0)))
    p("s_add_u32 %s, %s, %s" % (sr(sT0), sr(sT0), sr(sCLS)))
    sadd(sT0, sT0, C_FLAGPQ + L * 0x400)
    p.waitvm("pqst")
    flag_store(sT0)


OPQ = S0 + 8
OST = S0 + 40
OD = S0 + 72
OF = S0 + 104


def head_off(u):
    return (u & 3) * 1024 + (u >> 2) * 16384


def reduce_state(L):
    P = OST
    ZL = OST + 16
    D = OST + 24
    RC = OD
    T = OD + 12
    p("s_lshl_b32 %s, %s, 5" % (sr(sT0), sr(sJ)))
    p("s_lshl_b32 %s, %s, 6" % (sr(sT2), sr(sT0)))
    sadd(sT2, sT2, ZP + L * 0x10000)
    p("s_lshl_b32 %s, %s, 3" % (sr(sT1), sr(sWV)))
    p("s_add_u32 %s, %s, %s" % (sr(sT0), sr(sT0), sr(sT1)))
    p("s_lshl_b32 %s, %s, 9" % (sr(sT0), sr(sT0)))
    sadd(sT0, sT0, KVP + L * 0x80000)

    def issue():
        for u in range(8):
            p("buffer_load_dwordx2 %s, %s, %s, %s offen offset:%d sc1" % (vr(P + 2 * u, 2), vr(vL8), sr(sWS, 4), sr(sT0), 512 * u))

    poll(issue, lambda: check_sentinel(range(P, P + 16), T), 5)
    stamp("kvgot%d" % L)
    for u in range(4):
        p("v_mfma_f32_16x16x32_bf16 %s, %s, %s, %s" % (vr(D, 4), vr(vSEL, 4), vr(P + 4 * u, 4), "0" if u == 0 else vr(D, 4)))
    p("s_lshl_b32 %s, %s, 10" % (sr(sT1), sr(sWV)))
    sadd(sT1, sT1, RS)
    p("v_add_u32 %s, %s, %s" % (vr(T), sr(sT1), vr(vL16)))
    p("s_lshl_b32 %s, %s, 10" % (sr(sT3), sr(sJ)))
    p("s_add_u32 %s, %s, %s" % (sr(sT3), sr(sT3), sr(sCLS)))
    sadd(sT3, sT3, C_STATE + L * 0x8000)
    p("ds_write_b128 %s, %s" % (vr(T), vr(D, 4)))
    barrier()
    w1, done = p.newlabel("red1"), p.newlabel("reddone")
    p("s_cmp_eq_u32 %s, 1" % sr(sWV))
    p("s_cbranch_scc1 %s" % w1)
    p("s_cmp_lg_u32 %s, 0" % sr(sWV))
    p("s_cbranch_scc1 %s" % done)
    for u in range(3):
        p("ds_read_b128 %s, %s offset:%d" % (vr(RC + 4 * u, 4), vr(T), 1024 * (u + 1)))
    for e in (0, 2):
        p("v_pk_add_f32 %s, %s, %s" % (vr(D + e, 2), vr(D + e, 2), vr(RC + e, 2)))
        p("v_pk_add_f32 %s, %s, %s" % (vr(RC + 4 + e, 2), vr(RC + 4 + e, 2), vr(RC + 8 + e, 2)))
    for e in (0, 2):
        p("v_pk_add_f32 %s, %s, %s" % (vr(D + e, 2), vr(D + e, 2), vr(RC + 4 + e, 2)))
    p("v_cvt_pk_bf16_f32 %s, %s, %s" % (vr(D), vr(D), vr(D + 1)))
    p("v_cvt_pk_bf16_f32 %s, %s, %s" % (vr(D + 1), vr(D + 2), vr(D + 3)))
    p("v_min_u32 %s, -2, %s" % (vr(D), vr(D)))
    p("v_min_u32 %s, -2, %s" % (vr(D + 1), vr(D + 1)))
    local_stores(["buffer_store_dwordx2 %s, %s, %s, %s offen" % (vr(D, 2), vr(vSTATEw), sr(sWS, 4), sr(sT3))])
    p("s_branch %s" % done)
    p.label(w1)

    def issue_z():
        for u in range(2):
            p("buffer_load_dwordx4 %s, %s, %s, %s offen offset:%d sc1" % (vr(ZL + 4 * u, 4), vr(vZr), sr(sWS, 4), sr(sT2), 1024 * u))

    poll(issue_z, lambda: check_sentinel(range(ZL, ZL + 8), T), 6)
    for e in (0, 2):
        p("v_pk_add_f32 %s, %s, %s" % (vr(ZL + e, 2), vr(ZL + e, 2), vr(ZL + 4 + e, 2)))
    for sh in (8, 4, 2, 1):
        for e in range(4):
            p("v_add_f32_dpp %s, %s, %s row_ror:%d row_mask:0xf bank_mask:0xf" % (vr(ZL + e), vr(ZL + e), vr(ZL + e), sh))
    p("v_cvt_pk_bf16_f32 %s, %s, %s" % (vr(ZL), vr(ZL), vr(ZL + 1)))
    p("v_cvt_pk_bf16_f32 %s, %s, %s" % (vr(ZL + 1), vr(ZL + 2), vr(ZL + 3)))
    p("v_min_u32 %s, -2, %s" % (vr(ZL), vr(ZL)))
    p("v_min_u32 %s, -2, %s" % (vr(ZL + 1), vr(ZL + 1)))
    local_stores(["buffer_store_dwordx2 %s, %s, %s, %s offen offset:256" % (vr(ZL, 2), vr(vSTATEw), sr(sWS, 4), sr(sT3))])
    p.label(done)


def load_pq(L):
    F = OD
    p("s_lshl_b32 %s, %s, 8" % (sr(sT0), sr(sRG)))
    p("s_add_u32 %s, %s, %s" % (sr(sT0), sr(sT0), sr(sCLS)))
    sadd(sT0, sT0, C_FLAGPQ + L * 0x400)
    p("v_and_b32 %s, 0xff, %s" % (vr(F + 2), vr(vL8)))
    poll(
        lambda: p("buffer_load_dwordx2 %s, %s, %s, %s offen sc1" % (vr(F, 2), vr(F + 2), sr(sWS, 4), sr(sT0))),
        lambda: p("v_cmp_ne_u64 vcc, %s, %s" % (sr(sTAG, 2), vr(F, 2))),
        7,
    )
    p("s_lshl_b32 %s, %s, 15" % (sr(sT0), sr(sG32L)))
    p("s_lshl_b32 %s, %s, 12" % (sr(sT1), sr(sWV)))
    p("s_add_u32 %s, %s, %s" % (sr(sT0), sr(sT0), sr(sT1)))
    p("s_add_u32 %s, %s, %s" % (sr(sT0), sr(sT0), sr(sCLS)))
    sadd(sT0, sT0, C_PQ + L * 0x40000)
    sadd(sT1, sT0, 16384)
    for u in range(8):
        p("buffer_load_dwordx4 %s, %s, %s, %s offen offset:%d sc1" % (vr(OPQ + 4 * u, 4), vr(vL16), sr(sWS, 4), sr(sT0 if u < 4 else sT1), 1024 * (u & 3)))


def attn_out(L):
    T = OF + 12
    p("s_lshl_b32 %s, %s, 12" % (sr(sT2), sr(sWV)))
    p("s_add_u32 %s, %s, %s" % (sr(sT0), sr(sT2), sr(sCLS)))
    sadd(sT0, sT0, C_STATE + L * 0x8000)
    sadd(sT1, sT0, 16384)
    sadd(sT2, sT2, OB)
    p("v_add_u32 %s, %s, %s" % (vr(S0 + 122), sr(sT2), vr(vL16)))
    p("v_add_u32 %s, 0x%x, %s" % (vr(S0 + 123), OB, vr(vL16)))

    def issue():
        for u in range(8):
            p("buffer_load_dwordx4 %s, %s, %s, %s offen offset:%d sc1" % (vr(OST + 4 * u, 4), vr(vL16), sr(sWS, 4), sr(sT0 if u < 4 else sT1), 1024 * (u & 3)))

    poll(issue, lambda: check_sentinel([OST + 2 * n for n in range(16)], T), 8)
    stamp("stgot%d" % L)

    def mm(u):
        p("v_mfma_f32_32x32x16_bf16 %s, %s, %s, 0" % (vr(OD + 16 * (u & 1), 16), vr(OST + 4 * u, 4), vr(OPQ + 4 * u, 4)))

    def fin(u):
        d = OD + 16 * (u & 1)
        of = OF + 4 * (u & 1)
        p("v_add_f32 %s, %s, %s" % (vr(d + 8), sr(sEPS6), vr(d + 8)))
        p("v_rcp_f32 %s, %s" % (vr(d + 8), vr(d + 8)))
        for e in range(0, 8, 2):
            p("v_pk_mul_f32 %s, %s, %s op_sel_hi:[1,0]" % (vr(d + e, 2), vr(d + e, 2), vr(d + 8, 2)))
        for e in range(4):
            p("v_cvt_pk_bf16_f32 %s, %s, %s" % (vr(of + e), vr(d + 2 * e), vr(d + 2 * e + 1)))
        p("ds_write_b128 %s, %s offset:%d" % (vr(S0 + 122), vr(of, 4), head_off(u)))

    def wreg(h):
        return ar(aWOA + 4 * h, 4) if h < 16 else vr(vWOB + 4 * (h - 16), 4)

    def breg(h):
        return (OST + 4 * (h % 4)) if (h // 4) % 2 == 0 else (OPQ + 4 * (h % 4))

    def rdb(h):
        p("ds_read_b128 %s, %s offset:%d" % (vr(breg(h), 4), vr(S0 + 123), 1024 * h))

    def wm(h):
        p("v_mfma_f32_32x32x16_bf16 %s, %s, %s, %s" % (vr(vX, 16), wreg(h), vr(breg(h), 4), vr(vX, 16)))

    mm(0)
    for u in range(4):
        mm(u + 1)
        fin(u)
    barrier()
    for h in range(8):
        rdb(h)
    for u in range(4, 8):
        if u < 7:
            mm(u + 1)
        for h in range(4 * (u - 4), 4 * (u - 4) + 4):
            wm(h)
            if h + 8 < 16:
                rdb(h + 8)
        fin(u)
    barrier()
    for h in range(16, 24):
        rdb(h)
    for h in range(16, 32):
        wm(h)
        if h + 8 < 32:
            rdb(h + 8)
    stamp("wo%d" % L)


def stats_hop():
    stats_compute(S0 + 8, S0 + 10)
    sadd(sT0, sCLS, st_off(2))
    local_stores(["buffer_store_dword %s, %s, %s, %s offen" % (vr(S0 + 8), vr(vSTw), sr(sWS, 4), sr(sT0))])
    p("s_lshl_b32 %s, %s, 12" % (sr(sT1), sr(sG32L)))
    p("s_add_u32 %s, %s, %s" % (sr(sT1), sr(sT1), sr(sT0)))
    B = S0 + 12
    poll(lambda: stats_issue(B, sT1), lambda: check_sentinel(range(B, B + 16), S0 + 28), 9)
    stats_finish(B, S0 + 28, S0 + 30)
    normalise(S0 + 28, S0 + 30)
    stamp("stats2")


def main():
    prologue()
    p0_issue()
    clears()
    dmaw_address()
    stage_w(1, R1, "wk")
    addresses()
    lds_zero()
    ut_address()
    stamp("issued")
    p0_compute()
    sadd(sT0, sCLS, C_UTA)
    ut_store(sT0, "")
    stamp("p0")
    p("s_add_u32 %s, %s, 16" % (sr(sTAG), sr(sTAG)))
    p("s_addc_u32 %s, %s, 0" % (sr(sTAG + 1), sr(sTAG + 1)))
    p("v_mov_b32 %s, %s" % (vr(vTAG), sr(sTAG)))
    p("v_mov_b32 %s, %s" % (vr(vTAG + 1), sr(sTAG + 1)))
    h_copies()
    for e in range(8):
        unpack(vX + 2 * e, X0 + e)
    stats_compute(VF, KF)
    p.waitvm()
    barrier()
    skip = p.newlabel("fa")
    p("s_cmp_lg_u32 %s, 0" % sr(sWV))
    p("s_cbranch_scc1 %s" % skip)
    p("s_add_u32 %s, %s, %s" % (sr(sP), sr(sTAG), sr(sXCC)))
    p("s_addc_u32 %s, %s, 0" % (sr(sP + 1), sr(sTAG + 1)))
    p("v_mov_b32 %s, %s" % (vr(KF), sr(sP)))
    p("v_mov_b32 %s, %s" % (vr(KF + 1), sr(sP + 1)))
    p("s_lshl_b32 %s, %s, 3" % (sr(sT0), sr(sJ)))
    p("s_add_u32 %s, %s, %s" % (sr(sT0), sr(sT0), sr(sCLS)))
    sadd(sT0, sT0, C_FLAGA)
    p("s_mov_b64 exec, 1")
    p("buffer_store_dwordx2 %s, off, %s, %s" % (vr(KF, 2), sr(sWS, 4), sr(sT0)))
    p("s_mov_b64 exec, -1")
    p.label(skip)
    stamp("flagA")
    sadd(sT0, sCLS, st_off(0))
    p("buffer_store_dword %s, %s, %s, %s offen sc1" % (vr(VF), vr(vSTw), sr(sWS, 4), sr(sT0)))
    afrag_preload()
    unstage_w(R1, aWK)
    handoff_ut()
    stamp("utflag")
    conv_addresses()
    p.waitvm()
    barrier()
    skip = p.newlabel("hello")
    p("s_cmp_lg_u32 %s, 1" % sr(sWV))
    p("s_cbranch_scc1 %s" % skip)
    p("s_lshl_b32 %s, s2, 3" % sr(sT0))
    sadd(sT0, sT0, HELLO)
    flag_store(sT0, local=False)
    p.label(skip)
    stamp("convstart")
    conv(lambda: stage_w(2, R2, "wv"))
    stamp("convdone")
    p.waitvm("wv")
    barrier()
    stage_w(0, R1, "wq")
    unstage_prep(R2, vTrW)
    unstage_w(R2, aWV)
    hello_check()
    stamp("hello")
    p("s_lshl_b32 %s, %s, 12" % (sr(sT1), sr(sG32L)))
    p("s_add_u32 %s, %s, %s" % (sr(sT1), sr(sT1), sr(sCLS)))
    sadd(sT1, sT1, st_off(0))
    stats_issue(S0 + 12, sT1)
    colsum(aWK, vCSK, False)
    colsum(aWV, vCSV, False)
    stats_finish(S0 + 12, S0 + 28, S0 + 30)
    normalise(S0 + 28, S0 + 30)
    YR = S0 + 8
    stamp("ypoll")

    def issue_y():
        p("s_mov_b32 %s, 0x%x" % (sr(sT0), YB))
        for u in range(8):
            p("buffer_load_dword %s, %s, %s, %s offen sc1" % (vr(YR + u), vr(vYa), sr(sWS, 4), sr(sT0)))
            if u < 7:
                sadd(sT0, sT0, 8192)

    poll(issue_y, lambda: check_sentinel(range(YR, YR + 8), S0 + 16), 2)
    stamp("ygot")
    for u in range(8):
        unpack(vY + 2 * u, YR + u)
    for L in range(2):
        gate_and_publish(L)
        stamp("xpub%d" % L)
        if L == 0:
            barrier()
            unstage_w(R1, aWQ)
            colsum(aWQ, vCSQ, True)
        else:
            barrier()
        gemm_kv(L)
        if L == 0:
            p.waitvm("wo")
            barrier()
            unstage_wo(R1, "a", aWOA)
            barrier()
            stage_wo(1, R1, "wo")
        gemm_q(L)
        if L == 0:
            p.waitvm("wo")
            barrier()
            unstage_wo(R1, "v", vWOB)
        stamp("qdone%d" % L)
        load_pq(L)
        reduce_state(L)
        stamp("stpub%d" % L)
        attn_out(L)
        if L == 0:
            stats_hop()
    XP = S0 + 8
    for e in range(8):
        p("v_cvt_pk_bf16_f32 %s, %s, %s" % (vr(XP + e), vr(vX + 2 * e), vr(vX + 2 * e + 1)))
    p("buffer_store_dwordx4 %s, %s, %s, 0 offen" % (vr(XP, 4), vr(vXrow), sr(sOUT, 4)))
    p("buffer_store_dwordx4 %s, %s, %s, 0 offen offset:16" % (vr(XP + 4, 4), vr(vXrow), sr(sOUT, 4)))
    skip = p.newlabel("epoch")
    p("s_or_b32 %s, s2, %s" % (sr(sT0), sr(sWV)))
    p("s_cmp_lg_u32 %s, 0" % sr(sT0))
    p("s_cbranch_scc1 %s" % skip)
    p("s_mov_b32 %s, %d" % (sr(sT0), EPOCH))
    flag_store(sT0, local=False)
    p.label(skip)
    if PROFILE:
        p.waitvm()
        stamp("end")
        p("v_writelane_b32 %s, %s, 63" % (vr(vPROF), sr(sERR)))
        p("v_writelane_b32 %s, %s, 62" % (vr(vPROF), sr(sMODE)))
        p("v_writelane_b32 %s, %s, 61" % (vr(vPROF), sr(sXCC)))
        p("s_lshl_b32 %s, s2, 10" % sr(sT0))
        sadd(sT0, sT0, PROF)
        p("v_lshlrev_b32 %s, 2, v0" % vr(S0))
        p("buffer_store_dword %s, %s, %s, %s offen" % (vr(vPROF), vr(S0), sr(sWS, 4), sr(sT0)))
    if SPIN:
        if SPIN == "end":
            p.waitvm()
            stamp("end")
        p.label("L_spin")
        p("s_memrealtime s[76:77]")
        p("s_waitcnt lgkmcnt(0)")
        p("s_sub_u32 s76, s76, s74")
        p("s_cmp_lt_u32 s76, 8000")
        p("s_cbranch_scc1 L_spin")
    p("s_endpgm")
    i = 0
    while i < len(tail):
        tail[i]()
        i += 1
    p.label("L_exit")
    p("s_endpgm")


main()

HEAD = open("cdna_kernels/%s.s.ref" % NAME).read().split("; Override launch geometry")[0]
body = p.text()
src = (
    HEAD
    + "; One persistent launch, one workgroup per CU; generated by a script (phases hand data over through d_ws).\n"
    + "; @launch grid=(256,1,1) block=(256,1,1) lds=%d\n" % LDS_BYTES
    + """.amdgcn_target "amdgcn-amd-amdhsa--gfx950"
.text
.globl {n}_kernel
.p2align 8
.type {n}_kernel,@function
{n}_kernel:
""".format(n=NAME)
    + body
    + """.section .rodata,"a"
.p2align 6
.amdhsa_kernel {n}_kernel
  .amdhsa_next_free_vgpr 512
  .amdhsa_next_free_sgpr 102
  .amdhsa_accum_offset 256
  .amdhsa_group_segment_fixed_size 0
  .amdhsa_kernarg_size 96
  .amdhsa_user_sgpr_count 2
  .amdhsa_user_sgpr_kernarg_segment_ptr 1
  .amdhsa_system_sgpr_workgroup_id_x 1
  .amdhsa_float_denorm_mode_32 3
.end_amdhsa_kernel
""".format(n=NAME)
)
open(OUT, "w").write(src)
if PROFILE:
    open(OUT + ".stamps", "w").write("\n".join(stamps))
print("wrote", OUT, "instructions:", sum(1 for l in body.split("\n") if l.startswith("    ") and not l.strip().startswith(";")))
```

```python
import sys
from asmlib import Prog, vr, ar, sr

NAME = "interleave_layers__ssm_conv_h3__linear_attn_block__prompt"
PROFILE = "--prof" in sys.argv
FORCE_SLOW = "--slow" in sys.argv
SPIN = [a.split("=")[1] for a in sys.argv if a.startswith("--spin=")]
SPIN = SPIN[0] if SPIN else None
SPINWG = [int(a.split("=")[1]) for a in sys.argv if a.startswith("--spinwg=")]
OUT = [a for a in sys.argv[1:] if not a.startswith("--")]
OUT = OUT[0] if OUT else "cdna_kernels/%s.s" % NAME

EPOCH = 0
HELLO = 0x1000
FLAGB = 0x2000
KVP = 0x80000
ZP = 0x180000
YB = 0x200000
UTB = 0x400000
CLS = 0x600000
C_UTA = 0
C_X = 0x40000
C_PQ = 0xC0000
C_STATE = 0x140000
C_ST = 0x150000
C_FLAGA = 0x170000
C_FLAGX = 0x171000
C_FLAGPQ = 0x172000
PROF = 0x1800000
WS_BYTES = 0x2000000


def st_off(n):
    return C_ST + ((n + 3) % 4) * 0x8000


R1, R2, R3 = 0, 65536, 131072
HB = R2
HCOPY, HCH = 4160, 16640
UB = R3
UCH = 4608
TB = R3 + 9216
RS = R3 + 9728
EX = R1
AB = R2
OB = R2
LDS_BYTES = 163840

sQ, sK, sV, sH, sW, sWO, sWS, sOUT, sSH = 4, 8, 12, 16, 20, 24, 28, 32, 36
sD = 40
sTAG = 42
sX, sJ, sWV, sXCC, sMODE, sLIM, sCNT = 44, 45, 46, 47, 48, 49, 50
sCLS = 51
sT0, sT1, sT2, sT3 = 52, 53, 54, 55
sP = 56
sC4096, sMASK = 58, 59
sDV = 60
sG32L, sKS, sRG, sM = 61, 62, 63, 64
sEPS6, sLOG2E, sEPS5, sINV512 = 65, 66, 67, 68
sTS = 70
sERR = 72
sUSRC = 73

vL16, vL8, vXrow, vYa, vSTw, vSTr, vXw, vPQw, vSTATEw = 1, 2, 3, 4, 5, 6, 7, 8, 9
vTrW, vTrO, vDmaW, vDmaO, vTB1, vTB2, vZr, vTBw = 10, 11, 12, 13, 14, 15, 16, 17
vTAG = 18
vSEL, vONE = 20, 24
vCSK, vCSV, vCSQ = 28, 29, 30
vX, vY = 34, 50
vPROF = 66
S0 = 68
vWOB = 192
aWK, aWV, aWQ, aWOA = 0, 64, 128, 192
aH = 128

p = Prog()
tail = []
stamps = []


def stamp(name):
    if SPIN == name:
        p("s_memrealtime s[74:75]")
        p("s_waitcnt lgkmcnt(0)")
    if not PROFILE:
        return
    n = len(stamps)
    stamps.append(name)
    p("s_memrealtime %s" % sr(sTS, 2))
    p("s_waitcnt lgkmcnt(0)")
    p("v_writelane_b32 %s, %s, %d" % (vr(vPROF), sr(sTS), n))


def srd(base, nbytes):
    p("s_mov_b32 %s, %d" % (sr(base + 2), nbytes))
    p("s_mov_b32 %s, 0x20000" % sr(base + 3))


def sadd(dst, src, imm):
    p("s_add_u32 %s, %s, 0x%x" % (sr(dst), sr(src), imm))


def local_stores(lines, tag=None):
    slow, join = p.newlabel("slowst"), p.newlabel("joinst")
    p("s_cmp_eq_u32 %s, 0" % sr(sMODE))
    p("s_cbranch_scc1 %s" % slow)
    for l in lines:
        p(l, tag)
    p.label(join)

    def blk():
        p.label(slow)
        for l in lines:
            p(l + " sc1", tag)
        p("s_branch %s" % join)

    tail.append(blk)


def poll(issue, check, code):
    top, done = p.newlabel("poll"), p.newlabel("polldone")
    p("s_mov_b32 %s, %s" % (sr(sCNT), sr(sLIM)))
    p.label(top)
    issue()
    check()
    p("s_cbranch_vccz %s" % done)
    p("s_sub_u32 %s, %s, 1" % (sr(sCNT), sr(sCNT)))
    p("s_cbranch_scc0 %s" % top)
    p("s_mov_b32 %s, 0" % sr(sLIM))
    p("s_or_b32 %s, %s, %d" % (sr(sERR), sr(sERR), 1 << code))
    p.label(done)


def check_sentinel(regs, tmp):
    regs = list(regs)
    if len(regs) == 1:
        p("v_cmp_eq_u32 vcc, -1, %s" % vr(regs[0]))
        return
    first = True
    i = 0
    while i < len(regs):
        if first:
            if len(regs) >= 3:
                p("v_max3_u32 %s, %s, %s, %s" % (vr(tmp), vr(regs[0]), vr(regs[1]), vr(regs[2])))
                i = 3
            else:
                p("v_max_u32 %s, %s, %s" % (vr(tmp), vr(regs[0]), vr(regs[1])))
                i = 2
            first = False
        elif i + 1 < len(regs):
            p("v_max3_u32 %s, %s, %s, %s" % (vr(tmp), vr(tmp), vr(regs[i]), vr(regs[i + 1])))
            i += 2
        else:
            p("v_max_u32 %s, %s, %s" % (vr(tmp), vr(tmp), vr(regs[i])))
            i += 1
    p("v_cmp_eq_u32 vcc, -1, %s" % vr(tmp))


def unpack(dst, src):
    p("v_lshlrev_b32 %s, 16, %s" % (vr(dst), vr(src)))
    p("v_and_b32 %s, %s, %s" % (vr(dst + 1), sr(sMASK), vr(src)))


def flag_store(soff_sgpr, local=True, tagreg=vTAG):
    p("s_mov_b64 exec, 1")
    line = "buffer_store_dwordx2 %s, off, %s, %s" % (vr(tagreg, 2), sr(sWS, 4), sr(soff_sgpr))
    if local:
        local_stores([line])
    else:
        p(line + " sc1")
    p("s_mov_b64 exec, -1")


def barrier():
    p.waitlg()
    p("s_barrier")


def stage_w(part, region, tag):
    p("s_lshl_b32 %s, %s, 14" % (sr(sT0), sr(sWV)))
    p("s_add_u32 m0, %s, %d" % (sr(sT0), region))
    p("s_mul_i32 %s, %s, %d" % (sr(sT1), sr(sWV), 128 * 3072))
    p("s_lshl_b32 %s, %s, 7" % (sr(sT2), sr(sM)))
    p("s_add_u32 %s, %s, %s" % (sr(sT1), sr(sT1), sr(sT2)))
    sadd(sT1, sT1, part * 1024)
    for n in range(16):
        va = vDmaW if n % 2 == 0 else S0 + 122
        if n == 0:
            p("v_xor_b32 %s, 64, %s" % (vr(S0 + 122), vr(vDmaW)))
        p("buffer_load_dwordx4 %s, %s, %s offen lds" % (vr(va), sr(sW, 4), sr(sT1)), tag)
        if n < 15:
            p("s_add_u32 m0, m0, 1024")
            sadd(sT1, sT1, 8 * 3072)


def unstage_w(region, a0):
    for ks in range(16):
        for h in range(2):
            off = region + ks * 4096 + h * 512
            p("ds_read_b64_tr_b16 %s, %s offset:%d" % (ar(a0 + 4 * ks + 2 * h, 2), vr(vTrW if off < 65536 else S0 + 123), off & 0xFFFF))


def unstage_prep(region, reg):
    if region >= 65536:
        p("v_add_u32 %s, 0x10000, %s" % (vr(S0 + 123), vr(reg)))


def stage_wo(half, region, tag):
    p("s_lshl_b32 %s, %s, 14" % (sr(sT0), sr(sWV)))
    p("s_add_u32 m0, %s, %d" % (sr(sT0), region))
    p("s_lshl_b32 %s, %s, 16" % (sr(sT1), sr(sWV)))
    p("s_and_b32 %s, %s, 3" % (sr(sT2), sr(sJ)))
    p("s_lshl_b32 %s, %s, 8" % (sr(sT2), sr(sT2)))
    p("s_add_u32 %s, %s, %s" % (sr(sT1), sr(sT1), sr(sT2)))
    sadd(sT1, sT1, half * 256 * 1024)
    for n in range(16):
        p("buffer_load_dwordx4 %s, %s, %s offen lds" % (vr(vDmaO), sr(sWO, 4), sr(sT1)), tag)
        if n < 15:
            p("s_add_u32 m0, m0, 1024")
            sadd(sT1, sT1, 4096)


def unstage_wo(region, f, r0):
    assert region == 0
    for hd in range(16):
        for g in range(2):
            off = region + hd * 4096 + g * 2048
            p("ds_read_b64_tr_b16 %s, %s offset:%d" % (vr(r0 + 4 * hd + 2 * g, 2, f), vr(vTrO), off))


def stats_compute(a, b):
    t = b
    p("v_pk_mul_f32 %s, %s, %s" % (vr(t + 2, 2), vr(vX, 2), vr(vX, 2)))
    p("v_pk_add_f32 %s, %s, %s" % (vr(t, 2), vr(vX, 2), vr(vX + 2, 2)))
    for e in range(2, 16, 2):
        p("v_pk_fma_f32 %s, %s, %s, %s" % (vr(t + 2, 2), vr(vX + e, 2), vr(vX + e, 2), vr(t + 2, 2)))
        if e >= 4:
            p("v_pk_add_f32 %s, %s, %s" % (vr(t, 2), vr(t, 2), vr(vX + e, 2)))
    p("v_add_f32 %s, %s, %s" % (vr(t), vr(t), vr(t + 1)))
    p("v_add_f32 %s, %s, %s" % (vr(t + 2), vr(t + 2), vr(t + 3)))
    p("v_permlane32_swap_b32 %s, %s" % (vr(t), vr(t + 2)))
    p("v_add_f32 %s, %s, %s" % (vr(a), vr(t), vr(t + 2)))
    p("v_min_u32 %s, -2, %s" % (vr(a), vr(a)))


def stats_issue(buf, soff):
    for u in range(4):
        p("buffer_load_dwordx4 %s, %s, %s, %s offen offset:%d sc1" % (vr(buf + 4 * u, 4), vr(vSTr), sr(sWS, 4), sr(soff), 512 * u))


def stats_finish(buf, vR, vNM):
    for u in (0, 8):
        p("v_pk_add_f32 %s, %s, %s" % (vr(buf + u, 2), vr(buf + u, 2), vr(buf + u + 2, 2)))
        p("v_pk_add_f32 %s, %s, %s" % (vr(buf + u + 4, 2), vr(buf + u + 4, 2), vr(buf + u + 6, 2)))
    p("v_pk_add_f32 %s, %s, %s" % (vr(buf, 2), vr(buf, 2), vr(buf + 4, 2)))
    p("v_pk_add_f32 %s, %s, %s" % (vr(buf + 8, 2), vr(buf + 8, 2), vr(buf + 12, 2)))
    p("v_pk_add_f32 %s, %s, %s" % (vr(buf, 2), vr(buf, 2), vr(buf + 8, 2)))
    p("v_permlane32_swap_b32 %s, %s" % (vr(buf), vr(buf + 1)))
    p("v_add_f32 %s, %s, %s" % (vr(buf), vr(buf), vr(buf + 1)))
    p("v_mul_f32 %s, %s, %s" % (vr(buf), sr(sINV512), vr(buf)))
    p("v_mov_b32 %s, %s" % (vr(buf + 1), vr(buf)))
    p("v_permlane32_swap_b32 %s, %s" % (vr(buf), vr(buf + 1)))
    p("v_fma_f32 %s, -%s, %s, %s" % (vr(buf + 1), vr(buf), vr(buf), vr(buf + 1)))
    p("v_max_f32 %s, 0, %s" % (vr(buf + 1), vr(buf + 1)))
    p("v_add_f32 %s, %s, %s" % (vr(buf + 1), sr(sEPS5), vr(buf + 1)))
    p("v_rsq_f32 %s, %s" % (vr(vR), vr(buf + 1)))
    p("v_mul_f32 %s, -%s, %s" % (vr(vNM), vr(buf), vr(vR)))


def prologue():
    p("s_cmp_ge_u32 s2, 256")
    p("s_cbranch_scc1 L_exit")
    kern = NAME + "_kernel"
    if SPIN == "entry":
        p("s_memrealtime s[74:75]")
    for base, off in ((sK, 8), (sV, 16), (sWS, 88), (sSH, 24), (sH, 32), (sQ, 0), (sD, 40), (sW, 56), (sWO, 64), (sOUT, 72)):
        p("s_load_dwordx2 %s, s[0:1], %d" % (sr(base, 2), off))
    p("s_getpc_b64 %s" % sr(sP, 2))
    p("s_and_b32 %s, %s, 0xffffff00" % (sr(sP), sr(sP)))
    p("v_lshlrev_b32 %s, 7, v0" % vr(S0))
    p("v_min_u32 %s, L_exit-%s, %s" % (vr(S0), kern, vr(S0)))
    p("global_load_dword %s, %s, %s" % (vr(S0 + 1), vr(S0), sr(sP, 2)))
    if PROFILE:
        p("v_mov_b32 %s, 0" % vr(vPROF))
    p("s_and_b32 %s, s2, 7" % sr(sX))
    p("s_lshr_b32 %s, s2, 3" % sr(sJ))
    p("v_lshrrev_b32 %s, 6, v0" % vr(S0 + 2))
    p("v_and_b32 %s, 63, v0" % vr(S0 + 3))
    p("v_readfirstlane_b32 %s, %s" % (sr(sWV), vr(S0 + 2)))
    srd(sK, 2097152)
    srd(sV, 2097152)
    srd(sWS, WS_BYTES)
    srd(sSH, 4096)
    srd(sH, 2097152)
    srd(sQ, 2097152)
    srd(sW, 1572864)
    srd(sWO, 524288)
    srd(sOUT, 2097152)
    p("s_mov_b32 %s, 4096" % sr(sC4096))
    p("s_mov_b32 %s, 0xffff0000" % sr(sMASK))
    p("s_getreg_b32 %s, hwreg(HW_REG_XCC_ID, 0, 4)" % sr(sXCC))
    p("s_lshl_b32 %s, %s, 21" % (sr(sCLS), sr(sX)))
    sadd(sCLS, sCLS, CLS)
    p("s_mov_b32 %s, 200000" % sr(sLIM))
    p("s_mov_b32 %s, 0" % sr(sERR))
    p("s_mov_b32 %s, 0x358637bd" % sr(sEPS6))
    p("s_mov_b32 %s, 0x3fb8aa3b" % sr(sLOG2E))
    p("s_mov_b32 %s, 0x3727c5ac" % sr(sEPS5))
    p("s_mov_b32 %s, 0x3b000000" % sr(sINV512))
    p("s_lshr_b32 %s, %s, 2" % (sr(sG32L), sr(sJ)))
    p("s_and_b32 %s, %s, 3" % (sr(sKS), sr(sJ)))
    p("s_lshl_b32 %s, %s, 2" % (sr(sKS), sr(sKS)))
    p("s_add_u32 %s, %s, %s" % (sr(sKS), sr(sKS), sr(sWV)))
    p("s_lshr_b32 %s, %s, 3" % (sr(sRG), sr(sJ)))
    p("s_and_b32 %s, %s, 7" % (sr(sM), sr(sJ)))


vLANE = S0 + 3
vKA, vKB, vUT, vT = S0 + 4, S0 + 5, S0 + 6, S0 + 7
KK = S0 + 8
VV = S0 + 20
SH = S0 + 28
HE = S0 + 32
X0 = S0 + 44
KF = S0 + 52
WF = S0 + 74
UF = S0 + 82
UP = S0 + 98
VF = S0 + 106
FF = S0 + 112
vHA, vHB, vCL = S0 + 116, S0 + 117, S0 + 118


def p0_issue():
    l = vr(vLANE)
    t = vr(vT)
    p("s_lshl_b32 %s, %s, 7" % (sr(sT0), sr(sX)))
    p("s_lshl_b32 %s, %s, 5" % (sr(sT1), sr(sWV)))
    p("s_add_u32 %s, %s, %s" % (sr(sT0), sr(sT0), sr(sT1)))
    p("s_lshl_b32 %s, %s, 16" % (sr(sT1), sr(sJ)))
    p("s_add_u32 %s, %s, %s" % (sr(sT1), sr(sT1), sr(sT0)))
    p("v_and_b32 %s, 7, %s" % (t, l))
    p("v_lshrrev_b32 %s, 3, %s" % (vr(vKA), l))
    p("v_lshlrev_b32 %s, 13, %s" % (vr(vKA), vr(vKA)))
    p("v_lshl_add_u32 %s, %s, 2, %s" % (vr(vKB), t, vr(vKA)))
    p("v_add_u32 %s, %s, %s" % (vr(vKB), sr(sT1), vr(vKB)))
    p("v_add_u32 %s, 0xfffff400, %s" % (vr(vKA), vr(vKB)))
    p("v_lshlrev_b32 %s, 4, %s" % (vr(vUT), t))
    p("s_lshl_b32 %s, %s, 2" % (sr(sT2), sr(sT0)))
    p.waitlg()
    stamp("kernarg")
    p("s_load_dwordx2 %s, %s, %d" % (sr(sTAG, 2), sr(sWS, 2), EPOCH))
    for r in range(3):
        p("buffer_load_dword %s, %s, %s, 0 offen offset:%d" % (vr(KK + r), vr(vKA), sr(sK, 4), 1024 * r))
    for r in range(8):
        so = "0" if r < 4 else sr(sC4096)
        p("buffer_load_dword %s, %s, %s, %s offen offset:%d" % (vr(KK + 3 + r), vr(vKB), sr(sK, 4), so, 1024 * (r % 4)))
    p("buffer_load_dwordx4 %s, %s, %s, %s offen" % (vr(SH, 4), vr(vUT), sr(sSH, 4), sr(sT2)))
    for r in range(8):
        so = "0" if r < 4 else sr(sC4096)
        p("buffer_load_dword %s, %s, %s, %s offen offset:%d" % (vr(VV + r), vr(vKB), sr(sV, 4), so, 1024 * (r % 4)))
    p("s_lshl_b32 %s, %s, 5" % (sr(sT0), sr(sX)))
    p("s_add_u32 %s, %s, %s" % (sr(sT0), sr(sT0), sr(sJ)))
    p("s_lshl_b32 %s, %s, 2" % (sr(sT1), sr(sT0)))
    p("s_add_u32 %s, %s, %s" % (sr(sD), sr(sD), sr(sT1)))
    p("s_addc_u32 %s, %s, 0" % (sr(sD + 1), sr(sD + 1)))
    p("s_load_dword %s, %s, 0" % (sr(sDV), sr(sD, 2)))
    p("s_lshl_b32 %s, %s, 13" % (sr(sT0), sr(sT0)))
    p("v_lshlrev_b32 %s, 5, v0" % vr(vHA))
    p("v_add_u32 %s, %s, %s" % (vr(vHA), sr(sT0), vr(vHA)))
    p("v_add_u32 %s, -8, %s" % (vr(vHB), vr(vHA)))
    p("buffer_load_dwordx2 %s, %s, %s, 0 offen" % (vr(HE, 2), vr(vHB), sr(sH, 4)))
    p("buffer_load_dwordx4 %s, %s, %s, 0 offen" % (vr(HE + 2, 4), vr(vHA), sr(sH, 4)))
    p("buffer_load_dwordx4 %s, %s, %s, 0 offen offset:16" % (vr(HE + 6, 4), vr(vHA), sr(sH, 4)))
    p("s_lshl_b32 %s, %s, 18" % (sr(sT0), sr(sX)))
    p("s_lshl_b32 %s, %s, 15" % (sr(sT1), sr(sG32L)))
    p("s_add_u32 %s, %s, %s" % (sr(sT0), sr(sT0), sr(sT1)))
    p("s_lshl_b32 %s, %s, 6" % (sr(sT1), sr(sKS)))
    p("s_add_u32 %s, %s, %s" % (sr(sT0), sr(sT0), sr(sT1)))
    p("v_and_b32 %s, 31, %s" % (t, l))
    p("v_lshlrev_b32 %s, 10, %s" % (vr(vXrow), t))
    p("v_and_b32 %s, 32, %s" % (t, l))
    p("v_add3_u32 %s, %s, %s, %s" % (vr(vXrow), vr(vXrow), t, sr(sT0)))
    p("buffer_load_dwordx4 %s, %s, %s, 0 offen" % (vr(X0, 4), vr(vXrow), sr(sQ, 4)))
    p("buffer_load_dwordx4 %s, %s, %s, 0 offen offset:16" % (vr(X0 + 4, 4), vr(vXrow), sr(sQ, 4)))


def clears():
    for r in range(4):
        p("v_mov_b32 %s, -1" % vr(FF + r))
    p("v_lshlrev_b32 %s, 4, v0" % vr(vCL))
    st = "buffer_store_dwordx4 %s, %s, %s, %%s offen sc1" % (vr(FF, 4), vr(vCL), sr(sWS, 4))
    p("s_lshl_b32 %s, %s, 5" % (sr(sT0), sr(sX)))
    p("s_add_u32 %s, %s, %s" % (sr(sT0), sr(sT0), sr(sJ)))
    p("s_lshl_b32 %s, %s, 13" % (sr(sT0), sr(sT0)))
    sadd(sT0, sT0, YB)
    p(st % sr(sT0))
    sadd(sT0, sT0, 4096)
    p(st % sr(sT0))
    p("s_mul_i32 %s, s2, 4608" % sr(sT0))
    sadd(sT0, sT0, KVP)
    p(st % sr(sT0))
    p("s_mul_i32 %s, %s, 5120" % (sr(sT1), sr(sJ)))
    p("s_add_u32 %s, %s, %s" % (sr(sT1), sr(sT1), sr(sCLS)))
    sadd(sT1, sT1, C_STATE)
    p(st % sr(sT1))
    skip = p.newlabel("clr")
    p("s_cmp_lg_u32 %s, 0" % sr(sWV))
    p("s_cbranch_scc1 %s" % skip)
    sadd(sT1, sT1, 4096)
    p(st % sr(sT1))
    sadd(sT0, sT0, 4096)
    p("s_mov_b32 exec_hi, 0")
    p(st % sr(sT0))
    p("s_mov_b64 exec, -1")
    p.label(skip)


def addresses():
    l = vr(vLANE)
    t, t2, t3 = vr(vT), vr(VF), vr(VF + 1)
    p("v_lshlrev_b32 %s, 4, %s" % (vr(vL16), l))
    p("v_lshlrev_b32 %s, 3, %s" % (vr(vL8), l))
    p("s_lshl_b32 %s, %s, 17" % (sr(sT0), sr(sKS)))
    p("s_lshl_b32 %s, %s, 10" % (sr(sT1), sr(sX)))
    p("s_add_u32 %s, %s, %s" % (sr(sT0), sr(sT0), sr(sT1)))
    p("s_lshl_b32 %s, %s, 7" % (sr(sT1), sr(sG32L)))
    p("s_add_u32 %s, %s, %s" % (sr(sT0), sr(sT0), sr(sT1)))
    p("v_and_b32 %s, 31, %s" % (t, l))
    p("v_lshrrev_b32 %s, 5, %s" % (t2, l))
    p("v_lshlrev_b32 %s, 16, %s" % (t3, t2))
    p("v_lshl_add_u32 %s, %s, 2, %s" % (vr(vYa), t, t3))
    p("v_add_u32 %s, %s, %s" % (vr(vYa), sr(sT0), vr(vYa)))
    p("s_lshl_b32 %s, %s, 12" % (sr(sT0), sr(sG32L)))
    p("s_lshr_b32 %s, %s, 1" % (sr(sT1), sr(sKS)))
    p("s_lshl_b32 %s, %s, 9" % (sr(sT1), sr(sT1)))
    p("s_add_u32 %s, %s, %s" % (sr(sT0), sr(sT0), sr(sT1)))
    p("s_and_b32 %s, %s, 1" % (sr(sT1), sr(sKS)))
    p("s_lshl_b32 %s, %s, 3" % (sr(sT1), sr(sT1)))
    p("s_add_u32 %s, %s, %s" % (sr(sT0), sr(sT0), sr(sT1)))
    p("v_lshlrev_b32 %s, 2, %s" % (t3, t2))
    p("v_lshl_add_u32 %s, %s, 4, %s" % (vr(vSTw), t, t3))
    p("v_add_u32 %s, %s, %s" % (vr(vSTw), sr(sT0), vr(vSTw)))
    p("v_lshlrev_b32 %s, 11, %s" % (t3, t2))
    p("v_lshl_add_u32 %s, %s, 4, %s" % (vr(vSTr), t, t3))
    p("s_and_b32 %s, %s, 1" % (sr(sT0), sr(sWV)))
    p("s_lshl_b32 %s, %s, 7" % (sr(sT0), sr(sT0)))
    sadd(sT0, sT0, TB)
    p("v_lshlrev_b32 %s, 8, %s" % (t3, t2))
    p("v_lshl_add_u32 %s, %s, 2, %s" % (vr(vTBw), t, t3))
    p("v_add_u32 %s, %s, %s" % (vr(vTBw), sr(sT0), vr(vTBw)))
    p("s_lshl_b32 %s, %s, 15" % (sr(sT0), sr(sG32L)))
    p("s_lshl_b32 %s, %s, 10" % (sr(sT1), sr(sKS)))
    p("s_add_u32 %s, %s, %s" % (sr(sT0), sr(sT0), sr(sT1)))
    p("v_lshrrev_b32 %s, 4, %s" % (t3, t))
    p("v_lshlrev_b32 %s, 14, %s" % (vr(vXw), t3))
    p("v_lshl_add_u32 %s, %s, 9, %s" % (vr(vXw), t2, vr(vXw)))
    p("v_and_b32 %s, 15, %s" % (t, l))
    p("v_lshl_add_u32 %s, %s, 4, %s" % (vr(vXw), t, vr(vXw)))
    p("v_add_u32 %s, %s, %s" % (vr(vXw), sr(sT0), vr(vXw)))
    p("v_lshrrev_b32 %s, 4, %s" % (t2, l))
    p("v_lshrrev_b32 %s, 1, %s" % (t3, t2))
    p("v_lshlrev_b32 %s, 9, %s" % (vr(vSTATEw), t3))
    p("v_lshl_add_u32 %s, %s, 4, %s" % (vr(vSTATEw), t, vr(vSTATEw)))
    p("v_and_b32 %s, 1, %s" % (t3, t2))
    p("v_lshl_add_u32 %s, %s, 3, %s" % (vr(vSTATEw), t3, vr(vSTATEw)))
    p("s_lshl_b32 %s, %s, 16" % (sr(sT0), sr(sRG)))
    p("s_lshl_b32 %s, %s, 2" % (sr(sT1), sr(sM)))
    p("s_add_u32 %s, %s, %s" % (sr(sT1), sr(sT1), sr(sWV)))
    p("s_lshl_b32 %s, %s, 10" % (sr(sT1), sr(sT1)))
    p("s_add_u32 %s, %s, %s" % (sr(sT0), sr(sT0), sr(sT1)))
    p("v_add_u32 %s, %s, %s" % (vr(vPQw), sr(sT0), vr(vSTATEw)))
    p("v_lshlrev_b32 %s, 4, %s" % (vr(vTB1), t2))
    p("v_add_u32 %s, 0x%x, %s" % (vr(vTB1), TB, vr(vTB1)))
    p("v_lshlrev_b32 %s, 2, %s" % (vr(vTB2), t))
    p("v_add_u32 %s, 0x%x, %s" % (vr(vTB2), TB, vr(vTB2)))
    p("v_lshlrev_b32 %s, 4, %s" % (t3, t2))
    p("v_lshl_add_u32 %s, %s, 6, %s" % (vr(vZr), t, t3))
    a, b = vr(VF + 2), vr(VF + 3)
    p("v_and_b32 %s, 1, %s" % (a, t))
    p("v_lshlrev_b32 %s, 4, %s" % (a, a))
    p("v_mov_b32 %s, 0x3f80" % b)
    p("v_lshlrev_b32 %s, %s, %s" % (a, a, b))
    p("v_lshrrev_b32 %s, 1, %s" % (b, t))
    p("v_lshlrev_b32 %s, 1, %s" % (t3, t2))
    p("v_cmp_eq_u32 vcc, %s, %s" % (b, t3))
    p("v_cndmask_b32 %s, 0, %s, vcc" % (vr(vSEL), a))
    p("v_add_u32 %s, 1, %s" % (t3, t3))
    p("v_cmp_eq_u32 vcc, %s, %s" % (b, t3))
    p("v_cndmask_b32 %s, 0, %s, vcc" % (vr(vSEL + 1), a))
    p("v_mov_b32 %s, %s" % (vr(vSEL + 2), vr(vSEL)))
    p("v_mov_b32 %s, %s" % (vr(vSEL + 3), vr(vSEL + 1)))
    for r in range(4):
        p("v_mov_b32 %s, 0x3f803f80" % vr(vONE + r))
    p("v_lshrrev_b32 %s, 2, %s" % (a, t))
    p("v_lshl_add_u32 %s, %s, 3, %s" % (a, t2, a))
    p("v_bfe_u32 %s, %s, 1, 1" % (b, a))
    p("v_and_b32 %s, 1, %s" % (t3, t2))
    p("v_lshl_add_u32 %s, %s, 1, %s" % (b, t3, b))
    p("v_xor_b32 %s, %s, %s" % (b, sr(sWV), b))
    p("v_lshlrev_b32 %s, 7, %s" % (a, a))
    p("v_lshl_add_u32 %s, %s, 5, %s" % (a, b, a))
    p("v_and_b32 %s, 3, %s" % (b, t))
    p("v_lshl_add_u32 %s, %s, 3, %s" % (vr(vTrW), b, a))
    p("v_lshrrev_b32 %s, 2, %s" % (a, t))
    p("v_xor_b32 %s, %s, %s" % (b, sr(sWV), a))
    p("v_lshlrev_b32 %s, 6, %s" % (b, b))
    p("v_lshl_add_u32 %s, %s, 8, %s" % (b, a, b))
    p("v_lshrrev_b32 %s, 1, %s" % (a, t2))
    p("v_lshl_add_u32 %s, %s, 10, %s" % (b, a, b))
    p("v_and_b32 %s, 1, %s" % (a, t2))
    p("v_lshl_add_u32 %s, %s, 4, %s" % (b, a, b))
    p("v_and_b32 %s, 1, %s" % (a, t))
    p("v_lshl_add_u32 %s, %s, 5, %s" % (b, a, b))
    p("v_bfe_u32 %s, %s, 1, 1" % (a, t))
    p("v_lshl_add_u32 %s, %s, 3, %s" % (vr(vTrO), a, b))
    p("v_lshlrev_b32 %s, 2, %s" % (a, t2))
    p("v_xor_b32 %s, %s, %s" % (a, t, a))
    p("v_lshlrev_b32 %s, 4, %s" % (a, a))
    p("v_lshl_add_u32 %s, %s, 10, %s" % (vr(vDmaO), t2, a))


def dmaw_address():
    l = vr(vLANE)
    a, b = vr(VF), vr(VF + 1)
    p("v_lshrrev_b32 %s, 3, %s" % (a, l))
    p("v_and_b32 %s, 2, %s" % (b, a))
    p("v_mul_u32_u24 %s, 0xc00, %s" % (a, a))
    p("v_xor_b32 %s, %s, %s" % (b, l, b))
    p("v_and_b32 %s, 7, %s" % (b, b))
    p("v_lshl_add_u32 %s, %s, 4, %s" % (vr(vDmaW), b, a))


def p0_compute():
    for d in range(4):
        src0 = SH + (d >> 1)
        src1 = SH + 2 + (d >> 1)
        if d & 1:
            p("v_and_b32 %s, %s, %s" % (vr(WF + 2 * d), sr(sMASK), vr(src0)))
            p("v_and_b32 %s, %s, %s" % (vr(WF + 2 * d + 1), sr(sMASK), vr(src1)))
        else:
            p("v_lshlrev_b32 %s, 16, %s" % (vr(WF + 2 * d), vr(src0)))
            p("v_lshlrev_b32 %s, 16, %s" % (vr(WF + 2 * d + 1), vr(src1)))
    for r in range(11):
        unpack(KF + 2 * r, KK + r)
    for t in range(8):
        p("v_pk_mul_f32 %s, %s, %s" % (vr(UF + 2 * t, 2), vr(KF + 2 * t, 2), vr(WF + 6, 2)))
    for d in (2, 1, 0):
        for t in range(8):
            p("v_pk_fma_f32 %s, %s, %s, %s" % (vr(UF + 2 * t, 2), vr(KF + 2 * (t + 3 - d), 2), vr(WF + 2 * d, 2), vr(UF + 2 * t, 2)))
    for t in range(8):
        unpack(KF + 2 * t, VV + t)
    for t in range(8):
        p("v_pk_mul_f32 %s, %s, %s" % (vr(UF + 2 * t, 2), vr(UF + 2 * t, 2), vr(KF + 2 * t, 2)))
    for c in range(2):
        for n in range(4):
            p("v_cvt_pk_bf16_f32 %s, %s, %s" % (vr(UP + 4 * c + n), vr(UF + 2 * (7 - 2 * n) + c), vr(UF + 2 * (6 - 2 * n) + c)))


def ut_address():
    l = vr(vLANE)
    t = vr(vT)
    p("s_lshl_b32 %s, %s, 16" % (sr(sT0), sr(sWV)))
    p("s_lshl_b32 %s, %s, 7" % (sr(sT1), sr(sJ)))
    p("s_sub_u32 %s, %s, %s" % (sr(sT0), sr(sT0), sr(sT1)))
    sadd(sT0, sT0, 4080)
    p("v_and_b32 %s, 7, %s" % (t, l))
    p("v_lshlrev_b32 %s, 13, %s" % (vr(vUT), t))
    p("v_lshrrev_b32 %s, 3, %s" % (t, l))
    p("v_lshlrev_b32 %s, 4, %s" % (t, t))
    p("v_sub_u32 %s, %s, %s" % (vr(vUT), vr(vUT), t))
    p("v_add_u32 %s, %s, %s" % (vr(vUT), sr(sT0), vr(vUT)))


def ut_store(soff, sc, tag=None):
    p("buffer_store_dwordx4 %s, %s, %s, %s offen%s" % (vr(UP, 4), vr(vUT), sr(sWS, 4), sr(soff), sc), tag)
    sadd(sT3, soff, 4096)
    p("buffer_store_dwordx4 %s, %s, %s, %s offen%s" % (vr(UP + 4, 4), vr(vUT), sr(sWS, 4), sr(sT3), sc), tag)


def h_copies():
    A, B = KF, KF + 8
    C = KF + 16
    t = vr(vT)
    wa = vr(vHA)
    p("v_and_b32 %s, 127, v0" % t)
    p("s_lshr_b32 %s, %s, 1" % (sr(sT0), sr(sWV)))
    p("s_lshl_b32 %s, %s, 16" % (sr(sT1), sr(sDV)))
    p("s_and_b32 %s, %s, %s" % (sr(sT2), sr(sDV), sr(sMASK)))
    p("s_cmp_eq_u32 %s, 0" % sr(sT0))
    p("s_cselect_b32 %s, %s, %s" % (sr(sT1), sr(sT1), sr(sT2)))
    p("v_cmp_eq_u32 vcc, 0, %s" % t)
    p("v_lshlrev_b32 %s, 16, %s" % (vr(C), vr(HE + 2)))
    p("v_add_f32 %s, %s, %s" % (vr(C), sr(sT1), vr(C)))
    p("v_cvt_pk_bf16_f32 %s, %s, %s" % (vr(C), vr(C), vr(C)))
    p("v_bfi_b32 %s, %s, %s, %s" % (vr(C), sr(sMASK), vr(HE + 2), vr(C)))
    p("v_cndmask_b32 %s, %s, %s, vcc" % (vr(HE + 2), vr(HE + 2), vr(C)))
    p("v_cndmask_b32_e64 %s, %s, 0, vcc" % (vr(HE), vr(HE)))
    p("v_cndmask_b32_e64 %s, %s, 0, vcc" % (vr(HE + 1), vr(HE + 1)))
    p("s_mul_i32 %s, %s, %d" % (sr(sT0), sr(sT0), HCH))
    sadd(sT0, sT0, HB + 32)
    p("v_lshlrev_b32 %s, 5, %s" % (wa, t))
    p("v_add_u32 %s, %s, %s" % (wa, sr(sT0), wa))
    p("ds_write_b128 %s, %s offset:%d" % (wa, vr(HE + 2, 4), 3 * HCOPY))
    p("ds_write_b128 %s, %s offset:%d" % (wa, vr(HE + 6, 4), 3 * HCOPY + 16))
    for n in range(8):
        p("v_alignbit_b32 %s, %s, %s, 16" % (vr(A + n), vr(HE + n + 1), vr(HE + n)))
    p("ds_write_b128 %s, %s offset:%d" % (wa, vr(A, 4), 0))
    p("ds_write_b128 %s, %s offset:%d" % (wa, vr(A + 4, 4), 16))
    for n in range(8):
        p("v_alignbit_b32 %s, %s, %s, 16" % (vr(B + n), vr(HE + n + 2), vr(HE + n + 1)))
    p("ds_write_b128 %s, %s offset:%d" % (wa, vr(B, 4), 2 * HCOPY))
    p("ds_write_b128 %s, %s offset:%d" % (wa, vr(B + 4, 4), 2 * HCOPY + 16))
    for n in range(8):
        p("v_mov_b32 %s, %s" % (vr(UF + n), vr(HE + n + 1)))
    p("ds_write_b128 %s, %s offset:%d" % (wa, vr(UF, 4), HCOPY))
    p("ds_write_b128 %s, %s offset:%d" % (wa, vr(UF + 4, 4), HCOPY + 16))


def lds_zero():
    z = KF
    t, a = vr(vT), vr(vHB)
    for r in range(4):
        p("v_mov_b32 %s, 0" % vr(z + r))
    skip = p.newlabel("zero")
    skip2 = p.newlabel("zero")
    p("s_cmp_lg_u32 %s, 0" % sr(sWV))
    p("s_cbranch_scc1 %s" % skip)
    p("v_lshrrev_b32 %s, 5, v0" % t)
    p("v_mul_u32_u24 %s, %d, %s" % (a, UCH - 512, t))
    p("v_lshl_add_u32 %s, v0, 4, %s" % (a, a))
    p("v_add_u32 %s, 0x%x, %s" % (a, UB + 4096, a))
    p("ds_write_b128 %s, %s" % (a, vr(z, 4)))
    p.label(skip)
    p("s_cmp_lg_u32 %s, 1" % sr(sWV))
    p("s_cbranch_scc1 %s" % skip2)
    p("v_bfe_u32 %s, v0, 1, 3" % t)
    p("v_mul_u32_u24 %s, %d, %s" % (a, HCOPY, t))
    p("v_and_b32 %s, 1, v0" % t)
    p("v_lshl_add_u32 %s, %s, 4, %s" % (a, t, a))
    p("v_add_u32 %s, 0x%x, %s" % (a, HB, a))
    p("ds_write_b128 %s, %s" % (a, vr(z, 4)))
    p.label(skip2)


def afrag_preload():
    l = vr(vLANE)
    a, t, t2 = vr(vHA), vr(vT), vr(vHB)
    p("s_lshr_b32 %s, %s, 1" % (sr(sT0), sr(sWV)))
    p("s_mul_i32 %s, %s, %d" % (sr(sT0), sr(sT0), HCH))
    p("s_and_b32 %s, %s, 1" % (sr(sT1), sr(sWV)))
    p("s_lshl_b32 %s, %s, 8" % (sr(sT1), sr(sT1)))
    p("s_add_u32 %s, %s, %s" % (sr(sT0), sr(sT0), sr(sT1)))
    sadd(sT0, sT0, HB + 8)
    p("v_and_b32 %s, 3, %s" % (t, l))
    p("v_mul_u32_u24 %s, %d, %s" % (a, HCOPY, t))
    p("v_and_b32 %s, 12, %s" % (t, l))
    p("v_lshl_add_u32 %s, %s, 1, %s" % (a, t, a))
    p("v_and_b32 %s, 48, %s" % (t, l))
    p("v_add3_u32 %s, %s, %s, %s" % (a, a, t, sr(sT0)))
    for rho in range(4):
        for aa in range(8):
            off = 512 * aa + 64 * rho
            r = aH + 4 * (8 * rho + aa)
            p("ds_read_b64 %s, %s offset:%d" % (ar(r, 2), a, off))
            p("ds_read_b64 %s, %s offset:%d" % (ar(r + 2, 2), a, off + 8))


def handoff_ut():
    F = KF
    E = KF + 4
    FB = KF + 8
    top, fast, got = p.newlabel("h1"), p.newlabel("h1fast"), p.newlabel("h1got")
    slow, slowtop = p.newlabel("h1slow"), p.newlabel("h1slowtop")
    p("s_add_u32 %s, %s, %s" % (sr(sP), sr(sTAG), sr(sXCC)))
    p("s_addc_u32 %s, %s, 0" % (sr(sP + 1), sr(sTAG + 1)))
    sadd(sT0, sCLS, C_FLAGA)
    p("v_and_b32 %s, 0xff, %s" % (vr(E), vr(vL8)))
    p("s_mov_b32 %s, %d" % (sr(sCNT), 0 if FORCE_SLOW else 48))
    p.label(top)
    p("buffer_load_dwordx2 %s, %s, %s, %s offen sc1" % (vr(F, 2), vr(E), sr(sWS, 4), sr(sT0)))
    p("v_cmp_ne_u64 vcc, %s, %s" % (sr(sP, 2), vr(F, 2)))
    if not FORCE_SLOW:
        p("s_cbranch_vccz %s" % fast)
    p("s_sub_u32 %s, %s, 1" % (sr(sCNT), sr(sCNT)))
    p("s_cbranch_scc0 %s" % top)
    p("s_branch %s" % slow)
    p.label(fast)
    p("s_mov_b32 %s, 1" % sr(sMODE))
    sadd(sUSRC, sCLS, C_UTA)
    p.label(got)

    def blk():
        p.label(slow)
        p("s_lshl_b32 %s, %s, 18" % (sr(sUSRC), sr(sX)))
        sadd(sUSRC, sUSRC, UTB)
        ut_store(sUSRC, " sc1")
        p.waitvm()
        p("s_lshl_b32 %s, %s, 10" % (sr(sT1), sr(sX)))
        sadd(sT1, sT1, FLAGB)
        p("s_lshl_b32 %s, %s, 2" % (sr(sT2), sr(sJ)))
        p("s_add_u32 %s, %s, %s" % (sr(sT2), sr(sT2), sr(sWV)))
        p("s_lshl_b32 %s, %s, 3" % (sr(sT2), sr(sT2)))
        p("s_add_u32 %s, %s, %s" % (sr(sT2), sr(sT2), sr(sT1)))
        flag_store(sT2, local=False)
        p("s_mov_b32 %s, %s" % (sr(sCNT), sr(sLIM)))
        p("s_mov_b32 %s, 0" % sr(sMODE))
        p.label(slowtop)
        p("buffer_load_dwordx2 %s, %s, %s, %s offen sc1" % (vr(F, 2), vr(E), sr(sWS, 4), sr(sT0)))
        p("buffer_load_dwordx2 %s, %s, %s, %s offen sc1" % (vr(FB, 2), vr(vL8), sr(sWS, 4), sr(sT1)))
        p("buffer_load_dwordx2 %s, %s, %s, %s offen offset:512 sc1" % (vr(FB + 2, 2), vr(vL8), sr(sWS, 4), sr(sT1)))
        if not FORCE_SLOW:
            p("v_cmp_ne_u64 vcc, %s, %s" % (sr(sP, 2), vr(F, 2)))
            p("s_cbranch_vccz %s" % fast)
        p("v_cmp_ne_u64 vcc, %s, %s" % (sr(sTAG, 2), vr(FB, 2)))
        p("v_cmp_ne_u64 %s, %s, %s" % (sr(sTS, 2), sr(sTAG, 2), vr(FB + 2, 2)))
        p("s_or_b64 vcc, vcc, %s" % sr(sTS, 2))
        p("s_cbranch_vccz %s" % got)
        p("s_sub_u32 %s, %s, 1" % (sr(sCNT), sr(sCNT)))
        p("s_cbranch_scc0 %s" % slowtop)
        p("s_mov_b32 %s, 0" % sr(sLIM))
        p("s_or_b32 %s, %s, 1" % (sr(sERR), sr(sERR)))
        p("s_branch %s" % got)

    tail.append(blk)
    p("s_lshl_b32 %s, %s, 13" % (sr(sT0), sr(sJ)))
    p("s_add_u32 %s, %s, %s" % (sr(sT0), sr(sT0), sr(sUSRC)))
    p("s_lshl_b32 %s, %s, 11" % (sr(sT1), sr(sWV)))
    p("s_add_u32 %s, %s, %s" % (sr(sT0), sr(sT0), sr(sT1)))
    p("s_lshr_b32 %s, %s, 1" % (sr(sT2), sr(sWV)))
    p("s_lshl_b32 %s, %s, 9" % (sr(sT2), sr(sT2)))
    p("s_add_u32 %s, %s, %s" % (sr(sT1), sr(sT1), sr(sT2)))
    p("s_add_u32 m0, %s, %d" % (sr(sT1), UB))
    p("buffer_load_dwordx4 %s, %s, %s offen sc1 lds" % (vr(vL16), sr(sWS, 4), sr(sT0)))
    p("buffer_load_dwordx4 %s, %s, %s offen offset:1024 sc1 lds" % (vr(vL16), sr(sWS, 4), sr(sT0)))


CACC = S0 + 8
CB = S0 + 40
CR = S0 + 72
vCB, vCE, vYw = S0 + 4, S0 + 5, S0 + 6


def conv_addresses():
    l = vr(vLANE)
    t = vr(vT)
    p("s_lshr_b32 %s, %s, 1" % (sr(sT0), sr(sWV)))
    p("s_mul_i32 %s, %s, %d" % (sr(sT0), sr(sT0), UCH))
    p("s_and_b32 %s, %s, 1" % (sr(sT1), sr(sWV)))
    p("s_lshl_b32 %s, %s, 8" % (sr(sT1), sr(sT1)))
    p("s_add_u32 %s, %s, %s" % (sr(sT0), sr(sT0), sr(sT1)))
    sadd(sT0, sT0, UB + 480)
    p("v_and_b32 %s, 15, %s" % (t, l))
    p("v_lshlrev_b32 %s, 5, %s" % (vr(vCB), t))
    p("v_sub_u32 %s, %s, %s" % (vr(vCB), sr(sT0), vr(vCB)))
    p("v_lshlrev_b32 %s, 6, %s" % (vr(vYw), t))
    p("v_and_b32 %s, 48, %s" % (t, l))
    p("v_add_u32 %s, %s, %s" % (vr(vCB), vr(vCB), t))
    p("v_add_u32 %s, %s, %s" % (vr(vYw), vr(vYw), t))


def conv(extra):
    def rd(m, rho):
        p("ds_read_b128 %s, %s offset:%d" % (vr(CB + 4 * m, 4), vr(vCB), 512 * (7 - m) + 64 * rho))

    def mm(a, m, rho, first):
        acc = vr(CACC + 4 * (a + m), 4)
        p("v_mfma_f32_16x16x32_bf16 %s, %s, %s, %s" % (acc, ar(aH + 4 * (8 * rho + a), 4), vr(CB + 4 * m, 4), "0" if first else acc))

    for m in range(8):
        rd(m, 0)
    extra()
    for rho in range(3):
        for m in range(8):
            for a in range(8 - m):
                mm(a, m, rho, rho == 0 and m == 0)
            rd(m, rho + 1)
    p("s_lshl_b32 %s, %s, 5" % (sr(sT0), sr(sX)))
    p("s_add_u32 %s, %s, %s" % (sr(sT0), sr(sT0), sr(sJ)))
    p("s_lshl_b32 %s, %s, 13" % (sr(sT0), sr(sT0)))
    sadd(sT0, sT0, YB)
    labs = [p.newlabel("cv%d" % w) for w in range(4)]
    join = p.newlabel("cvjoin")
    for w in range(1, 4):
        p("s_cmp_eq_u32 %s, %d" % (sr(sWV), w))
        p("s_cbranch_scc1 %s" % labs[w])
    for w in range(4):
        p.label(labs[w])
        keep = (w, 7 - w)
        send = [jt for jt in range(7, -1, -1) if jt not in keep]
        pend = []
        for jt in send + list(keep):
            for a in range(jt + 1):
                mm(a, jt - a, 3, False)
            if pend:
                j2 = pend.pop()
                d = min(j2, 7 - j2)
                slot = (w - d - 1) % 4
                p("ds_write_b128 %s, %s offset:%d" % (vr(vL16), vr(CACC + 4 * j2, 4), EX + (d * 3 + slot) * 2048 + (0 if j2 < 4 else 1024)))
            if jt in send:
                pend.append(jt)
        barrier()
        for slot in range(3):
            for k2 in range(2):
                p("ds_read_b128 %s, %s offset:%d" % (vr(CR + 8 * slot + 4 * k2, 4), vr(vL16), EX + (w * 3 + slot) * 2048 + 1024 * k2))
        partner = w ^ 1
        others = [o for o in range(4) if (o >> 1) != (w >> 1)]
        sl = lambda o: (o - w - 1) % 4
        for k2 in range(2):
            jt = keep[k2]
            own = CACC + 4 * jt
            pr = CR + 8 * sl(partner) + 4 * k2
            o0 = CR + 8 * sl(others[0]) + 4 * k2
            o1 = CR + 8 * sl(others[1]) + 4 * k2
            for e in (0, 2):
                p("v_pk_add_f32 %s, %s, %s" % (vr(own + e, 2), vr(own + e, 2), vr(pr + e, 2)))
                p("v_pk_add_f32 %s, %s, %s" % (vr(o0 + e, 2), vr(o0 + e, 2), vr(o1 + e, 2)))
            lo, hi = (own, o0) if (w >> 1) == 0 else (o0, own)
            for e in range(4):
                p("v_cvt_pk_bf16_f32 %s, %s, %s" % (vr(pr + e), vr(lo + e), vr(hi + e)))
            for e in range(4):
                p("v_min_u32 %s, -2, %s" % (vr(pr + e), vr(pr + e)))
            if jt >= 4:
                sadd(sT0, sT0, 4096)
            p("buffer_store_dwordx4 %s, %s, %s, %s offen offset:%d sc1" % (vr(pr, 4), vr(vYw), sr(sWS, 4), sr(sT0), 1024 * (jt % 4)))
        if w < 3:
            p("s_branch %s" % join)
    p.label(join)


def hello_check():
    F = S0 + 8
    p("s_mov_b32 %s, 0x%x" % (sr(sT0), HELLO))

    def issue():
        for u in range(4):
            p("buffer_load_dwordx2 %s, %s, %s, %s offen offset:%d sc1" % (vr(F + 2 * u, 2), vr(vL8), sr(sWS, 4), sr(sT0), 512 * u))

    def check():
        p("v_cmp_ne_u64 vcc, %s, %s" % (sr(sTAG, 2), vr(F, 2)))
        for u in range(1, 4):
            p("v_cmp_ne_u64 %s, %s, %s" % (sr(sP, 2), sr(sTAG, 2), vr(F + 2 * u, 2)))
            p("s_or_b64 vcc, vcc, %s" % sr(sP, 2))

    poll(issue, check, 1)


def colsum(a0, dst, transposed):
    acc = S0 + 8
    for ks in range(16):
        A, B = vr(vONE, 4), ar(a0 + 4 * ks, 4)
        if transposed:
            A, B = B, A
        p("v_mfma_f32_16x16x32_bf16 %s, %s, %s, %s" % (vr(acc, 4), A, B, "0" if ks == 0 else vr(acc, 4)))
    for e in range(4 if transposed else 1):
        p("v_mov_b32 %s, %s" % (vr(dst + e), vr(acc + e)))


N0 = S0 + 32


def normalise(vR, vNM):
    for e in range(0, 16, 2):
        p("v_pk_fma_f32 %s, %s, %s, %s op_sel_hi:[1,0,0]" % (vr(N0 + e, 2), vr(vX + e, 2), vr(vR, 2), vr(vNM, 2)))


def gate_and_publish(L):
    XP = S0 + 48
    for e in range(0, 16, 2):
        p("v_pk_fma_f32 %s, %s, %s, %s" % (vr(vX + e, 2), vr(N0 + e, 2), vr(vY + e, 2), vr(vX + e, 2)))
    for e in range(8):
        p("v_cvt_pk_bf16_f32 %s, %s, %s" % (vr(XP + e), vr(vX + 2 * e), vr(vX + 2 * e + 1)))
    sadd(sT0, sCLS, C_X + L * 0x40000)
    local_stores(
        [
            "buffer_store_dwordx4 %s, %s, %s, %s offen" % (vr(XP, 4), vr(vXw), sr(sWS, 4), sr(sT0)),
            "buffer_store_dwordx4 %s, %s, %s, %s offen offset:256" % (vr(XP + 4, 4), vr(vXw), sr(sWS, 4), sr(sT0)),
        ],
        "xst",
    )
    stats_compute(S0 + 56, S0 + 58)
    p("s_lshl_b32 %s, %s, 4" % (sr(sT1), sr(sG32L)))
    p("s_add_u32 %s, %s, %s" % (sr(sT1), sr(sT1), sr(sKS)))
    p("s_lshl_b32 %s, %s, 3" % (sr(sT1), sr(sT1)))
    p("s_add_u32 %s, %s, %s" % (sr(sT1), sr(sT1), sr(sCLS)))
    sadd(sT1, sT1, C_FLAGX + L * 0x400)
    p.waitvm("xst")
    flag_store(sT1)
    sadd(sT0, sCLS, st_off(1 + 2 * L))
    local_stores(["buffer_store_dword %s, %s, %s, %s offen" % (vr(S0 + 56), vr(vSTw), sr(sWS, 4), sr(sT0))])


GA = S0 + 8
GK, GV, GQ = S0 + 40, S0 + 56, S0 + 72
GT = S0 + 88


def gemm_kv(L):
    F = GT
    p("s_lshl_b32 %s, %s, 1" % (sr(sT0), sr(sRG)))
    p("s_lshr_b32 %s, %s, 1" % (sr(sT1), sr(sWV)))
    p("s_add_u32 %s, %s, %s" % (sr(sT0), sr(sT0), sr(sT1)))
    p("s_lshl_b32 %s, %s, 7" % (sr(sT0), sr(sT0)))
    p("s_add_u32 %s, %s, %s" % (sr(sT0), sr(sT0), sr(sCLS)))
    sadd(sT0, sT0, C_FLAGX + L * 0x400)
    p("v_and_b32 %s, 0x7f, %s" % (vr(F + 2), vr(vL8)))
    p("s_lshl_b32 %s, %s, 16" % (sr(sT1), sr(sRG)))
    p("s_lshl_b32 %s, %s, 14" % (sr(sT2), sr(sWV)))
    p("s_add_u32 %s, %s, %s" % (sr(sT1), sr(sT1), sr(sT2)))
    p("s_add_u32 %s, %s, %s" % (sr(sT1), sr(sT1), sr(sCLS)))
    sadd(sT1, sT1, C_X + L * 0x40000)
    p("s_add_u32 m0, %s, %d" % (sr(sT2), AB))
    poll(
        lambda: p("buffer_load_dwordx2 %s, %s, %s, %s offen sc1" % (vr(F, 2), vr(F + 2), sr(sWS, 4), sr(sT0))),
        lambda: p("v_cmp_ne_u64 vcc, %s, %s" % (sr(sTAG, 2), vr(F, 2))),
        3,
    )
    stamp("xflag%d" % L)
    for s in range(4):
        for k2 in range(4):
            p("buffer_load_dwordx4 %s, %s, %s offen offset:%d sc1 lds" % (vr(vL16), sr(sWS, 4), sr(sT1), 1024 * k2), "a%d" % s)
        if s < 3:
            p("s_add_u32 m0, m0, 4096")
            sadd(sT1, sT1, 4096)
    p("s_lshl_b32 %s, %s, 1" % (sr(sT0), sr(sRG)))
    p("s_and_b32 %s, %s, 1" % (sr(sT1), sr(sWV)))
    p("s_add_u32 %s, %s, %s" % (sr(sT0), sr(sT0), sr(sT1)))
    p("s_lshl_b32 %s, %s, 12" % (sr(sT0), sr(sT0)))
    p("s_add_u32 %s, %s, %s" % (sr(sT0), sr(sT0), sr(sCLS)))
    sadd(sT3, sT0, st_off(1 + 2 * L))
    p("v_add_u32 %s, 0x%x, %s" % (vr(S0 + 123), AB, vr(vL16)))

    def rd(ks):
        for tt in range(4):
            p("ds_read_b128 %s, %s offset:%d" % (vr(GA + 16 * (ks & 1) + 4 * tt, 4), vr(S0 + 123), tt * 16384 + ks * 1024))

    p.waitvm("a0")
    barrier()
    if L == 0:
        stage_wo(0, R1, "wo")
    rd(0)
    for ks in range(16):
        if ks < 15:
            if (ks + 1) % 4 == 0:
                p.waitvm("a%d" % ((ks + 1) // 4))
                if ks + 1 == 12:
                    poll(lambda: stats_issue(GT, sT3), lambda: check_sentinel(range(GT, GT + 16), GT + 16), 4)
                    stats_finish(GT, GT + 16, GT + 17)
                    p("v_cmp_gt_u32 vcc, 0x200, %s" % vr(vL16))
                    p("v_cndmask_b32 %s, %s, %s, vcc" % (vr(GT + 16), vr(GT + 17), vr(GT + 16)))
                    p("ds_write_b32 %s, %s" % (vr(vTBw), vr(GT + 16)))
                    p.waitlg()
                p("s_barrier")
            rd(ks + 1)
        for tt in range(4):
            A = vr(GA + 16 * (ks & 1) + 4 * tt, 4)
            for acc, w in ((GK, aWK), (GV, aWV)):
                d = vr(acc + 4 * tt, 4)
                p("v_mfma_f32_16x16x32_bf16 %s, %s, %s, %s" % (d, A, ar(w + 4 * ks, 4), "0" if ks == 0 else d))
    stamp("gemmkv%d" % L)
    for tt in range(4):
        p("ds_read_b128 %s, %s offset:%d" % (vr(GT + 8 * tt, 4), vr(vTB1), 64 * tt))
        p("ds_read_b128 %s, %s offset:%d" % (vr(GT + 8 * tt + 4, 4), vr(vTB1), 256 + 64 * tt))
    PK, PV, T = GA, GA + 8, GA + 16
    for tt in range(4):
        Rr, NM = GT + 8 * tt, GT + 8 * tt + 4
        k0, v0 = GK + 4 * tt, GV + 4 * tt
        for e in range(4):
            p("v_fma_f32 %s, %s, %s, %s" % (vr(T + e), vr(NM + e), vr(vCSK), sr(sEPS6)))
        for e in (0, 2):
            p("v_pk_fma_f32 %s, %s, %s, %s" % (vr(k0 + e, 2), vr(k0 + e, 2), vr(Rr + e, 2), vr(T + e, 2)))
        for e in range(4):
            p("v_mul_f32 %s, %s, %s" % (vr(T + e), sr(sLOG2E), vr(k0 + e)))
        for e in range(4):
            p("v_exp_f32_e64 %s, %s clamp" % (vr(T + e), vr(T + e)))
        for e in range(4):
            p("v_max_f32 %s, %s, %s" % (vr(k0 + e), sr(sEPS6), vr(k0 + e)))
        for e in (0, 2):
            p("v_pk_add_f32 %s, %s, %s" % (vr(k0 + e, 2), vr(k0 + e, 2), vr(T + e, 2)))
        for e in range(4):
            p("v_mul_f32 %s, %s, %s" % (vr(T + 4 + e), vr(NM + e), vr(vCSV)))
        for e in (0, 2):
            p("v_pk_fma_f32 %s, %s, %s, %s" % (vr(v0 + e, 2), vr(v0 + e, 2), vr(Rr + e, 2), vr(T + 4 + e, 2)))
        for e in (0, 2):
            p("v_cvt_pk_bf16_f32 %s, %s, %s" % (vr(PK + 2 * tt + e // 2), vr(k0 + e), vr(k0 + e + 1)))
            p("v_cvt_pk_bf16_f32 %s, %s, %s" % (vr(PV + 2 * tt + e // 2), vr(v0 + e), vr(v0 + e + 1)))
    KV, Z = GK, GK + 4
    p("v_mfma_f32_16x16x32_bf16 %s, %s, %s, 0" % (vr(KV, 4), vr(PK, 4), vr(PV, 4)))
    p("v_mfma_f32_16x16x32_bf16 %s, %s, %s, %s" % (vr(KV, 4), vr(PK + 4, 4), vr(PV + 4, 4), vr(KV, 4)))
    p("v_mfma_f32_16x16x32_bf16 %s, %s, %s, 0" % (vr(Z, 4), vr(PK, 4), vr(vONE, 4)))
    p("v_mfma_f32_16x16x32_bf16 %s, %s, %s, %s" % (vr(Z, 4), vr(PK + 4, 4), vr(vONE, 4), vr(Z, 4)))
    p("s_lshl_b32 %s, %s, 2" % (sr(sT0), sr(sM)))
    p("s_add_u32 %s, %s, %s" % (sr(sT0), sr(sT0), sr(sWV)))
    p("s_lshl_b32 %s, %s, 5" % (sr(sT0), sr(sT0)))
    p("s_lshl_b32 %s, %s, 2" % (sr(sT1), sr(sX)))
    p("s_add_u32 %s, %s, %s" % (sr(sT0), sr(sT0), sr(sT1)))
    p("s_add_u32 %s, %s, %s" % (sr(sT0), sr(sT0), sr(sRG)))
    p("s_lshl_b32 %s, %s, 9" % (sr(sT1), sr(sT0)))
    sadd(sT1, sT1, KVP + L * 0x80000)
    p("s_lshl_b32 %s, %s, 6" % (sr(sT2), sr(sT0)))
    sadd(sT2, sT2, ZP + L * 0x10000)
    p("v_cvt_pk_bf16_f32 %s, %s, %s" % (vr(T), vr(KV), vr(KV + 1)))
    p("v_cvt_pk_bf16_f32 %s, %s, %s" % (vr(T + 1), vr(KV + 2), vr(KV + 3)))
    p("v_min_u32 %s, -2, %s" % (vr(T), vr(T)))
    p("v_min_u32 %s, -2, %s" % (vr(T + 1), vr(T + 1)))
    p("buffer_store_dwordx2 %s, %s, %s, %s offen sc1" % (vr(T, 2), vr(vL8), sr(sWS, 4), sr(sT1)))
    for e in range(4):
        p("v_min_u32 %s, -2, %s" % (vr(Z + e), vr(Z + e)))
    p("s_mov_b32 exec_lo, 0x00010001")
    p("s_mov_b32 exec_hi, 0x00010001")
    p("buffer_store_dwordx4 %s, %s, %s, %s offen sc1" % (vr(Z, 4), vr(vZr), sr(sWS, 4), sr(sT2)))
    p("s_mov_b64 exec, -1")
    stamp("kvpub%d" % L)


def gemm_q(L):
    def rd(ks):
        for tt in range(4):
            p("ds_read_b128 %s, %s offset:%d" % (vr(GA + 16 * (ks & 1) + 4 * tt, 4), vr(S0 + 123), tt * 16384 + ks * 1024))

    p("v_add_u32 %s, 0x%x, %s" % (vr(S0 + 123), AB, vr(vL16)))
    for tt in range(4):
        p("ds_read_b32 %s, %s offset:%d" % (vr(GT + 2 * tt), vr(vTB2), 64 * tt))
        p("ds_read_b32 %s, %s offset:%d" % (vr(GT + 2 * tt + 1), vr(vTB2), 256 + 64 * tt))
    rd(0)
    for ks in range(16):
        if ks < 15:
            rd(ks + 1)
        for tt in range(4):
            B = vr(GA + 16 * (ks & 1) + 4 * tt, 4)
            d = vr(GQ + 4 * tt, 4)
            p("v_mfma_f32_16x16x32_bf16 %s, %s, %s, %s" % (d, ar(aWQ + 4 * ks, 4), B, "0" if ks == 0 else d))
    T = GA
    PQ = GA + 8
    sadd(sT0, sCLS, C_PQ + L * 0x40000)
    sadd(sT1, sT0, 32768)
    lines = []
    for tt in range(4):
        Rr, NM = GT + 2 * tt, GT + 2 * tt + 1
        q0 = GQ + 4 * tt
        for e in range(4):
            p("v_fma_f32 %s, %s, %s, %s" % (vr(T + e), vr(NM), vr(vCSQ + e), sr(sEPS6)))
        for e in range(4):
            p("v_fma_f32 %s, %s, %s, %s" % (vr(q0 + e), vr(q0 + e), vr(Rr), vr(T + e)))
        for e in range(4):
            p("v_mul_f32 %s, %s, %s" % (vr(T + e), sr(sLOG2E), vr(q0 + e)))
        for e in range(4):
            p("v_exp_f32_e64 %s, %s clamp" % (vr(T + e), vr(T + e)))
        for e in range(4):
            p("v_max_f32 %s, %s, %s" % (vr(q0 + e), sr(sEPS6), vr(q0 + e)))
        for e in (0, 2):
            p("v_pk_add_f32 %s, %s, %s" % (vr(q0 + e, 2), vr(q0 + e, 2), vr(T + e, 2)))
        for e in (0, 2):
            p("v_cvt_pk_bf16_f32 %s, %s, %s" % (vr(PQ + 2 * tt + e // 2), vr(q0 + e), vr(q0 + e + 1)))
        lines.append(
            "buffer_store_dwordx2 %s, %s, %s, %s offen offset:%d" % (vr(PQ + 2 * tt, 2), vr(vPQw), sr(sWS, 4), sr(sT0 if tt < 2 else sT1), 256 * (tt & 1))
        )
    local_stores(lines, "pqst")
    p("s_lshl_b32 %s, %s, 5" % (sr(sT0), sr(sRG)))
    p("s_lshl_b32 %s, %s, 2" % (sr(sT1), sr(sM)))
    p("s_add_u32 %s, %s, %s" % (sr(sT0), sr(sT0), sr(sT1)))
    p("s_add_u32 %s, %s, %s" % (sr(sT0), sr(sT0), sr(sWV)))
    p("s_lshl_b32 %s, %s, 3" % (sr(sT0), sr(sT0)))
    p("s_add_u32 %s, %s, %s" % (sr(sT0), sr(sT0), sr(sCLS)))
    sadd(sT0, sT0, C_FLAGPQ + L * 0x400)
    p.waitvm("pqst")
    flag_store(sT0)


OPQ = S0 + 8
OST = S0 + 40
OD = S0 + 72
OF = S0 + 104


def head_off(u):
    return (u & 3) * 1024 + (u >> 2) * 16384


def reduce_state(L):
    P = OST
    ZL = OST + 16
    D = OST + 24
    RC = OD
    T = OD + 12
    p("s_lshl_b32 %s, %s, 5" % (sr(sT0), sr(sJ)))
    p("s_lshl_b32 %s, %s, 6" % (sr(sT2), sr(sT0)))
    sadd(sT2, sT2, ZP + L * 0x10000)
    p("s_lshl_b32 %s, %s, 3" % (sr(sT1), sr(sWV)))
    p("s_add_u32 %s, %s, %s" % (sr(sT0), sr(sT0), sr(sT1)))
    p("s_lshl_b32 %s, %s, 9" % (sr(sT0), sr(sT0)))
    sadd(sT0, sT0, KVP + L * 0x80000)

    def issue():
        for u in range(8):
            p("buffer_load_dwordx2 %s, %s, %s, %s offen offset:%d sc1" % (vr(P + 2 * u, 2), vr(vL8), sr(sWS, 4), sr(sT0), 512 * u))

    poll(issue, lambda: check_sentinel(range(P, P + 16), T), 5)
    stamp("kvgot%d" % L)
    for u in range(4):
        p("v_mfma_f32_16x16x32_bf16 %s, %s, %s, %s" % (vr(D, 4), vr(vSEL, 4), vr(P + 4 * u, 4), "0" if u == 0 else vr(D, 4)))
    p("s_lshl_b32 %s, %s, 10" % (sr(sT1), sr(sWV)))
    sadd(sT1, sT1, RS)
    p("v_add_u32 %s, %s, %s" % (vr(T), sr(sT1), vr(vL16)))
    p("s_lshl_b32 %s, %s, 10" % (sr(sT3), sr(sJ)))
    p("s_add_u32 %s, %s, %s" % (sr(sT3), sr(sT3), sr(sCLS)))
    sadd(sT3, sT3, C_STATE + L * 0x8000)
    p("ds_write_b128 %s, %s" % (vr(T), vr(D, 4)))
    barrier()
    w1, done = p.newlabel("red1"), p.newlabel("reddone")
    p("s_cmp_eq_u32 %s, 1" % sr(sWV))
    p("s_cbranch_scc1 %s" % w1)
    p("s_cmp_lg_u32 %s, 0" % sr(sWV))
    p("s_cbranch_scc1 %s" % done)
    for u in range(3):
        p("ds_read_b128 %s, %s offset:%d" % (vr(RC + 4 * u, 4), vr(T), 1024 * (u + 1)))
    for e in (0, 2):
        p("v_pk_add_f32 %s, %s, %s" % (vr(D + e, 2), vr(D + e, 2), vr(RC + e, 2)))
        p("v_pk_add_f32 %s, %s, %s" % (vr(RC + 4 + e, 2), vr(RC + 4 + e, 2), vr(RC + 8 + e, 2)))
    for e in (0, 2):
        p("v_pk_add_f32 %s, %s, %s" % (vr(D + e, 2), vr(D + e, 2), vr(RC + 4 + e, 2)))
    p("v_cvt_pk_bf16_f32 %s, %s, %s" % (vr(D), vr(D), vr(D + 1)))
    p("v_cvt_pk_bf16_f32 %s, %s, %s" % (vr(D + 1), vr(D + 2), vr(D + 3)))
    p("v_min_u32 %s, -2, %s" % (vr(D), vr(D)))
    p("v_min_u32 %s, -2, %s" % (vr(D + 1), vr(D + 1)))
    local_stores(["buffer_store_dwordx2 %s, %s, %s, %s offen" % (vr(D, 2), vr(vSTATEw), sr(sWS, 4), sr(sT3))])
    p("s_branch %s" % done)
    p.label(w1)

    def issue_z():
        for u in range(2):
            p("buffer_load_dwordx4 %s, %s, %s, %s offen offset:%d sc1" % (vr(ZL + 4 * u, 4), vr(vZr), sr(sWS, 4), sr(sT2), 1024 * u))

    poll(issue_z, lambda: check_sentinel(range(ZL, ZL + 8), T), 6)
    for e in (0, 2):
        p("v_pk_add_f32 %s, %s, %s" % (vr(ZL + e, 2), vr(ZL + e, 2), vr(ZL + 4 + e, 2)))
    for sh in (8, 4, 2, 1):
        for e in range(4):
            p("v_add_f32_dpp %s, %s, %s row_ror:%d row_mask:0xf bank_mask:0xf" % (vr(ZL + e), vr(ZL + e), vr(ZL + e), sh))
    p("v_cvt_pk_bf16_f32 %s, %s, %s" % (vr(ZL), vr(ZL), vr(ZL + 1)))
    p("v_cvt_pk_bf16_f32 %s, %s, %s" % (vr(ZL + 1), vr(ZL + 2), vr(ZL + 3)))
    p("v_min_u32 %s, -2, %s" % (vr(ZL), vr(ZL)))
    p("v_min_u32 %s, -2, %s" % (vr(ZL + 1), vr(ZL + 1)))
    local_stores(["buffer_store_dwordx2 %s, %s, %s, %s offen offset:256" % (vr(ZL, 2), vr(vSTATEw), sr(sWS, 4), sr(sT3))])
    p.label(done)


def load_pq(L):
    F = OD
    p("s_lshl_b32 %s, %s, 8" % (sr(sT0), sr(sRG)))
    p("s_add_u32 %s, %s, %s" % (sr(sT0), sr(sT0), sr(sCLS)))
    sadd(sT0, sT0, C_FLAGPQ + L * 0x400)
    p("v_and_b32 %s, 0xff, %s" % (vr(F + 2), vr(vL8)))
    poll(
        lambda: p("buffer_load_dwordx2 %s, %s, %s, %s offen sc1" % (vr(F, 2), vr(F + 2), sr(sWS, 4), sr(sT0))),
        lambda: p("v_cmp_ne_u64 vcc, %s, %s" % (sr(sTAG, 2), vr(F, 2))),
        7,
    )
    p("s_lshl_b32 %s, %s, 15" % (sr(sT0), sr(sG32L)))
    p("s_lshl_b32 %s, %s, 12" % (sr(sT1), sr(sWV)))
    p("s_add_u32 %s, %s, %s" % (sr(sT0), sr(sT0), sr(sT1)))
    p("s_add_u32 %s, %s, %s" % (sr(sT0), sr(sT0), sr(sCLS)))
    sadd(sT0, sT0, C_PQ + L * 0x40000)
    sadd(sT1, sT0, 16384)
    for u in range(8):
        p("buffer_load_dwordx4 %s, %s, %s, %s offen offset:%d sc1" % (vr(OPQ + 4 * u, 4), vr(vL16), sr(sWS, 4), sr(sT0 if u < 4 else sT1), 1024 * (u & 3)))


def attn_out(L):
    T = OF + 12
    p("s_lshl_b32 %s, %s, 12" % (sr(sT2), sr(sWV)))
    p("s_add_u32 %s, %s, %s" % (sr(sT0), sr(sT2), sr(sCLS)))
    sadd(sT0, sT0, C_STATE + L * 0x8000)
    sadd(sT1, sT0, 16384)
    sadd(sT2, sT2, OB)
    p("v_add_u32 %s, %s, %s" % (vr(S0 + 122), sr(sT2), vr(vL16)))
    p("v_add_u32 %s, 0x%x, %s" % (vr(S0 + 123), OB, vr(vL16)))

    def issue():
        for u in range(8):
            p("buffer_load_dwordx4 %s, %s, %s, %s offen offset:%d sc1" % (vr(OST + 4 * u, 4), vr(vL16), sr(sWS, 4), sr(sT0 if u < 4 else sT1), 1024 * (u & 3)))

    poll(issue, lambda: check_sentinel([OST + 2 * n for n in range(16)], T), 8)
    stamp("stgot%d" % L)

    def mm(u):
        p("v_mfma_f32_32x32x16_bf16 %s, %s, %s, 0" % (vr(OD + 16 * (u & 1), 16), vr(OST + 4 * u, 4), vr(OPQ + 4 * u, 4)))

    def fin(u):
        d = OD + 16 * (u & 1)
        of = OF + 4 * (u & 1)
        p("v_add_f32 %s, %s, %s" % (vr(d + 8), sr(sEPS6), vr(d + 8)))
        p("v_rcp_f32 %s, %s" % (vr(d + 8), vr(d + 8)))
        for e in range(0, 8, 2):
            p("v_pk_mul_f32 %s, %s, %s op_sel_hi:[1,0]" % (vr(d + e, 2), vr(d + e, 2), vr(d + 8, 2)))
        for e in range(4):
            p("v_cvt_pk_bf16_f32 %s, %s, %s" % (vr(of + e), vr(d + 2 * e), vr(d + 2 * e + 1)))
        p("ds_write_b128 %s, %s offset:%d" % (vr(S0 + 122), vr(of, 4), head_off(u)))

    def wreg(h):
        return ar(aWOA + 4 * h, 4) if h < 16 else vr(vWOB + 4 * (h - 16), 4)

    def breg(h):
        return (OST + 4 * (h % 4)) if (h // 4) % 2 == 0 else (OPQ + 4 * (h % 4))

    def rdb(h):
        p("ds_read_b128 %s, %s offset:%d" % (vr(breg(h), 4), vr(S0 + 123), 1024 * h))

    def wm(h):
        p("v_mfma_f32_32x32x16_bf16 %s, %s, %s, %s" % (vr(vX, 16), wreg(h), vr(breg(h), 4), vr(vX, 16)))

    mm(0)
    for u in range(4):
        mm(u + 1)
        fin(u)
    barrier()
    for h in range(8):
        rdb(h)
    for u in range(4, 8):
        if u < 7:
            mm(u + 1)
        for h in range(4 * (u - 4), 4 * (u - 4) + 4):
            wm(h)
            if h + 8 < 16:
                rdb(h + 8)
        fin(u)
    barrier()
    for h in range(16, 24):
        rdb(h)
    for h in range(16, 32):
        wm(h)
        if h + 8 < 32:
            rdb(h + 8)
    stamp("wo%d" % L)


def stats_hop():
    stats_compute(S0 + 8, S0 + 10)
    sadd(sT0, sCLS, st_off(2))
    local_stores(["buffer_store_dword %s, %s, %s, %s offen" % (vr(S0 + 8), vr(vSTw), sr(sWS, 4), sr(sT0))])
    p("s_lshl_b32 %s, %s, 12" % (sr(sT1), sr(sG32L)))
    p("s_add_u32 %s, %s, %s" % (sr(sT1), sr(sT1), sr(sT0)))
    B = S0 + 12
    poll(lambda: stats_issue(B, sT1), lambda: check_sentinel(range(B, B + 16), S0 + 28), 9)
    stats_finish(B, S0 + 28, S0 + 30)
    normalise(S0 + 28, S0 + 30)
    stamp("stats2")


def main():
    prologue()
    p0_issue()
    clears()
    dmaw_address()
    stage_w(1, R1, "wk")
    addresses()
    lds_zero()
    ut_address()
    stamp("issued")
    p0_compute()
    sadd(sT0, sCLS, C_UTA)
    ut_store(sT0, "")
    stamp("p0")
    p("s_add_u32 %s, %s, 16" % (sr(sTAG), sr(sTAG)))
    p("s_addc_u32 %s, %s, 0" % (sr(sTAG + 1), sr(sTAG + 1)))
    p("v_mov_b32 %s, %s" % (vr(vTAG), sr(sTAG)))
    p("v_mov_b32 %s, %s" % (vr(vTAG + 1), sr(sTAG + 1)))
    h_copies()
    for e in range(8):
        unpack(vX + 2 * e, X0 + e)
    stats_compute(VF, KF)
    p.waitvm()
    barrier()
    skip = p.newlabel("fa")
    p("s_cmp_lg_u32 %s, 0" % sr(sWV))
    p("s_cbranch_scc1 %s" % skip)
    p("s_add_u32 %s, %s, %s" % (sr(sP), sr(sTAG), sr(sXCC)))
    p("s_addc_u32 %s, %s, 0" % (sr(sP + 1), sr(sTAG + 1)))
    p("v_mov_b32 %s, %s" % (vr(KF), sr(sP)))
    p("v_mov_b32 %s, %s" % (vr(KF + 1), sr(sP + 1)))
    p("s_lshl_b32 %s, %s, 3" % (sr(sT0), sr(sJ)))
    p("s_add_u32 %s, %s, %s" % (sr(sT0), sr(sT0), sr(sCLS)))
    sadd(sT0, sT0, C_FLAGA)
    p("s_mov_b64 exec, 1")
    p("buffer_store_dwordx2 %s, off, %s, %s" % (vr(KF, 2), sr(sWS, 4), sr(sT0)))
    p("s_mov_b64 exec, -1")
    p.label(skip)
    stamp("flagA")
    sadd(sT0, sCLS, st_off(0))
    p("buffer_store_dword %s, %s, %s, %s offen sc1" % (vr(VF), vr(vSTw), sr(sWS, 4), sr(sT0)))
    afrag_preload()
    unstage_w(R1, aWK)
    handoff_ut()
    stamp("utflag")
    conv_addresses()
    p.waitvm()
    barrier()
    skip = p.newlabel("hello")
    p("s_cmp_lg_u32 %s, 1" % sr(sWV))
    p("s_cbranch_scc1 %s" % skip)
    p("s_lshl_b32 %s, s2, 3" % sr(sT0))
    sadd(sT0, sT0, HELLO)
    flag_store(sT0, local=False)
    p.label(skip)
    stamp("convstart")
    conv(lambda: stage_w(2, R2, "wv"))
    stamp("convdone")
    p.waitvm("wv")
    barrier()
    stage_w(0, R1, "wq")
    unstage_prep(R2, vTrW)
    unstage_w(R2, aWV)
    hello_check()
    stamp("hello")
    p("s_lshl_b32 %s, %s, 12" % (sr(sT1), sr(sG32L)))
    p("s_add_u32 %s, %s, %s" % (sr(sT1), sr(sT1), sr(sCLS)))
    sadd(sT1, sT1, st_off(0))
    stats_issue(S0 + 12, sT1)
    colsum(aWK, vCSK, False)
    colsum(aWV, vCSV, False)
    stats_finish(S0 + 12, S0 + 28, S0 + 30)
    normalise(S0 + 28, S0 + 30)
    YR = S0 + 8
    stamp("ypoll")

    def issue_y():
        p("s_mov_b32 %s, 0x%x" % (sr(sT0), YB))
        for u in range(8):
            p("buffer_load_dword %s, %s, %s, %s offen sc1" % (vr(YR + u), vr(vYa), sr(sWS, 4), sr(sT0)))
            if u < 7:
                sadd(sT0, sT0, 8192)

    poll(issue_y, lambda: check_sentinel(range(YR, YR + 8), S0 + 16), 2)
    stamp("ygot")
    for u in range(8):
        unpack(vY + 2 * u, YR + u)
    for L in range(2):
        gate_and_publish(L)
        stamp("xpub%d" % L)
        if L == 0:
            barrier()
            unstage_w(R1, aWQ)
            colsum(aWQ, vCSQ, True)
        else:
            barrier()
        gemm_kv(L)
        if L == 0:
            p.waitvm("wo")
            barrier()
            unstage_wo(R1, "a", aWOA)
            barrier()
            stage_wo(1, R1, "wo")
        gemm_q(L)
        if L == 0:
            p.waitvm("wo")
            barrier()
            unstage_wo(R1, "v", vWOB)
        stamp("qdone%d" % L)
        load_pq(L)
        reduce_state(L)
        stamp("stpub%d" % L)
        attn_out(L)
        if L == 0:
            stats_hop()
    XP = S0 + 8
    for e in range(8):
        p("v_cvt_pk_bf16_f32 %s, %s, %s" % (vr(XP + e), vr(vX + 2 * e), vr(vX + 2 * e + 1)))
    p("buffer_store_dwordx4 %s, %s, %s, 0 offen" % (vr(XP, 4), vr(vXrow), sr(sOUT, 4)))
    p("buffer_store_dwordx4 %s, %s, %s, 0 offen offset:16" % (vr(XP + 4, 4), vr(vXrow), sr(sOUT, 4)))
    skip = p.newlabel("epoch")
    p("s_or_b32 %s, s2, %s" % (sr(sT0), sr(sWV)))
    p("s_cmp_lg_u32 %s, 0" % sr(sT0))
    p("s_cbranch_scc1 %s" % skip)
    p("s_mov_b32 %s, %d" % (sr(sT0), EPOCH))
    flag_store(sT0, local=False)
    p.label(skip)
    if PROFILE:
        p.waitvm()
        stamp("end")
        p("v_writelane_b32 %s, %s, 63" % (vr(vPROF), sr(sERR)))
        p("v_writelane_b32 %s, %s, 62" % (vr(vPROF), sr(sMODE)))
        p("v_writelane_b32 %s, %s, 61" % (vr(vPROF), sr(sXCC)))
        p("s_lshl_b32 %s, s2, 10" % sr(sT0))
        sadd(sT0, sT0, PROF)
        p("v_lshlrev_b32 %s, 2, v0" % vr(S0))
        p("buffer_store_dword %s, %s, %s, %s offen" % (vr(vPROF), vr(S0), sr(sWS, 4), sr(sT0)))
    if SPIN:
        if SPIN == "end":
            p.waitvm()
            stamp("end")
        if SPINWG:
            p("s_cmp_lg_u32 s2, %d" % SPINWG[0])
            p("s_cbranch_scc1 L_exit")
        p.label("L_spin")
        p("s_memrealtime s[76:77]")
        p("s_waitcnt lgkmcnt(0)")
        p("s_sub_u32 s76, s76, s74")
        p("s_cmp_lt_u32 s76, 8000")
        p("s_cbranch_scc1 L_spin")
    p("s_endpgm")
    i = 0
    while i < len(tail):
        tail[i]()
        i += 1
    p.label("L_exit")
    p("s_endpgm")


main()

HEAD = open("cdna_kernels/%s.s.ref" % NAME).read().split("; Override launch geometry")[0]
body = p.text()
src = (
    HEAD
    + "; One persistent launch, one workgroup per CU; generated by a script (phases hand data over through d_ws).\n"
    + "; @launch grid=(256,1,1) block=(256,1,1) lds=%d\n" % LDS_BYTES
    + """.amdgcn_target "amdgcn-amd-amdhsa--gfx950"
.text
.globl {n}_kernel
.p2align 8
.type {n}_kernel,@function
{n}_kernel:
""".format(n=NAME)
    + body
    + """.section .rodata,"a"
.p2align 6
.amdhsa_kernel {n}_kernel
  .amdhsa_next_free_vgpr 512
  .amdhsa_next_free_sgpr 102
  .amdhsa_accum_offset 256
  .amdhsa_group_segment_fixed_size 0
  .amdhsa_kernarg_size 96
  .amdhsa_user_sgpr_count 2
  .amdhsa_user_sgpr_kernarg_segment_ptr 1
  .amdhsa_system_sgpr_workgroup_id_x 1
  .amdhsa_float_denorm_mode_32 3
.end_amdhsa_kernel
""".format(n=NAME)
)
open(OUT, "w").write(src)
if PROFILE:
    open(OUT + ".stamps", "w").write("\n".join(stamps))
print("wrote", OUT, "instructions:", sum(1 for l in body.split("\n") if l.startswith("    ") and not l.strip().startswith(";")))
```

```python
import sys
from asmlib import Prog, vr, ar, sr

NAME = "interleave_layers__ssm_conv_h3__linear_attn_block__prompt"
PROFILE = "--prof" in sys.argv
FORCE_SLOW = "--slow" in sys.argv
SPIN = [a.split("=")[1] for a in sys.argv if a.startswith("--spin=")]
SPIN = SPIN[0] if SPIN else None
SKEW = [int(a.split("=")[1]) for a in sys.argv if a.startswith("--skew=")]
SPINWG = [int(a.split("=")[1]) for a in sys.argv if a.startswith("--spinwg=")]
OUT = [a for a in sys.argv[1:] if not a.startswith("--")]
OUT = OUT[0] if OUT else "cdna_kernels/%s.s" % NAME

EPOCH = 0
HELLO = 0x1000
FLAGB = 0x2000
KVP = 0x80000
ZP = 0x180000
YB = 0x200000
UTB = 0x400000
CLS = 0x600000
C_UTA = 0
C_X = 0x40000
C_PQ = 0xC0000
C_STATE = 0x140000
C_ST = 0x150000
C_FLAGA = 0x170000
C_FLAGX = 0x171000
C_FLAGPQ = 0x172000
PROF = 0x1800000
WS_BYTES = 0x2000000


def st_off(n):
    return C_ST + ((n + 3) % 4) * 0x8000


R1, R2, R3 = 0, 65536, 131072
HB = R2
HCOPY, HCH = 4160, 16640
UB = R3
UCH = 4608
TB = R3 + 9216
RS = R3 + 9728
EX = R1
AB = R2
OB = R2
LDS_BYTES = 163840

sQ, sK, sV, sH, sW, sWO, sWS, sOUT, sSH = 4, 8, 12, 16, 20, 24, 28, 32, 36
sD = 40
sTAG = 42
sX, sJ, sWV, sXCC, sMODE, sLIM, sCNT = 44, 45, 46, 47, 48, 49, 50
sCLS = 51
sT0, sT1, sT2, sT3 = 52, 53, 54, 55
sP = 56
sC4096, sMASK = 58, 59
sDV = 60
sG32L, sKS, sRG, sM = 61, 62, 63, 64
sEPS6, sLOG2E, sEPS5, sINV512 = 65, 66, 67, 68
sTS = 70
sERR = 72
sUSRC = 73

vL16, vL8, vXrow, vYa, vSTw, vSTr, vXw, vPQw, vSTATEw = 1, 2, 3, 4, 5, 6, 7, 8, 9
vTrW, vTrO, vDmaW, vDmaO, vTB1, vTB2, vZr, vTBw = 10, 11, 12, 13, 14, 15, 16, 17
vTAG = 18
vSEL, vONE = 20, 24
vCSK, vCSV, vCSQ = 28, 29, 30
vX, vY = 34, 50
vPROF = 66
S0 = 68
vWOB = 192
aWK, aWV, aWQ, aWOA = 0, 64, 128, 192
aH = 128

p = Prog()
tail = []
stamps = []


def stamp(name):
    if SPIN == name:
        p("s_memrealtime s[74:75]")
        p("s_waitcnt lgkmcnt(0)")
    if not PROFILE:
        return
    n = len(stamps)
    stamps.append(name)
    p("s_memrealtime %s" % sr(sTS, 2))
    p("s_waitcnt lgkmcnt(0)")
    p("v_writelane_b32 %s, %s, %d" % (vr(vPROF), sr(sTS), n))


def srd(base, nbytes):
    p("s_mov_b32 %s, %d" % (sr(base + 2), nbytes))
    p("s_mov_b32 %s, 0x20000" % sr(base + 3))


def sadd(dst, src, imm):
    p("s_add_u32 %s, %s, 0x%x" % (sr(dst), sr(src), imm))


def local_stores(lines, tag=None):
    slow, join = p.newlabel("slowst"), p.newlabel("joinst")
    p("s_cmp_eq_u32 %s, 0" % sr(sMODE))
    p("s_cbranch_scc1 %s" % slow)
    for l in lines:
        p(l, tag)
    p.label(join)

    def blk():
        p.label(slow)
        for l in lines:
            p(l + " sc1", tag)
        p("s_branch %s" % join)

    tail.append(blk)


def poll(issue, check, code):
    top, done = p.newlabel("poll"), p.newlabel("polldone")
    p("s_mov_b32 %s, %s" % (sr(sCNT), sr(sLIM)))
    p.label(top)
    issue()
    check()
    p("s_cbranch_vccz %s" % done)
    p("s_sub_u32 %s, %s, 1" % (sr(sCNT), sr(sCNT)))
    p("s_cbranch_scc0 %s" % top)
    p("s_mov_b32 %s, 0" % sr(sLIM))
    p("s_or_b32 %s, %s, %d" % (sr(sERR), sr(sERR), 1 << code))
    p.label(done)


def check_sentinel(regs, tmp):
    regs = list(regs)
    if len(regs) == 1:
        p("v_cmp_eq_u32 vcc, -1, %s" % vr(regs[0]))
        return
    first = True
    i = 0
    while i < len(regs):
        if first:
            if len(regs) >= 3:
                p("v_max3_u32 %s, %s, %s, %s" % (vr(tmp), vr(regs[0]), vr(regs[1]), vr(regs[2])))
                i = 3
            else:
                p("v_max_u32 %s, %s, %s" % (vr(tmp), vr(regs[0]), vr(regs[1])))
                i = 2
            first = False
        elif i + 1 < len(regs):
            p("v_max3_u32 %s, %s, %s, %s" % (vr(tmp), vr(tmp), vr(regs[i]), vr(regs[i + 1])))
            i += 2
        else:
            p("v_max_u32 %s, %s, %s" % (vr(tmp), vr(tmp), vr(regs[i])))
            i += 1
    p("v_cmp_eq_u32 vcc, -1, %s" % vr(tmp))


def unpack(dst, src):
    p("v_lshlrev_b32 %s, 16, %s" % (vr(dst), vr(src)))
    p("v_and_b32 %s, %s, %s" % (vr(dst + 1), sr(sMASK), vr(src)))


def flag_store(soff_sgpr, local=True, tagreg=vTAG):
    p("s_mov_b64 exec, 1")
    line = "buffer_store_dwordx2 %s, off, %s, %s" % (vr(tagreg, 2), sr(sWS, 4), sr(soff_sgpr))
    if local:
        local_stores([line])
    else:
        p(line + " sc1")
    p("s_mov_b64 exec, -1")


def barrier():
    p.waitlg()
    p("s_barrier")


def stage_w(part, region, tag):
    p("s_lshl_b32 %s, %s, 14" % (sr(sT0), sr(sWV)))
    p("s_add_u32 m0, %s, %d" % (sr(sT0), region))
    p("s_mul_i32 %s, %s, %d" % (sr(sT1), sr(sWV), 128 * 3072))
    p("s_lshl_b32 %s, %s, 7" % (sr(sT2), sr(sM)))
    p("s_add_u32 %s, %s, %s" % (sr(sT1), sr(sT1), sr(sT2)))
    sadd(sT1, sT1, part * 1024)
    for n in range(16):
        va = vDmaW if n % 2 == 0 else S0 + 122
        if n == 0:
            p("v_xor_b32 %s, 64, %s" % (vr(S0 + 122), vr(vDmaW)))
        p("buffer_load_dwordx4 %s, %s, %s offen lds" % (vr(va), sr(sW, 4), sr(sT1)), tag)
        if n < 15:
            p("s_add_u32 m0, m0, 1024")
            sadd(sT1, sT1, 8 * 3072)


def unstage_w(region, a0):
    for ks in range(16):
        for h in range(2):
            off = region + ks * 4096 + h * 512
            p("ds_read_b64_tr_b16 %s, %s offset:%d" % (ar(a0 + 4 * ks + 2 * h, 2), vr(vTrW if off < 65536 else S0 + 123), off & 0xFFFF))


def unstage_prep(region, reg):
    if region >= 65536:
        p("v_add_u32 %s, 0x10000, %s" % (vr(S0 + 123), vr(reg)))


def stage_wo(half, region, tag):
    p("s_lshl_b32 %s, %s, 14" % (sr(sT0), sr(sWV)))
    p("s_add_u32 m0, %s, %d" % (sr(sT0), region))
    p("s_lshl_b32 %s, %s, 16" % (sr(sT1), sr(sWV)))
    p("s_and_b32 %s, %s, 3" % (sr(sT2), sr(sJ)))
    p("s_lshl_b32 %s, %s, 8" % (sr(sT2), sr(sT2)))
    p("s_add_u32 %s, %s, %s" % (sr(sT1), sr(sT1), sr(sT2)))
    sadd(sT1, sT1, half * 256 * 1024)
    for n in range(16):
        p("buffer_load_dwordx4 %s, %s, %s offen lds" % (vr(vDmaO), sr(sWO, 4), sr(sT1)), tag)
        if n < 15:
            p("s_add_u32 m0, m0, 1024")
            sadd(sT1, sT1, 4096)


def unstage_wo(region, f, r0):
    assert region == 0
    for hd in range(16):
        for g in range(2):
            off = region + hd * 4096 + g * 2048
            p("ds_read_b64_tr_b16 %s, %s offset:%d" % (vr(r0 + 4 * hd + 2 * g, 2, f), vr(vTrO), off))


def stats_compute(a, b):
    t = b
    p("v_pk_mul_f32 %s, %s, %s" % (vr(t + 2, 2), vr(vX, 2), vr(vX, 2)))
    p("v_pk_add_f32 %s, %s, %s" % (vr(t, 2), vr(vX, 2), vr(vX + 2, 2)))
    for e in range(2, 16, 2):
        p("v_pk_fma_f32 %s, %s, %s, %s" % (vr(t + 2, 2), vr(vX + e, 2), vr(vX + e, 2), vr(t + 2, 2)))
        if e >= 4:
            p("v_pk_add_f32 %s, %s, %s" % (vr(t, 2), vr(t, 2), vr(vX + e, 2)))
    p("v_add_f32 %s, %s, %s" % (vr(t), vr(t), vr(t + 1)))
    p("v_add_f32 %s, %s, %s" % (vr(t + 2), vr(t + 2), vr(t + 3)))
    p("v_permlane32_swap_b32 %s, %s" % (vr(t), vr(t + 2)))
    p("v_add_f32 %s, %s, %s" % (vr(a), vr(t), vr(t + 2)))
    p("v_min_u32 %s, -2, %s" % (vr(a), vr(a)))


def stats_issue(buf, soff):
    for u in range(4):
        p("buffer_load_dwordx4 %s, %s, %s, %s offen offset:%d sc1" % (vr(buf + 4 * u, 4), vr(vSTr), sr(sWS, 4), sr(soff), 512 * u))


def stats_finish(buf, vR, vNM):
    for u in (0, 8):
        p("v_pk_add_f32 %s, %s, %s" % (vr(buf + u, 2), vr(buf + u, 2), vr(buf + u + 2, 2)))
        p("v_pk_add_f32 %s, %s, %s" % (vr(buf + u + 4, 2), vr(buf + u + 4, 2), vr(buf + u + 6, 2)))
    p("v_pk_add_f32 %s, %s, %s" % (vr(buf, 2), vr(buf, 2), vr(buf + 4, 2)))
    p("v_pk_add_f32 %s, %s, %s" % (vr(buf + 8, 2), vr(buf + 8, 2), vr(buf + 12, 2)))
    p("v_pk_add_f32 %s, %s, %s" % (vr(buf, 2), vr(buf, 2), vr(buf + 8, 2)))
    p("v_permlane32_swap_b32 %s, %s" % (vr(buf), vr(buf + 1)))
    p("v_add_f32 %s, %s, %s" % (vr(buf), vr(buf), vr(buf + 1)))
    p("v_mul_f32 %s, %s, %s" % (vr(buf), sr(sINV512), vr(buf)))
    p("v_mov_b32 %s, %s" % (vr(buf + 1), vr(buf)))
    p("v_permlane32_swap_b32 %s, %s" % (vr(buf), vr(buf + 1)))
    p("v_fma_f32 %s, -%s, %s, %s" % (vr(buf + 1), vr(buf), vr(buf), vr(buf + 1)))
    p("v_max_f32 %s, 0, %s" % (vr(buf + 1), vr(buf + 1)))
    p("v_add_f32 %s, %s, %s" % (vr(buf + 1), sr(sEPS5), vr(buf + 1)))
    p("v_rsq_f32 %s, %s" % (vr(vR), vr(buf + 1)))
    p("v_mul_f32 %s, -%s, %s" % (vr(vNM), vr(buf), vr(vR)))


def prologue():
    p("s_cmp_ge_u32 s2, 256")
    p("s_cbranch_scc1 L_exit")
    kern = NAME + "_kernel"
    if SPIN == "entry":
        p("s_memrealtime s[74:75]")
    for base, off in ((sK, 8), (sV, 16), (sWS, 88), (sSH, 24), (sH, 32), (sQ, 0), (sD, 40), (sW, 56), (sWO, 64), (sOUT, 72)):
        p("s_load_dwordx2 %s, s[0:1], %d" % (sr(base, 2), off))
    p("s_getpc_b64 %s" % sr(sP, 2))
    p("s_and_b32 %s, %s, 0xffffff00" % (sr(sP), sr(sP)))
    p("v_lshlrev_b32 %s, 7, v0" % vr(S0))
    p("v_min_u32 %s, L_exit-%s, %s" % (vr(S0), kern, vr(S0)))
    p("global_load_dword %s, %s, %s" % (vr(S0 + 1), vr(S0), sr(sP, 2)))
    if PROFILE:
        p("v_mov_b32 %s, 0" % vr(vPROF))
    p("s_and_b32 %s, s2, 7" % sr(sX))
    p("s_lshr_b32 %s, s2, 3" % sr(sJ))
    p("v_lshrrev_b32 %s, 6, v0" % vr(S0 + 2))
    p("v_and_b32 %s, 63, v0" % vr(S0 + 3))
    p("v_readfirstlane_b32 %s, %s" % (sr(sWV), vr(S0 + 2)))
    srd(sK, 2097152)
    srd(sV, 2097152)
    srd(sWS, WS_BYTES)
    srd(sSH, 4096)
    srd(sH, 2097152)
    srd(sQ, 2097152)
    srd(sW, 1572864)
    srd(sWO, 524288)
    srd(sOUT, 2097152)
    p("s_mov_b32 %s, 4096" % sr(sC4096))
    p("s_mov_b32 %s, 0xffff0000" % sr(sMASK))
    p("s_getreg_b32 %s, hwreg(HW_REG_XCC_ID, 0, 4)" % sr(sXCC))
    p("s_lshl_b32 %s, %s, 21" % (sr(sCLS), sr(sX)))
    sadd(sCLS, sCLS, CLS)
    p("s_mov_b32 %s, 200000" % sr(sLIM))
    p("s_mov_b32 %s, 0" % sr(sERR))
    p("s_mov_b32 %s, 0x358637bd" % sr(sEPS6))
    p("s_mov_b32 %s, 0x3fb8aa3b" % sr(sLOG2E))
    p("s_mov_b32 %s, 0x3727c5ac" % sr(sEPS5))
    p("s_mov_b32 %s, 0x3b000000" % sr(sINV512))
    p("s_lshr_b32 %s, %s, 2" % (sr(sG32L), sr(sJ)))
    p("s_and_b32 %s, %s, 3" % (sr(sKS), sr(sJ)))
    p("s_lshl_b32 %s, %s, 2" % (sr(sKS), sr(sKS)))
    p("s_add_u32 %s, %s, %s" % (sr(sKS), sr(sKS), sr(sWV)))
    p("s_lshr_b32 %s, %s, 3" % (sr(sRG), sr(sJ)))
    p("s_and_b32 %s, %s, 7" % (sr(sM), sr(sJ)))


vLANE = S0 + 3
vKA, vKB, vUT, vT = S0 + 4, S0 + 5, S0 + 6, S0 + 7
KK = S0 + 8
VV = S0 + 20
SH = S0 + 28
HE = S0 + 32
X0 = S0 + 44
KF = S0 + 52
WF = S0 + 74
UF = S0 + 82
UP = S0 + 98
VF = S0 + 106
FF = S0 + 112
vHA, vHB, vCL = S0 + 116, S0 + 117, S0 + 118


def p0_issue():
    l = vr(vLANE)
    t = vr(vT)
    p("s_lshl_b32 %s, %s, 7" % (sr(sT0), sr(sX)))
    p("s_lshl_b32 %s, %s, 5" % (sr(sT1), sr(sWV)))
    p("s_add_u32 %s, %s, %s" % (sr(sT0), sr(sT0), sr(sT1)))
    p("s_lshl_b32 %s, %s, 16" % (sr(sT1), sr(sJ)))
    p("s_add_u32 %s, %s, %s" % (sr(sT1), sr(sT1), sr(sT0)))
    p("v_and_b32 %s, 7, %s" % (t, l))
    p("v_lshrrev_b32 %s, 3, %s" % (vr(vKA), l))
    p("v_lshlrev_b32 %s, 13, %s" % (vr(vKA), vr(vKA)))
    p("v_lshl_add_u32 %s, %s, 2, %s" % (vr(vKB), t, vr(vKA)))
    p("v_add_u32 %s, %s, %s" % (vr(vKB), sr(sT1), vr(vKB)))
    p("v_add_u32 %s, 0xfffff400, %s" % (vr(vKA), vr(vKB)))
    p("v_lshlrev_b32 %s, 4, %s" % (vr(vUT), t))
    p("s_lshl_b32 %s, %s, 2" % (sr(sT2), sr(sT0)))
    p.waitlg()
    stamp("kernarg")
    p("s_load_dwordx2 %s, %s, %d" % (sr(sTAG, 2), sr(sWS, 2), EPOCH))
    for r in range(3):
        p("buffer_load_dword %s, %s, %s, 0 offen offset:%d" % (vr(KK + r), vr(vKA), sr(sK, 4), 1024 * r))
    for r in range(8):
        so = "0" if r < 4 else sr(sC4096)
        p("buffer_load_dword %s, %s, %s, %s offen offset:%d" % (vr(KK + 3 + r), vr(vKB), sr(sK, 4), so, 1024 * (r % 4)))
    p("buffer_load_dwordx4 %s, %s, %s, %s offen" % (vr(SH, 4), vr(vUT), sr(sSH, 4), sr(sT2)))
    for r in range(8):
        so = "0" if r < 4 else sr(sC4096)
        p("buffer_load_dword %s, %s, %s, %s offen offset:%d" % (vr(VV + r), vr(vKB), sr(sV, 4), so, 1024 * (r % 4)))
    p("s_lshl_b32 %s, %s, 5" % (sr(sT0), sr(sX)))
    p("s_add_u32 %s, %s, %s" % (sr(sT0), sr(sT0), sr(sJ)))
    p("s_lshl_b32 %s, %s, 2" % (sr(sT1), sr(sT0)))
    p("s_add_u32 %s, %s, %s" % (sr(sD), sr(sD), sr(sT1)))
    p("s_addc_u32 %s, %s, 0" % (sr(sD + 1), sr(sD + 1)))
    p("s_load_dword %s, %s, 0" % (sr(sDV), sr(sD, 2)))
    p("s_lshl_b32 %s, %s, 13" % (sr(sT0), sr(sT0)))
    p("v_lshlrev_b32 %s, 5, v0" % vr(vHA))
    p("v_add_u32 %s, %s, %s" % (vr(vHA), sr(sT0), vr(vHA)))
    p("v_add_u32 %s, -8, %s" % (vr(vHB), vr(vHA)))
    p("buffer_load_dwordx2 %s, %s, %s, 0 offen" % (vr(HE, 2), vr(vHB), sr(sH, 4)))
    p("buffer_load_dwordx4 %s, %s, %s, 0 offen" % (vr(HE + 2, 4), vr(vHA), sr(sH, 4)))
    p("buffer_load_dwordx4 %s, %s, %s, 0 offen offset:16" % (vr(HE + 6, 4), vr(vHA), sr(sH, 4)))
    p("s_lshl_b32 %s, %s, 18" % (sr(sT0), sr(sX)))
    p("s_lshl_b32 %s, %s, 15" % (sr(sT1), sr(sG32L)))
    p("s_add_u32 %s, %s, %s" % (sr(sT0), sr(sT0), sr(sT1)))
    p("s_lshl_b32 %s, %s, 6" % (sr(sT1), sr(sKS)))
    p("s_add_u32 %s, %s, %s" % (sr(sT0), sr(sT0), sr(sT1)))
    p("v_and_b32 %s, 31, %s" % (t, l))
    p("v_lshlrev_b32 %s, 10, %s" % (vr(vXrow), t))
    p("v_and_b32 %s, 32, %s" % (t, l))
    p("v_add3_u32 %s, %s, %s, %s" % (vr(vXrow), vr(vXrow), t, sr(sT0)))
    p("buffer_load_dwordx4 %s, %s, %s, 0 offen" % (vr(X0, 4), vr(vXrow), sr(sQ, 4)))
    p("buffer_load_dwordx4 %s, %s, %s, 0 offen offset:16" % (vr(X0 + 4, 4), vr(vXrow), sr(sQ, 4)))


def clears():
    for r in range(4):
        p("v_mov_b32 %s, -1" % vr(FF + r))
    p("v_lshlrev_b32 %s, 4, v0" % vr(vCL))
    st = "buffer_store_dwordx4 %s, %s, %s, %%s offen sc1" % (vr(FF, 4), vr(vCL), sr(sWS, 4))
    p("s_lshl_b32 %s, %s, 5" % (sr(sT0), sr(sX)))
    p("s_add_u32 %s, %s, %s" % (sr(sT0), sr(sT0), sr(sJ)))
    p("s_lshl_b32 %s, %s, 13" % (sr(sT0), sr(sT0)))
    sadd(sT0, sT0, YB)
    p(st % sr(sT0))
    sadd(sT0, sT0, 4096)
    p(st % sr(sT0))
    p("s_mul_i32 %s, s2, 4608" % sr(sT0))
    sadd(sT0, sT0, KVP)
    p(st % sr(sT0))
    p("s_mul_i32 %s, %s, 5120" % (sr(sT1), sr(sJ)))
    p("s_add_u32 %s, %s, %s" % (sr(sT1), sr(sT1), sr(sCLS)))
    sadd(sT1, sT1, C_STATE)
    p(st % sr(sT1))
    skip = p.newlabel("clr")
    p("s_cmp_lg_u32 %s, 0" % sr(sWV))
    p("s_cbranch_scc1 %s" % skip)
    sadd(sT1, sT1, 4096)
    p(st % sr(sT1))
    sadd(sT0, sT0, 4096)
    p("s_mov_b32 exec_hi, 0")
    p(st % sr(sT0))
    p("s_mov_b64 exec, -1")
    p.label(skip)


def addresses():
    l = vr(vLANE)
    t, t2, t3 = vr(vT), vr(VF), vr(VF + 1)
    p("v_lshlrev_b32 %s, 4, %s" % (vr(vL16), l))
    p("v_lshlrev_b32 %s, 3, %s" % (vr(vL8), l))
    p("s_lshl_b32 %s, %s, 17" % (sr(sT0), sr(sKS)))
    p("s_lshl_b32 %s, %s, 10" % (sr(sT1), sr(sX)))
    p("s_add_u32 %s, %s, %s" % (sr(sT0), sr(sT0), sr(sT1)))
    p("s_lshl_b32 %s, %s, 7" % (sr(sT1), sr(sG32L)))
    p("s_add_u32 %s, %s, %s" % (sr(sT0), sr(sT0), sr(sT1)))
    p("v_and_b32 %s, 31, %s" % (t, l))
    p("v_lshrrev_b32 %s, 5, %s" % (t2, l))
    p("v_lshlrev_b32 %s, 16, %s" % (t3, t2))
    p("v_lshl_add_u32 %s, %s, 2, %s" % (vr(vYa), t, t3))
    p("v_add_u32 %s, %s, %s" % (vr(vYa), sr(sT0), vr(vYa)))
    p("s_lshl_b32 %s, %s, 12" % (sr(sT0), sr(sG32L)))
    p("s_lshr_b32 %s, %s, 1" % (sr(sT1), sr(sKS)))
    p("s_lshl_b32 %s, %s, 9" % (sr(sT1), sr(sT1)))
    p("s_add_u32 %s, %s, %s" % (sr(sT0), sr(sT0), sr(sT1)))
    p("s_and_b32 %s, %s, 1" % (sr(sT1), sr(sKS)))
    p("s_lshl_b32 %s, %s, 3" % (sr(sT1), sr(sT1)))
    p("s_add_u32 %s, %s, %s" % (sr(sT0), sr(sT0), sr(sT1)))
    p("v_lshlrev_b32 %s, 2, %s" % (t3, t2))
    p("v_lshl_add_u32 %s, %s, 4, %s" % (vr(vSTw), t, t3))
    p("v_add_u32 %s, %s, %s" % (vr(vSTw), sr(sT0), vr(vSTw)))
    p("v_lshlrev_b32 %s, 11, %s" % (t3, t2))
    p("v_lshl_add_u32 %s, %s, 4, %s" % (vr(vSTr), t, t3))
    p("s_and_b32 %s, %s, 1" % (sr(sT0), sr(sWV)))
    p("s_lshl_b32 %s, %s, 7" % (sr(sT0), sr(sT0)))
    sadd(sT0, sT0, TB)
    p("v_lshlrev_b32 %s, 8, %s" % (t3, t2))
    p("v_lshl_add_u32 %s, %s, 2, %s" % (vr(vTBw), t, t3))
    p("v_add_u32 %s, %s, %s" % (vr(vTBw), sr(sT0), vr(vTBw)))
    p("s_lshl_b32 %s, %s, 15" % (sr(sT0), sr(sG32L)))
    p("s_lshl_b32 %s, %s, 10" % (sr(sT1), sr(sKS)))
    p("s_add_u32 %s, %s, %s" % (sr(sT0), sr(sT0), sr(sT1)))
    p("v_lshrrev_b32 %s, 4, %s" % (t3, t))
    p("v_lshlrev_b32 %s, 14, %s" % (vr(vXw), t3))
    p("v_lshl_add_u32 %s, %s, 9, %s" % (vr(vXw), t2, vr(vXw)))
    p("v_and_b32 %s, 15, %s" % (t, l))
    p("v_lshl_add_u32 %s, %s, 4, %s" % (vr(vXw), t, vr(vXw)))
    p("v_add_u32 %s, %s, %s" % (vr(vXw), sr(sT0), vr(vXw)))
    p("v_lshrrev_b32 %s, 4, %s" % (t2, l))
    p("v_lshrrev_b32 %s, 1, %s" % (t3, t2))
    p("v_lshlrev_b32 %s, 9, %s" % (vr(vSTATEw), t3))
    p("v_lshl_add_u32 %s, %s, 4, %s" % (vr(vSTATEw), t, vr(vSTATEw)))
    p("v_and_b32 %s, 1, %s" % (t3, t2))
    p("v_lshl_add_u32 %s, %s, 3, %s" % (vr(vSTATEw), t3, vr(vSTATEw)))
    p("s_lshl_b32 %s, %s, 16" % (sr(sT0), sr(sRG)))
    p("s_lshl_b32 %s, %s, 2" % (sr(sT1), sr(sM)))
    p("s_add_u32 %s, %s, %s" % (sr(sT1), sr(sT1), sr(sWV)))
    p("s_lshl_b32 %s, %s, 10" % (sr(sT1), sr(sT1)))
    p("s_add_u32 %s, %s, %s" % (sr(sT0), sr(sT0), sr(sT1)))
    p("v_add_u32 %s, %s, %s" % (vr(vPQw), sr(sT0), vr(vSTATEw)))
    p("v_lshlrev_b32 %s, 4, %s" % (vr(vTB1), t2))
    p("v_add_u32 %s, 0x%x, %s" % (vr(vTB1), TB, vr(vTB1)))
    p("v_lshlrev_b32 %s, 2, %s" % (vr(vTB2), t))
    p("v_add_u32 %s, 0x%x, %s" % (vr(vTB2), TB, vr(vTB2)))
    p("v_lshlrev_b32 %s, 4, %s" % (t3, t2))
    p("v_lshl_add_u32 %s, %s, 6, %s" % (vr(vZr), t, t3))
    a, b = vr(VF + 2), vr(VF + 3)
    p("v_and_b32 %s, 1, %s" % (a, t))
    p("v_lshlrev_b32 %s, 4, %s" % (a, a))
    p("v_mov_b32 %s, 0x3f80" % b)
    p("v_lshlrev_b32 %s, %s, %s" % (a, a, b))
    p("v_lshrrev_b32 %s, 1, %s" % (b, t))
    p("v_lshlrev_b32 %s, 1, %s" % (t3, t2))
    p("v_cmp_eq_u32 vcc, %s, %s" % (b, t3))
    p("v_cndmask_b32 %s, 0, %s, vcc" % (vr(vSEL), a))
    p("v_add_u32 %s, 1, %s" % (t3, t3))
    p("v_cmp_eq_u32 vcc, %s, %s" % (b, t3))
    p("v_cndmask_b32 %s, 0, %s, vcc" % (vr(vSEL + 1), a))
    p("v_mov_b32 %s, %s" % (vr(vSEL + 2), vr(vSEL)))
    p("v_mov_b32 %s, %s" % (vr(vSEL + 3), vr(vSEL + 1)))
    for r in range(4):
        p("v_mov_b32 %s, 0x3f803f80" % vr(vONE + r))
    p("v_lshrrev_b32 %s, 2, %s" % (a, t))
    p("v_lshl_add_u32 %s, %s, 3, %s" % (a, t2, a))
    p("v_bfe_u32 %s, %s, 1, 1" % (b, a))
    p("v_and_b32 %s, 1, %s" % (t3, t2))
    p("v_lshl_add_u32 %s, %s, 1, %s" % (b, t3, b))
    p("v_xor_b32 %s, %s, %s" % (b, sr(sWV), b))
    p("v_lshlrev_b32 %s, 7, %s" % (a, a))
    p("v_lshl_add_u32 %s, %s, 5, %s" % (a, b, a))
    p("v_and_b32 %s, 3, %s" % (b, t))
    p("v_lshl_add_u32 %s, %s, 3, %s" % (vr(vTrW), b, a))
    p("v_lshrrev_b32 %s, 2, %s" % (a, t))
    p("v_xor_b32 %s, %s, %s" % (b, sr(sWV), a))
    p("v_lshlrev_b32 %s, 6, %s" % (b, b))
    p("v_lshl_add_u32 %s, %s, 8, %s" % (b, a, b))
    p("v_lshrrev_b32 %s, 1, %s" % (a, t2))
    p("v_lshl_add_u32 %s, %s, 10, %s" % (b, a, b))
    p("v_and_b32 %s, 1, %s" % (a, t2))
    p("v_lshl_add_u32 %s, %s, 4, %s" % (b, a, b))
    p("v_and_b32 %s, 1, %s" % (a, t))
    p("v_lshl_add_u32 %s, %s, 5, %s" % (b, a, b))
    p("v_bfe_u32 %s, %s, 1, 1" % (a, t))
    p("v_lshl_add_u32 %s, %s, 3, %s" % (vr(vTrO), a, b))
    p("v_lshlrev_b32 %s, 2, %s" % (a, t2))
    p("v_xor_b32 %s, %s, %s" % (a, t, a))
    p("v_lshlrev_b32 %s, 4, %s" % (a, a))
    p("v_lshl_add_u32 %s, %s, 10, %s" % (vr(vDmaO), t2, a))


def dmaw_address():
    l = vr(vLANE)
    a, b = vr(VF), vr(VF + 1)
    p("v_lshrrev_b32 %s, 3, %s" % (a, l))
    p("v_and_b32 %s, 2, %s" % (b, a))
    p("v_mul_u32_u24 %s, 0xc00, %s" % (a, a))
    p("v_xor_b32 %s, %s, %s" % (b, l, b))
    p("v_and_b32 %s, 7, %s" % (b, b))
    p("v_lshl_add_u32 %s, %s, 4, %s" % (vr(vDmaW), b, a))


def p0_compute():
    for d in range(4):
        src0 = SH + (d >> 1)
        src1 = SH + 2 + (d >> 1)
        if d & 1:
            p("v_and_b32 %s, %s, %s" % (vr(WF + 2 * d), sr(sMASK), vr(src0)))
            p("v_and_b32 %s, %s, %s" % (vr(WF + 2 * d + 1), sr(sMASK), vr(src1)))
        else:
            p("v_lshlrev_b32 %s, 16, %s" % (vr(WF + 2 * d), vr(src0)))
            p("v_lshlrev_b32 %s, 16, %s" % (vr(WF + 2 * d + 1), vr(src1)))
    for r in range(11):
        unpack(KF + 2 * r, KK + r)
    for t in range(8):
        p("v_pk_mul_f32 %s, %s, %s" % (vr(UF + 2 * t, 2), vr(KF + 2 * t, 2), vr(WF + 6, 2)))
    for d in (2, 1, 0):
        for t in range(8):
            p("v_pk_fma_f32 %s, %s, %s, %s" % (vr(UF + 2 * t, 2), vr(KF + 2 * (t + 3 - d), 2), vr(WF + 2 * d, 2), vr(UF + 2 * t, 2)))
    for t in range(8):
        unpack(KF + 2 * t, VV + t)
    for t in range(8):
        p("v_pk_mul_f32 %s, %s, %s" % (vr(UF + 2 * t, 2), vr(UF + 2 * t, 2), vr(KF + 2 * t, 2)))
    for c in range(2):
        for n in range(4):
            p("v_cvt_pk_bf16_f32 %s, %s, %s" % (vr(UP + 4 * c + n), vr(UF + 2 * (7 - 2 * n) + c), vr(UF + 2 * (6 - 2 * n) + c)))


def ut_address():
    l = vr(vLANE)
    t = vr(vT)
    p("s_lshl_b32 %s, %s, 16" % (sr(sT0), sr(sWV)))
    p("s_lshl_b32 %s, %s, 7" % (sr(sT1), sr(sJ)))
    p("s_sub_u32 %s, %s, %s" % (sr(sT0), sr(sT0), sr(sT1)))
    sadd(sT0, sT0, 4080)
    p("v_and_b32 %s, 7, %s" % (t, l))
    p("v_lshlrev_b32 %s, 13, %s" % (vr(vUT), t))
    p("v_lshrrev_b32 %s, 3, %s" % (t, l))
    p("v_lshlrev_b32 %s, 4, %s" % (t, t))
    p("v_sub_u32 %s, %s, %s" % (vr(vUT), vr(vUT), t))
    p("v_add_u32 %s, %s, %s" % (vr(vUT), sr(sT0), vr(vUT)))


def ut_store(soff, sc, tag=None):
    p("buffer_store_dwordx4 %s, %s, %s, %s offen%s" % (vr(UP, 4), vr(vUT), sr(sWS, 4), sr(soff), sc), tag)
    sadd(sT3, soff, 4096)
    p("buffer_store_dwordx4 %s, %s, %s, %s offen%s" % (vr(UP + 4, 4), vr(vUT), sr(sWS, 4), sr(sT3), sc), tag)


def h_copies():
    A, B = KF, KF + 8
    C = KF + 16
    t = vr(vT)
    wa = vr(vHA)
    p("v_and_b32 %s, 127, v0" % t)
    p("s_lshr_b32 %s, %s, 1" % (sr(sT0), sr(sWV)))
    p("s_lshl_b32 %s, %s, 16" % (sr(sT1), sr(sDV)))
    p("s_and_b32 %s, %s, %s" % (sr(sT2), sr(sDV), sr(sMASK)))
    p("s_cmp_eq_u32 %s, 0" % sr(sT0))
    p("s_cselect_b32 %s, %s, %s" % (sr(sT1), sr(sT1), sr(sT2)))
    p("v_cmp_eq_u32 vcc, 0, %s" % t)
    p("v_lshlrev_b32 %s, 16, %s" % (vr(C), vr(HE + 2)))
    p("v_add_f32 %s, %s, %s" % (vr(C), sr(sT1), vr(C)))
    p("v_cvt_pk_bf16_f32 %s, %s, %s" % (vr(C), vr(C), vr(C)))
    p("v_bfi_b32 %s, %s, %s, %s" % (vr(C), sr(sMASK), vr(HE + 2), vr(C)))
    p("v_cndmask_b32 %s, %s, %s, vcc" % (vr(HE + 2), vr(HE + 2), vr(C)))
    p("v_cndmask_b32_e64 %s, %s, 0, vcc" % (vr(HE), vr(HE)))
    p("v_cndmask_b32_e64 %s, %s, 0, vcc" % (vr(HE + 1), vr(HE + 1)))
    p("s_mul_i32 %s, %s, %d" % (sr(sT0), sr(sT0), HCH))
    sadd(sT0, sT0, HB + 32)
    p("v_lshlrev_b32 %s, 5, %s" % (wa, t))
    p("v_add_u32 %s, %s, %s" % (wa, sr(sT0), wa))
    p("ds_write_b128 %s, %s offset:%d" % (wa, vr(HE + 2, 4), 3 * HCOPY))
    p("ds_write_b128 %s, %s offset:%d" % (wa, vr(HE + 6, 4), 3 * HCOPY + 16))
    for n in range(8):
        p("v_alignbit_b32 %s, %s, %s, 16" % (vr(A + n), vr(HE + n + 1), vr(HE + n)))
    p("ds_write_b128 %s, %s offset:%d" % (wa, vr(A, 4), 0))
    p("ds_write_b128 %s, %s offset:%d" % (wa, vr(A + 4, 4), 16))
    for n in range(8):
        p("v_alignbit_b32 %s, %s, %s, 16" % (vr(B + n), vr(HE + n + 2), vr(HE + n + 1)))
    p("ds_write_b128 %s, %s offset:%d" % (wa, vr(B, 4), 2 * HCOPY))
    p("ds_write_b128 %s, %s offset:%d" % (wa, vr(B + 4, 4), 2 * HCOPY + 16))
    for n in range(8):
        p("v_mov_b32 %s, %s" % (vr(UF + n), vr(HE + n + 1)))
    p("ds_write_b128 %s, %s offset:%d" % (wa, vr(UF, 4), HCOPY))
    p("ds_write_b128 %s, %s offset:%d" % (wa, vr(UF + 4, 4), HCOPY + 16))


def lds_zero():
    z = KF
    t, a = vr(vT), vr(vHB)
    for r in range(4):
        p("v_mov_b32 %s, 0" % vr(z + r))
    skip = p.newlabel("zero")
    skip2 = p.newlabel("zero")
    p("s_cmp_lg_u32 %s, 0" % sr(sWV))
    p("s_cbranch_scc1 %s" % skip)
    p("v_lshrrev_b32 %s, 5, v0" % t)
    p("v_mul_u32_u24 %s, %d, %s" % (a, UCH - 512, t))
    p("v_lshl_add_u32 %s, v0, 4, %s" % (a, a))
    p("v_add_u32 %s, 0x%x, %s" % (a, UB + 4096, a))
    p("ds_write_b128 %s, %s" % (a, vr(z, 4)))
    p.label(skip)
    p("s_cmp_lg_u32 %s, 1" % sr(sWV))
    p("s_cbranch_scc1 %s" % skip2)
    p("v_bfe_u32 %s, v0, 1, 3" % t)
    p("v_mul_u32_u24 %s, %d, %s" % (a, HCOPY, t))
    p("v_and_b32 %s, 1, v0" % t)
    p("v_lshl_add_u32 %s, %s, 4, %s" % (a, t, a))
    p("v_add_u32 %s, 0x%x, %s" % (a, HB, a))
    p("ds_write_b128 %s, %s" % (a, vr(z, 4)))
    p.label(skip2)


def afrag_preload():
    l = vr(vLANE)
    a, t, t2 = vr(vHA), vr(vT), vr(vHB)
    p("s_lshr_b32 %s, %s, 1" % (sr(sT0), sr(sWV)))
    p("s_mul_i32 %s, %s, %d" % (sr(sT0), sr(sT0), HCH))
    p("s_and_b32 %s, %s, 1" % (sr(sT1), sr(sWV)))
    p("s_lshl_b32 %s, %s, 8" % (sr(sT1), sr(sT1)))
    p("s_add_u32 %s, %s, %s" % (sr(sT0), sr(sT0), sr(sT1)))
    sadd(sT0, sT0, HB + 8)
    p("v_and_b32 %s, 3, %s" % (t, l))
    p("v_mul_u32_u24 %s, %d, %s" % (a, HCOPY, t))
    p("v_and_b32 %s, 12, %s" % (t, l))
    p("v_lshl_add_u32 %s, %s, 1, %s" % (a, t, a))
    p("v_and_b32 %s, 48, %s" % (t, l))
    p("v_add3_u32 %s, %s, %s, %s" % (a, a, t, sr(sT0)))
    for rho in range(4):
        for aa in range(8):
            off = 512 * aa + 64 * rho
            r = aH + 4 * (8 * rho + aa)
            p("ds_read_b64 %s, %s offset:%d" % (ar(r, 2), a, off))
            p("ds_read_b64 %s, %s offset:%d" % (ar(r + 2, 2), a, off + 8))


def handoff_ut():
    F = KF
    E = KF + 4
    FB = KF + 8
    top, fast, got = p.newlabel("h1"), p.newlabel("h1fast"), p.newlabel("h1got")
    slow, slowtop = p.newlabel("h1slow"), p.newlabel("h1slowtop")
    p("s_add_u32 %s, %s, %s" % (sr(sP), sr(sTAG), sr(sXCC)))
    p("s_addc_u32 %s, %s, 0" % (sr(sP + 1), sr(sTAG + 1)))
    sadd(sT0, sCLS, C_FLAGA)
    p("v_and_b32 %s, 0xff, %s" % (vr(E), vr(vL8)))
    p("s_mov_b32 %s, %d" % (sr(sCNT), 0 if FORCE_SLOW else 48))
    p.label(top)
    p("buffer_load_dwordx2 %s, %s, %s, %s offen sc1" % (vr(F, 2), vr(E), sr(sWS, 4), sr(sT0)))
    p("v_cmp_ne_u64 vcc, %s, %s" % (sr(sP, 2), vr(F, 2)))
    if not FORCE_SLOW:
        p("s_cbranch_vccz %s" % fast)
    p("s_sub_u32 %s, %s, 1" % (sr(sCNT), sr(sCNT)))
    p("s_cbranch_scc0 %s" % top)
    p("s_branch %s" % slow)
    p.label(fast)
    p("s_mov_b32 %s, 1" % sr(sMODE))
    sadd(sUSRC, sCLS, C_UTA)
    p.label(got)

    def blk():
        p.label(slow)
        p("s_lshl_b32 %s, %s, 18" % (sr(sUSRC), sr(sX)))
        sadd(sUSRC, sUSRC, UTB)
        ut_store(sUSRC, " sc1")
        p.waitvm()
        p("s_lshl_b32 %s, %s, 10" % (sr(sT1), sr(sX)))
        sadd(sT1, sT1, FLAGB)
        p("s_lshl_b32 %s, %s, 2" % (sr(sT2), sr(sJ)))
        p("s_add_u32 %s, %s, %s" % (sr(sT2), sr(sT2), sr(sWV)))
        p("s_lshl_b32 %s, %s, 3" % (sr(sT2), sr(sT2)))
        p("s_add_u32 %s, %s, %s" % (sr(sT2), sr(sT2), sr(sT1)))
        flag_store(sT2, local=False)
        p("s_mov_b32 %s, %s" % (sr(sCNT), sr(sLIM)))
        p("s_mov_b32 %s, 0" % sr(sMODE))
        p.label(slowtop)
        p("buffer_load_dwordx2 %s, %s, %s, %s offen sc1" % (vr(F, 2), vr(E), sr(sWS, 4), sr(sT0)))
        p("buffer_load_dwordx2 %s, %s, %s, %s offen sc1" % (vr(FB, 2), vr(vL8), sr(sWS, 4), sr(sT1)))
        p("buffer_load_dwordx2 %s, %s, %s, %s offen offset:512 sc1" % (vr(FB + 2, 2), vr(vL8), sr(sWS, 4), sr(sT1)))
        if not FORCE_SLOW:
            p("v_cmp_ne_u64 vcc, %s, %s" % (sr(sP, 2), vr(F, 2)))
            p("s_cbranch_vccz %s" % fast)
        p("v_cmp_ne_u64 vcc, %s, %s" % (sr(sTAG, 2), vr(FB, 2)))
        p("v_cmp_ne_u64 %s, %s, %s" % (sr(sTS, 2), sr(sTAG, 2), vr(FB + 2, 2)))
        p("s_or_b64 vcc, vcc, %s" % sr(sTS, 2))
        p("s_cbranch_vccz %s" % got)
        p("s_sub_u32 %s, %s, 1" % (sr(sCNT), sr(sCNT)))
        p("s_cbranch_scc0 %s" % slowtop)
        p("s_mov_b32 %s, 0" % sr(sLIM))
        p("s_or_b32 %s, %s, 1" % (sr(sERR), sr(sERR)))
        p("s_branch %s" % got)

    tail.append(blk)
    p("s_lshl_b32 %s, %s, 13" % (sr(sT0), sr(sJ)))
    p("s_add_u32 %s, %s, %s" % (sr(sT0), sr(sT0), sr(sUSRC)))
    p("s_lshl_b32 %s, %s, 11" % (sr(sT1), sr(sWV)))
    p("s_add_u32 %s, %s, %s" % (sr(sT0), sr(sT0), sr(sT1)))
    p("s_lshr_b32 %s, %s, 1" % (sr(sT2), sr(sWV)))
    p("s_lshl_b32 %s, %s, 9" % (sr(sT2), sr(sT2)))
    p("s_add_u32 %s, %s, %s" % (sr(sT1), sr(sT1), sr(sT2)))
    p("s_add_u32 m0, %s, %d" % (sr(sT1), UB))
    p("buffer_load_dwordx4 %s, %s, %s offen sc1 lds" % (vr(vL16), sr(sWS, 4), sr(sT0)))
    p("buffer_load_dwordx4 %s, %s, %s offen offset:1024 sc1 lds" % (vr(vL16), sr(sWS, 4), sr(sT0)))


CACC = S0 + 8
CB = S0 + 40
CR = S0 + 72
vCB, vCE, vYw = S0 + 4, S0 + 5, S0 + 6


def conv_addresses():
    l = vr(vLANE)
    t = vr(vT)
    p("s_lshr_b32 %s, %s, 1" % (sr(sT0), sr(sWV)))
    p("s_mul_i32 %s, %s, %d" % (sr(sT0), sr(sT0), UCH))
    p("s_and_b32 %s, %s, 1" % (sr(sT1), sr(sWV)))
    p("s_lshl_b32 %s, %s, 8" % (sr(sT1), sr(sT1)))
    p("s_add_u32 %s, %s, %s" % (sr(sT0), sr(sT0), sr(sT1)))
    sadd(sT0, sT0, UB + 480)
    p("v_and_b32 %s, 15, %s" % (t, l))
    p("v_lshlrev_b32 %s, 5, %s" % (vr(vCB), t))
    p("v_sub_u32 %s, %s, %s" % (vr(vCB), sr(sT0), vr(vCB)))
    p("v_lshlrev_b32 %s, 6, %s" % (vr(vYw), t))
    p("v_and_b32 %s, 48, %s" % (t, l))
    p("v_add_u32 %s, %s, %s" % (vr(vCB), vr(vCB), t))
    p("v_add_u32 %s, %s, %s" % (vr(vYw), vr(vYw), t))


def conv(extra):
    def rd(m, rho):
        p("ds_read_b128 %s, %s offset:%d" % (vr(CB + 4 * m, 4), vr(vCB), 512 * (7 - m) + 64 * rho))

    def mm(a, m, rho, first):
        acc = vr(CACC + 4 * (a + m), 4)
        p("v_mfma_f32_16x16x32_bf16 %s, %s, %s, %s" % (acc, ar(aH + 4 * (8 * rho + a), 4), vr(CB + 4 * m, 4), "0" if first else acc))

    for m in range(8):
        rd(m, 0)
    extra()
    for rho in range(3):
        for m in range(8):
            for a in range(8 - m):
                mm(a, m, rho, rho == 0 and m == 0)
            rd(m, rho + 1)
    p("s_lshl_b32 %s, %s, 5" % (sr(sT0), sr(sX)))
    p("s_add_u32 %s, %s, %s" % (sr(sT0), sr(sT0), sr(sJ)))
    p("s_lshl_b32 %s, %s, 13" % (sr(sT0), sr(sT0)))
    sadd(sT0, sT0, YB)
    labs = [p.newlabel("cv%d" % w) for w in range(4)]
    join = p.newlabel("cvjoin")
    for w in range(1, 4):
        p("s_cmp_eq_u32 %s, %d" % (sr(sWV), w))
        p("s_cbranch_scc1 %s" % labs[w])
    for w in range(4):
        p.label(labs[w])
        keep = (w, 7 - w)
        send = [jt for jt in range(7, -1, -1) if jt not in keep]
        pend = []
        for jt in send + list(keep):
            for a in range(jt + 1):
                mm(a, jt - a, 3, False)
            if pend:
                j2 = pend.pop()
                d = min(j2, 7 - j2)
                slot = (w - d - 1) % 4
                p("ds_write_b128 %s, %s offset:%d" % (vr(vL16), vr(CACC + 4 * j2, 4), EX + (d * 3 + slot) * 2048 + (0 if j2 < 4 else 1024)))
            if jt in send:
                pend.append(jt)
        barrier()
        for slot in range(3):
            for k2 in range(2):
                p("ds_read_b128 %s, %s offset:%d" % (vr(CR + 8 * slot + 4 * k2, 4), vr(vL16), EX + (w * 3 + slot) * 2048 + 1024 * k2))
        partner = w ^ 1
        others = [o for o in range(4) if (o >> 1) != (w >> 1)]
        sl = lambda o: (o - w - 1) % 4
        for k2 in range(2):
            jt = keep[k2]
            own = CACC + 4 * jt
            pr = CR + 8 * sl(partner) + 4 * k2
            o0 = CR + 8 * sl(others[0]) + 4 * k2
            o1 = CR + 8 * sl(others[1]) + 4 * k2
            for e in (0, 2):
                p("v_pk_add_f32 %s, %s, %s" % (vr(own + e, 2), vr(own + e, 2), vr(pr + e, 2)))
                p("v_pk_add_f32 %s, %s, %s" % (vr(o0 + e, 2), vr(o0 + e, 2), vr(o1 + e, 2)))
            lo, hi = (own, o0) if (w >> 1) == 0 else (o0, own)
            for e in range(4):
                p("v_cvt_pk_bf16_f32 %s, %s, %s" % (vr(pr + e), vr(lo + e), vr(hi + e)))
            for e in range(4):
                p("v_min_u32 %s, -2, %s" % (vr(pr + e), vr(pr + e)))
            if jt >= 4:
                sadd(sT0, sT0, 4096)
            p("buffer_store_dwordx4 %s, %s, %s, %s offen offset:%d sc1" % (vr(pr, 4), vr(vYw), sr(sWS, 4), sr(sT0), 1024 * (jt % 4)))
        if w < 3:
            p("s_branch %s" % join)
    p.label(join)


def hello_check():
    F = S0 + 8
    p("s_mov_b32 %s, 0x%x" % (sr(sT0), HELLO))

    def issue():
        for u in range(4):
            p("buffer_load_dwordx2 %s, %s, %s, %s offen offset:%d sc1" % (vr(F + 2 * u, 2), vr(vL8), sr(sWS, 4), sr(sT0), 512 * u))

    def check():
        p("v_cmp_ne_u64 vcc, %s, %s" % (sr(sTAG, 2), vr(F, 2)))
        for u in range(1, 4):
            p("v_cmp_ne_u64 %s, %s, %s" % (sr(sP, 2), sr(sTAG, 2), vr(F + 2 * u, 2)))
            p("s_or_b64 vcc, vcc, %s" % sr(sP, 2))

    poll(issue, check, 1)


def colsum(a0, dst, transposed):
    acc = S0 + 8
    for ks in range(16):
        A, B = vr(vONE, 4), ar(a0 + 4 * ks, 4)
        if transposed:
            A, B = B, A
        p("v_mfma_f32_16x16x32_bf16 %s, %s, %s, %s" % (vr(acc, 4), A, B, "0" if ks == 0 else vr(acc, 4)))
    for e in range(4 if transposed else 1):
        p("v_mov_b32 %s, %s" % (vr(dst + e), vr(acc + e)))


N0 = S0 + 32


def normalise(vR, vNM):
    for e in range(0, 16, 2):
        p("v_pk_fma_f32 %s, %s, %s, %s op_sel_hi:[1,0,0]" % (vr(N0 + e, 2), vr(vX + e, 2), vr(vR, 2), vr(vNM, 2)))


def gate_and_publish(L):
    XP = S0 + 48
    for e in range(0, 16, 2):
        p("v_pk_fma_f32 %s, %s, %s, %s" % (vr(vX + e, 2), vr(N0 + e, 2), vr(vY + e, 2), vr(vX + e, 2)))
    for e in range(8):
        p("v_cvt_pk_bf16_f32 %s, %s, %s" % (vr(XP + e), vr(vX + 2 * e), vr(vX + 2 * e + 1)))
    sadd(sT0, sCLS, C_X + L * 0x40000)
    local_stores(
        [
            "buffer_store_dwordx4 %s, %s, %s, %s offen" % (vr(XP, 4), vr(vXw), sr(sWS, 4), sr(sT0)),
            "buffer_store_dwordx4 %s, %s, %s, %s offen offset:256" % (vr(XP + 4, 4), vr(vXw), sr(sWS, 4), sr(sT0)),
        ],
        "xst",
    )
    stats_compute(S0 + 56, S0 + 58)
    p("s_lshl_b32 %s, %s, 4" % (sr(sT1), sr(sG32L)))
    p("s_add_u32 %s, %s, %s" % (sr(sT1), sr(sT1), sr(sKS)))
    p("s_lshl_b32 %s, %s, 3" % (sr(sT1), sr(sT1)))
    p("s_add_u32 %s, %s, %s" % (sr(sT1), sr(sT1), sr(sCLS)))
    sadd(sT1, sT1, C_FLAGX + L * 0x400)
    p.waitvm("xst")
    flag_store(sT1)
    sadd(sT0, sCLS, st_off(1 + 2 * L))
    local_stores(["buffer_store_dword %s, %s, %s, %s offen" % (vr(S0 + 56), vr(vSTw), sr(sWS, 4), sr(sT0))])


GA = S0 + 8
GK, GV, GQ = S0 + 40, S0 + 56, S0 + 72
GT = S0 + 88


def gemm_kv(L):
    F = GT
    p("s_lshl_b32 %s, %s, 1" % (sr(sT0), sr(sRG)))
    p("s_lshr_b32 %s, %s, 1" % (sr(sT1), sr(sWV)))
    p("s_add_u32 %s, %s, %s" % (sr(sT0), sr(sT0), sr(sT1)))
    p("s_lshl_b32 %s, %s, 7" % (sr(sT0), sr(sT0)))
    p("s_add_u32 %s, %s, %s" % (sr(sT0), sr(sT0), sr(sCLS)))
    sadd(sT0, sT0, C_FLAGX + L * 0x400)
    p("v_and_b32 %s, 0x7f, %s" % (vr(F + 2), vr(vL8)))
    p("s_lshl_b32 %s, %s, 16" % (sr(sT1), sr(sRG)))
    p("s_lshl_b32 %s, %s, 14" % (sr(sT2), sr(sWV)))
    p("s_add_u32 %s, %s, %s" % (sr(sT1), sr(sT1), sr(sT2)))
    p("s_add_u32 %s, %s, %s" % (sr(sT1), sr(sT1), sr(sCLS)))
    sadd(sT1, sT1, C_X + L * 0x40000)
    p("s_add_u32 m0, %s, %d" % (sr(sT2), AB))
    poll(
        lambda: p("buffer_load_dwordx2 %s, %s, %s, %s offen sc1" % (vr(F, 2), vr(F + 2), sr(sWS, 4), sr(sT0))),
        lambda: p("v_cmp_ne_u64 vcc, %s, %s" % (sr(sTAG, 2), vr(F, 2))),
        3,
    )
    stamp("xflag%d" % L)
    for s in range(4):
        for k2 in range(4):
            p("buffer_load_dwordx4 %s, %s, %s offen offset:%d sc1 lds" % (vr(vL16), sr(sWS, 4), sr(sT1), 1024 * k2), "a%d" % s)
        if s < 3:
            p("s_add_u32 m0, m0, 4096")
            sadd(sT1, sT1, 4096)
    p("s_lshl_b32 %s, %s, 1" % (sr(sT0), sr(sRG)))
    p("s_and_b32 %s, %s, 1" % (sr(sT1), sr(sWV)))
    p("s_add_u32 %s, %s, %s" % (sr(sT0), sr(sT0), sr(sT1)))
    p("s_lshl_b32 %s, %s, 12" % (sr(sT0), sr(sT0)))
    p("s_add_u32 %s, %s, %s" % (sr(sT0), sr(sT0), sr(sCLS)))
    sadd(sT3, sT0, st_off(1 + 2 * L))
    p("v_add_u32 %s, 0x%x, %s" % (vr(S0 + 123), AB, vr(vL16)))

    def rd(ks):
        for tt in range(4):
            p("ds_read_b128 %s, %s offset:%d" % (vr(GA + 16 * (ks & 1) + 4 * tt, 4), vr(S0 + 123), tt * 16384 + ks * 1024))

    p.waitvm("a0")
    barrier()
    if L == 0:
        stage_wo(0, R1, "wo")
    rd(0)
    for ks in range(16):
        if ks < 15:
            if (ks + 1) % 4 == 0:
                p.waitvm("a%d" % ((ks + 1) // 4))
                if ks + 1 == 12:
                    poll(lambda: stats_issue(GT, sT3), lambda: check_sentinel(range(GT, GT + 16), GT + 16), 4)
                    stats_finish(GT, GT + 16, GT + 17)
                    p("v_cmp_gt_u32 vcc, 0x200, %s" % vr(vL16))
                    p("v_cndmask_b32 %s, %s, %s, vcc" % (vr(GT + 16), vr(GT + 17), vr(GT + 16)))
                    p("ds_write_b32 %s, %s" % (vr(vTBw), vr(GT + 16)))
                    p.waitlg()
                p("s_barrier")
            rd(ks + 1)
        for tt in range(4):
            A = vr(GA + 16 * (ks & 1) + 4 * tt, 4)
            for acc, w in ((GK, aWK), (GV, aWV)):
                d = vr(acc + 4 * tt, 4)
                p("v_mfma_f32_16x16x32_bf16 %s, %s, %s, %s" % (d, A, ar(w + 4 * ks, 4), "0" if ks == 0 else d))
    stamp("gemmkv%d" % L)
    for tt in range(4):
        p("ds_read_b128 %s, %s offset:%d" % (vr(GT + 8 * tt, 4), vr(vTB1), 64 * tt))
        p("ds_read_b128 %s, %s offset:%d" % (vr(GT + 8 * tt + 4, 4), vr(vTB1), 256 + 64 * tt))
    PK, PV, T = GA, GA + 8, GA + 16
    for tt in range(4):
        Rr, NM = GT + 8 * tt, GT + 8 * tt + 4
        k0, v0 = GK + 4 * tt, GV + 4 * tt
        for e in range(4):
            p("v_fma_f32 %s, %s, %s, %s" % (vr(T + e), vr(NM + e), vr(vCSK), sr(sEPS6)))
        for e in (0, 2):
            p("v_pk_fma_f32 %s, %s, %s, %s" % (vr(k0 + e, 2), vr(k0 + e, 2), vr(Rr + e, 2), vr(T + e, 2)))
        for e in range(4):
            p("v_mul_f32 %s, %s, %s" % (vr(T + e), sr(sLOG2E), vr(k0 + e)))
        for e in range(4):
            p("v_exp_f32_e64 %s, %s clamp" % (vr(T + e), vr(T + e)))
        for e in range(4):
            p("v_max_f32 %s, %s, %s" % (vr(k0 + e), sr(sEPS6), vr(k0 + e)))
        for e in (0, 2):
            p("v_pk_add_f32 %s, %s, %s" % (vr(k0 + e, 2), vr(k0 + e, 2), vr(T + e, 2)))
        for e in range(4):
            p("v_mul_f32 %s, %s, %s" % (vr(T + 4 + e), vr(NM + e), vr(vCSV)))
        for e in (0, 2):
            p("v_pk_fma_f32 %s, %s, %s, %s" % (vr(v0 + e, 2), vr(v0 + e, 2), vr(Rr + e, 2), vr(T + 4 + e, 2)))
        for e in (0, 2):
            p("v_cvt_pk_bf16_f32 %s, %s, %s" % (vr(PK + 2 * tt + e // 2), vr(k0 + e), vr(k0 + e + 1)))
            p("v_cvt_pk_bf16_f32 %s, %s, %s" % (vr(PV + 2 * tt + e // 2), vr(v0 + e), vr(v0 + e + 1)))
    KV, Z = GK, GK + 4
    p("v_mfma_f32_16x16x32_bf16 %s, %s, %s, 0" % (vr(KV, 4), vr(PK, 4), vr(PV, 4)))
    p("v_mfma_f32_16x16x32_bf16 %s, %s, %s, %s" % (vr(KV, 4), vr(PK + 4, 4), vr(PV + 4, 4), vr(KV, 4)))
    p("v_mfma_f32_16x16x32_bf16 %s, %s, %s, 0" % (vr(Z, 4), vr(PK, 4), vr(vONE, 4)))
    p("v_mfma_f32_16x16x32_bf16 %s, %s, %s, %s" % (vr(Z, 4), vr(PK + 4, 4), vr(vONE, 4), vr(Z, 4)))
    p("s_lshl_b32 %s, %s, 2" % (sr(sT0), sr(sM)))
    p("s_add_u32 %s, %s, %s" % (sr(sT0), sr(sT0), sr(sWV)))
    p("s_lshl_b32 %s, %s, 5" % (sr(sT0), sr(sT0)))
    p("s_lshl_b32 %s, %s, 2" % (sr(sT1), sr(sX)))
    p("s_add_u32 %s, %s, %s" % (sr(sT0), sr(sT0), sr(sT1)))
    p("s_add_u32 %s, %s, %s" % (sr(sT0), sr(sT0), sr(sRG)))
    p("s_lshl_b32 %s, %s, 9" % (sr(sT1), sr(sT0)))
    sadd(sT1, sT1, KVP + L * 0x80000)
    p("s_lshl_b32 %s, %s, 6" % (sr(sT2), sr(sT0)))
    sadd(sT2, sT2, ZP + L * 0x10000)
    p("v_cvt_pk_bf16_f32 %s, %s, %s" % (vr(T), vr(KV), vr(KV + 1)))
    p("v_cvt_pk_bf16_f32 %s, %s, %s" % (vr(T + 1), vr(KV + 2), vr(KV + 3)))
    p("v_min_u32 %s, -2, %s" % (vr(T), vr(T)))
    p("v_min_u32 %s, -2, %s" % (vr(T + 1), vr(T + 1)))
    p("buffer_store_dwordx2 %s, %s, %s, %s offen sc1" % (vr(T, 2), vr(vL8), sr(sWS, 4), sr(sT1)))
    for e in range(4):
        p("v_min_u32 %s, -2, %s" % (vr(Z + e), vr(Z + e)))
    p("s_mov_b32 exec_lo, 0x00010001")
    p("s_mov_b32 exec_hi, 0x00010001")
    p("buffer_store_dwordx4 %s, %s, %s, %s offen sc1" % (vr(Z, 4), vr(vZr), sr(sWS, 4), sr(sT2)))
    p("s_mov_b64 exec, -1")
    stamp("kvpub%d" % L)


def gemm_q(L):
    def rd(ks):
        for tt in range(4):
            p("ds_read_b128 %s, %s offset:%d" % (vr(GA + 16 * (ks & 1) + 4 * tt, 4), vr(S0 + 123), tt * 16384 + ks * 1024))

    p("v_add_u32 %s, 0x%x, %s" % (vr(S0 + 123), AB, vr(vL16)))
    for tt in range(4):
        p("ds_read_b32 %s, %s offset:%d" % (vr(GT + 2 * tt), vr(vTB2), 64 * tt))
        p("ds_read_b32 %s, %s offset:%d" % (vr(GT + 2 * tt + 1), vr(vTB2), 256 + 64 * tt))
    rd(0)
    for ks in range(16):
        if ks < 15:
            rd(ks + 1)
        for tt in range(4):
            B = vr(GA + 16 * (ks & 1) + 4 * tt, 4)
            d = vr(GQ + 4 * tt, 4)
            p("v_mfma_f32_16x16x32_bf16 %s, %s, %s, %s" % (d, ar(aWQ + 4 * ks, 4), B, "0" if ks == 0 else d))
    T = GA
    PQ = GA + 8
    sadd(sT0, sCLS, C_PQ + L * 0x40000)
    sadd(sT1, sT0, 32768)
    lines = []
    for tt in range(4):
        Rr, NM = GT + 2 * tt, GT + 2 * tt + 1
        q0 = GQ + 4 * tt
        for e in range(4):
            p("v_fma_f32 %s, %s, %s, %s" % (vr(T + e), vr(NM), vr(vCSQ + e), sr(sEPS6)))
        for e in range(4):
            p("v_fma_f32 %s, %s, %s, %s" % (vr(q0 + e), vr(q0 + e), vr(Rr), vr(T + e)))
        for e in range(4):
            p("v_mul_f32 %s, %s, %s" % (vr(T + e), sr(sLOG2E), vr(q0 + e)))
        for e in range(4):
            p("v_exp_f32_e64 %s, %s clamp" % (vr(T + e), vr(T + e)))
        for e in range(4):
            p("v_max_f32 %s, %s, %s" % (vr(q0 + e), sr(sEPS6), vr(q0 + e)))
        for e in (0, 2):
            p("v_pk_add_f32 %s, %s, %s" % (vr(q0 + e, 2), vr(q0 + e, 2), vr(T + e, 2)))
        for e in (0, 2):
            p("v_cvt_pk_bf16_f32 %s, %s, %s" % (vr(PQ + 2 * tt + e // 2), vr(q0 + e), vr(q0 + e + 1)))
        lines.append(
            "buffer_store_dwordx2 %s, %s, %s, %s offen offset:%d" % (vr(PQ + 2 * tt, 2), vr(vPQw), sr(sWS, 4), sr(sT0 if tt < 2 else sT1), 256 * (tt & 1))
        )
    local_stores(lines, "pqst")
    p("s_lshl_b32 %s, %s, 5" % (sr(sT0), sr(sRG)))
    p("s_lshl_b32 %s, %s, 2" % (sr(sT1), sr(sM)))
    p("s_add_u32 %s, %s, %s" % (sr(sT0), sr(sT0), sr(sT1)))
    p("s_add_u32 %s, %s, %s" % (sr(sT0), sr(sT0), sr(sWV)))
    p("s_lshl_b32 %s, %s, 3" % (sr(sT0), sr(sT0)))
    p("s_add_u32 %s, %s, %s" % (sr(sT0), sr(sT0), sr(sCLS)))
    sadd(sT0, sT0, C_FLAGPQ + L * 0x400)
    p.waitvm("pqst")
    flag_store(sT0)


OPQ = S0 + 8
OST = S0 + 40
OD = S0 + 72
OF = S0 + 104


def head_off(u):
    return (u & 3) * 1024 + (u >> 2) * 16384


def reduce_state(L):
    P = OST
    ZL = OST + 16
    D = OST + 24
    RC = OD
    T = OD + 12
    p("s_lshl_b32 %s, %s, 5" % (sr(sT0), sr(sJ)))
    p("s_lshl_b32 %s, %s, 6" % (sr(sT2), sr(sT0)))
    sadd(sT2, sT2, ZP + L * 0x10000)
    p("s_lshl_b32 %s, %s, 3" % (sr(sT1), sr(sWV)))
    p("s_add_u32 %s, %s, %s" % (sr(sT0), sr(sT0), sr(sT1)))
    p("s_lshl_b32 %s, %s, 9" % (sr(sT0), sr(sT0)))
    sadd(sT0, sT0, KVP + L * 0x80000)

    def issue():
        for u in range(8):
            p("buffer_load_dwordx2 %s, %s, %s, %s offen offset:%d sc1" % (vr(P + 2 * u, 2), vr(vL8), sr(sWS, 4), sr(sT0), 512 * u))

    poll(issue, lambda: check_sentinel(range(P, P + 16), T), 5)
    stamp("kvgot%d" % L)
    for u in range(4):
        p("v_mfma_f32_16x16x32_bf16 %s, %s, %s, %s" % (vr(D, 4), vr(vSEL, 4), vr(P + 4 * u, 4), "0" if u == 0 else vr(D, 4)))
    p("s_lshl_b32 %s, %s, 10" % (sr(sT1), sr(sWV)))
    sadd(sT1, sT1, RS)
    p("v_add_u32 %s, %s, %s" % (vr(T), sr(sT1), vr(vL16)))
    p("s_lshl_b32 %s, %s, 10" % (sr(sT3), sr(sJ)))
    p("s_add_u32 %s, %s, %s" % (sr(sT3), sr(sT3), sr(sCLS)))
    sadd(sT3, sT3, C_STATE + L * 0x8000)
    p("ds_write_b128 %s, %s" % (vr(T), vr(D, 4)))
    barrier()
    w1, done = p.newlabel("red1"), p.newlabel("reddone")
    p("s_cmp_eq_u32 %s, 1" % sr(sWV))
    p("s_cbranch_scc1 %s" % w1)
    p("s_cmp_lg_u32 %s, 0" % sr(sWV))
    p("s_cbranch_scc1 %s" % done)
    for u in range(3):
        p("ds_read_b128 %s, %s offset:%d" % (vr(RC + 4 * u, 4), vr(T), 1024 * (u + 1)))
    for e in (0, 2):
        p("v_pk_add_f32 %s, %s, %s" % (vr(D + e, 2), vr(D + e, 2), vr(RC + e, 2)))
        p("v_pk_add_f32 %s, %s, %s" % (vr(RC + 4 + e, 2), vr(RC + 4 + e, 2), vr(RC + 8 + e, 2)))
    for e in (0, 2):
        p("v_pk_add_f32 %s, %s, %s" % (vr(D + e, 2), vr(D + e, 2), vr(RC + 4 + e, 2)))
    p("v_cvt_pk_bf16_f32 %s, %s, %s" % (vr(D), vr(D), vr(D + 1)))
    p("v_cvt_pk_bf16_f32 %s, %s, %s" % (vr(D + 1), vr(D + 2), vr(D + 3)))
    p("v_min_u32 %s, -2, %s" % (vr(D), vr(D)))
    p("v_min_u32 %s, -2, %s" % (vr(D + 1), vr(D + 1)))
    local_stores(["buffer_store_dwordx2 %s, %s, %s, %s offen" % (vr(D, 2), vr(vSTATEw), sr(sWS, 4), sr(sT3))])
    p("s_branch %s" % done)
    p.label(w1)

    def issue_z():
        for u in range(2):
            p("buffer_load_dwordx4 %s, %s, %s, %s offen offset:%d sc1" % (vr(ZL + 4 * u, 4), vr(vZr), sr(sWS, 4), sr(sT2), 1024 * u))

    poll(issue_z, lambda: check_sentinel(range(ZL, ZL + 8), T), 6)
    for e in (0, 2):
        p("v_pk_add_f32 %s, %s, %s" % (vr(ZL + e, 2), vr(ZL + e, 2), vr(ZL + 4 + e, 2)))
    for sh in (8, 4, 2, 1):
        for e in range(4):
            p("v_add_f32_dpp %s, %s, %s row_ror:%d row_mask:0xf bank_mask:0xf" % (vr(ZL + e), vr(ZL + e), vr(ZL + e), sh))
    p("v_cvt_pk_bf16_f32 %s, %s, %s" % (vr(ZL), vr(ZL), vr(ZL + 1)))
    p("v_cvt_pk_bf16_f32 %s, %s, %s" % (vr(ZL + 1), vr(ZL + 2), vr(ZL + 3)))
    p("v_min_u32 %s, -2, %s" % (vr(ZL), vr(ZL)))
    p("v_min_u32 %s, -2, %s" % (vr(ZL + 1), vr(ZL + 1)))
    local_stores(["buffer_store_dwordx2 %s, %s, %s, %s offen offset:256" % (vr(ZL, 2), vr(vSTATEw), sr(sWS, 4), sr(sT3))])
    p.label(done)


def load_pq(L):
    F = OD
    p("s_lshl_b32 %s, %s, 8" % (sr(sT0), sr(sRG)))
    p("s_add_u32 %s, %s, %s" % (sr(sT0), sr(sT0), sr(sCLS)))
    sadd(sT0, sT0, C_FLAGPQ + L * 0x400)
    p("v_and_b32 %s, 0xff, %s" % (vr(F + 2), vr(vL8)))
    poll(
        lambda: p("buffer_load_dwordx2 %s, %s, %s, %s offen sc1" % (vr(F, 2), vr(F + 2), sr(sWS, 4), sr(sT0))),
        lambda: p("v_cmp_ne_u64 vcc, %s, %s" % (sr(sTAG, 2), vr(F, 2))),
        7,
    )
    p("s_lshl_b32 %s, %s, 15" % (sr(sT0), sr(sG32L)))
    p("s_lshl_b32 %s, %s, 12" % (sr(sT1), sr(sWV)))
    p("s_add_u32 %s, %s, %s" % (sr(sT0), sr(sT0), sr(sT1)))
    p("s_add_u32 %s, %s, %s" % (sr(sT0), sr(sT0), sr(sCLS)))
    sadd(sT0, sT0, C_PQ + L * 0x40000)
    sadd(sT1, sT0, 16384)
    for u in range(8):
        p("buffer_load_dwordx4 %s, %s, %s, %s offen offset:%d sc1" % (vr(OPQ + 4 * u, 4), vr(vL16), sr(sWS, 4), sr(sT0 if u < 4 else sT1), 1024 * (u & 3)))


def attn_out(L):
    T = OF + 12
    p("s_lshl_b32 %s, %s, 12" % (sr(sT2), sr(sWV)))
    p("s_add_u32 %s, %s, %s" % (sr(sT0), sr(sT2), sr(sCLS)))
    sadd(sT0, sT0, C_STATE + L * 0x8000)
    sadd(sT1, sT0, 16384)
    sadd(sT2, sT2, OB)
    p("v_add_u32 %s, %s, %s" % (vr(S0 + 122), sr(sT2), vr(vL16)))
    p("v_add_u32 %s, 0x%x, %s" % (vr(S0 + 123), OB, vr(vL16)))

    def issue():
        for u in range(8):
            p("buffer_load_dwordx4 %s, %s, %s, %s offen offset:%d sc1" % (vr(OST + 4 * u, 4), vr(vL16), sr(sWS, 4), sr(sT0 if u < 4 else sT1), 1024 * (u & 3)))

    poll(issue, lambda: check_sentinel([OST + 2 * n for n in range(16)], T), 8)
    stamp("stgot%d" % L)

    def mm(u):
        p("v_mfma_f32_32x32x16_bf16 %s, %s, %s, 0" % (vr(OD + 16 * (u & 1), 16), vr(OST + 4 * u, 4), vr(OPQ + 4 * u, 4)))

    def fin(u):
        d = OD + 16 * (u & 1)
        of = OF + 4 * (u & 1)
        p("v_add_f32 %s, %s, %s" % (vr(d + 8), sr(sEPS6), vr(d + 8)))
        p("v_rcp_f32 %s, %s" % (vr(d + 8), vr(d + 8)))
        for e in range(0, 8, 2):
            p("v_pk_mul_f32 %s, %s, %s op_sel_hi:[1,0]" % (vr(d + e, 2), vr(d + e, 2), vr(d + 8, 2)))
        for e in range(4):
            p("v_cvt_pk_bf16_f32 %s, %s, %s" % (vr(of + e), vr(d + 2 * e), vr(d + 2 * e + 1)))
        p("ds_write_b128 %s, %s offset:%d" % (vr(S0 + 122), vr(of, 4), head_off(u)))

    def wreg(h):
        return ar(aWOA + 4 * h, 4) if h < 16 else vr(vWOB + 4 * (h - 16), 4)

    def breg(h):
        return (OST + 4 * (h % 4)) if (h // 4) % 2 == 0 else (OPQ + 4 * (h % 4))

    def rdb(h):
        p("ds_read_b128 %s, %s offset:%d" % (vr(breg(h), 4), vr(S0 + 123), 1024 * h))

    def wm(h):
        p("v_mfma_f32_32x32x16_bf16 %s, %s, %s, %s" % (vr(vX, 16), wreg(h), vr(breg(h), 4), vr(vX, 16)))

    mm(0)
    for u in range(4):
        mm(u + 1)
        fin(u)
    barrier()
    for h in range(8):
        rdb(h)
    for u in range(4, 8):
        if u < 7:
            mm(u + 1)
        for h in range(4 * (u - 4), 4 * (u - 4) + 4):
            wm(h)
            if h + 8 < 16:
                rdb(h + 8)
        fin(u)
    barrier()
    for h in range(16, 24):
        rdb(h)
    for h in range(16, 32):
        wm(h)
        if h + 8 < 32:
            rdb(h + 8)
    stamp("wo%d" % L)


def stats_hop():
    stats_compute(S0 + 8, S0 + 10)
    sadd(sT0, sCLS, st_off(2))
    local_stores(["buffer_store_dword %s, %s, %s, %s offen" % (vr(S0 + 8), vr(vSTw), sr(sWS, 4), sr(sT0))])
    p("s_lshl_b32 %s, %s, 12" % (sr(sT1), sr(sG32L)))
    p("s_add_u32 %s, %s, %s" % (sr(sT1), sr(sT1), sr(sT0)))
    B = S0 + 12
    poll(lambda: stats_issue(B, sT1), lambda: check_sentinel(range(B, B + 16), S0 + 28), 9)
    stats_finish(B, S0 + 28, S0 + 30)
    normalise(S0 + 28, S0 + 30)
    stamp("stats2")


def main():
    prologue()
    p0_issue()
    clears()
    dmaw_address()
    stage_w(1, R1, "wk")
    addresses()
    lds_zero()
    ut_address()
    stamp("issued")
    p0_compute()
    sadd(sT0, sCLS, C_UTA)
    ut_store(sT0, "")
    stamp("p0")
    p("s_add_u32 %s, %s, 16" % (sr(sTAG), sr(sTAG)))
    p("s_addc_u32 %s, %s, 0" % (sr(sTAG + 1), sr(sTAG + 1)))
    p("v_mov_b32 %s, %s" % (vr(vTAG), sr(sTAG)))
    p("v_mov_b32 %s, %s" % (vr(vTAG + 1), sr(sTAG + 1)))
    h_copies()
    for e in range(8):
        unpack(vX + 2 * e, X0 + e)
    stats_compute(VF, KF)
    p.waitvm()
    barrier()
    skip = p.newlabel("fa")
    p("s_cmp_lg_u32 %s, 0" % sr(sWV))
    p("s_cbranch_scc1 %s" % skip)
    p("s_add_u32 %s, %s, %s" % (sr(sP), sr(sTAG), sr(sXCC)))
    p("s_addc_u32 %s, %s, 0" % (sr(sP + 1), sr(sTAG + 1)))
    p("v_mov_b32 %s, %s" % (vr(KF), sr(sP)))
    p("v_mov_b32 %s, %s" % (vr(KF + 1), sr(sP + 1)))
    p("s_lshl_b32 %s, %s, 3" % (sr(sT0), sr(sJ)))
    p("s_add_u32 %s, %s, %s" % (sr(sT0), sr(sT0), sr(sCLS)))
    sadd(sT0, sT0, C_FLAGA)
    p("s_mov_b64 exec, 1")
    p("buffer_store_dwordx2 %s, off, %s, %s" % (vr(KF, 2), sr(sWS, 4), sr(sT0)))
    p("s_mov_b64 exec, -1")
    p.label(skip)
    stamp("flagA")
    sadd(sT0, sCLS, st_off(0))
    p("buffer_store_dword %s, %s, %s, %s offen sc1" % (vr(VF), vr(vSTw), sr(sWS, 4), sr(sT0)))
    if SKEW:
        p("v_mov_b32 %s, s74" % vr(KF + 20))
        p("s_lshl_b32 %s, s2, 2" % sr(sT0))
        sadd(sT0, sT0, PROF)
        p("buffer_store_dword %s, off, %s, %s sc1" % (vr(KF + 20), sr(sWS, 4), sr(sT0)))
    afrag_preload()
    unstage_w(R1, aWK)
    handoff_ut()
    stamp("utflag")
    conv_addresses()
    p.waitvm()
    barrier()
    skip = p.newlabel("hello")
    p("s_cmp_lg_u32 %s, 1" % sr(sWV))
    p("s_cbranch_scc1 %s" % skip)
    p("s_lshl_b32 %s, s2, 3" % sr(sT0))
    sadd(sT0, sT0, HELLO)
    flag_store(sT0, local=False)
    p.label(skip)
    stamp("convstart")
    conv(lambda: stage_w(2, R2, "wv"))
    stamp("convdone")
    p.waitvm("wv")
    barrier()
    stage_w(0, R1, "wq")
    unstage_prep(R2, vTrW)
    unstage_w(R2, aWV)
    hello_check()
    stamp("hello")
    p("s_lshl_b32 %s, %s, 12" % (sr(sT1), sr(sG32L)))
    p("s_add_u32 %s, %s, %s" % (sr(sT1), sr(sT1), sr(sCLS)))
    sadd(sT1, sT1, st_off(0))
    stats_issue(S0 + 12, sT1)
    colsum(aWK, vCSK, False)
    colsum(aWV, vCSV, False)
    stats_finish(S0 + 12, S0 + 28, S0 + 30)
    normalise(S0 + 28, S0 + 30)
    YR = S0 + 8
    stamp("ypoll")

    def issue_y():
        p("s_mov_b32 %s, 0x%x" % (sr(sT0), YB))
        for u in range(8):
            p("buffer_load_dword %s, %s, %s, %s offen sc1" % (vr(YR + u), vr(vYa), sr(sWS, 4), sr(sT0)))
            if u < 7:
                sadd(sT0, sT0, 8192)

    poll(issue_y, lambda: check_sentinel(range(YR, YR + 8), S0 + 16), 2)
    stamp("ygot")
    for u in range(8):
        unpack(vY + 2 * u, YR + u)
    for L in range(2):
        gate_and_publish(L)
        stamp("xpub%d" % L)
        if L == 0:
            barrier()
            unstage_w(R1, aWQ)
            colsum(aWQ, vCSQ, True)
        else:
            barrier()
        gemm_kv(L)
        if L == 0:
            p.waitvm("wo")
            barrier()
            unstage_wo(R1, "a", aWOA)
            barrier()
            stage_wo(1, R1, "wo")
        gemm_q(L)
        if L == 0:
            p.waitvm("wo")
            barrier()
            unstage_wo(R1, "v", vWOB)
        stamp("qdone%d" % L)
        load_pq(L)
        reduce_state(L)
        stamp("stpub%d" % L)
        attn_out(L)
        if L == 0:
            stats_hop()
    XP = S0 + 8
    for e in range(8):
        p("v_cvt_pk_bf16_f32 %s, %s, %s" % (vr(XP + e), vr(vX + 2 * e), vr(vX + 2 * e + 1)))
    p("buffer_store_dwordx4 %s, %s, %s, 0 offen" % (vr(XP, 4), vr(vXrow), sr(sOUT, 4)))
    p("buffer_store_dwordx4 %s, %s, %s, 0 offen offset:16" % (vr(XP + 4, 4), vr(vXrow), sr(sOUT, 4)))
    skip = p.newlabel("epoch")
    p("s_or_b32 %s, s2, %s" % (sr(sT0), sr(sWV)))
    p("s_cmp_lg_u32 %s, 0" % sr(sT0))
    p("s_cbranch_scc1 %s" % skip)
    p("s_mov_b32 %s, %d" % (sr(sT0), EPOCH))
    flag_store(sT0, local=False)
    p.label(skip)
    if PROFILE:
        p.waitvm()
        stamp("end")
        p("v_writelane_b32 %s, %s, 63" % (vr(vPROF), sr(sERR)))
        p("v_writelane_b32 %s, %s, 62" % (vr(vPROF), sr(sMODE)))
        p("v_writelane_b32 %s, %s, 61" % (vr(vPROF), sr(sXCC)))
        p("s_lshl_b32 %s, s2, 10" % sr(sT0))
        sadd(sT0, sT0, PROF)
        p("v_lshlrev_b32 %s, 2, v0" % vr(S0))
        p("buffer_store_dword %s, %s, %s, %s offen" % (vr(vPROF), vr(S0), sr(sWS, 4), sr(sT0)))
    if SPIN:
        if SPIN == "end":
            p.waitvm()
            stamp("end")
        if SPINWG:
            p("s_cmp_lg_u32 s2, %d" % SPINWG[0])
            p("s_cbranch_scc1 L_exit")
        if SKEW:
            p("s_mov_b32 %s, 0x%x" % (sr(sT0), PROF + 4 * SKEW[0]))
            p("buffer_load_dword %s, off, %s, %s sc1" % (vr(S0), sr(sWS, 4), sr(sT0)))
            p("v_readfirstlane_b32 s74, %s" % vr(S0))
        p.label("L_spin")
        p("s_memrealtime s[76:77]")
        p("s_waitcnt lgkmcnt(0)")
        p("s_sub_u32 s76, s76, s74")
        p("s_cmp_lt_u32 s76, 8000")
        p("s_cbranch_scc1 L_spin")
    p("s_endpgm")
    i = 0
    while i < len(tail):
        tail[i]()
        i += 1
    p.label("L_exit")
    p("s_endpgm")


main()

HEAD = open("cdna_kernels/%s.s.ref" % NAME).read().split("; Override launch geometry")[0]
body = p.text()
src = (
    HEAD
    + "; One persistent launch, one workgroup per CU; generated by a script (phases hand data over through d_ws).\n"
    + "; @launch grid=(256,1,1) block=(256,1,1) lds=%d\n" % LDS_BYTES
    + """.amdgcn_target "amdgcn-amd-amdhsa--gfx950"
.text
.globl {n}_kernel
.p2align 8
.type {n}_kernel,@function
{n}_kernel:
""".format(n=NAME)
    + body
    + """.section .rodata,"a"
.p2align 6
.amdhsa_kernel {n}_kernel
  .amdhsa_next_free_vgpr 512
  .amdhsa_next_free_sgpr 102
  .amdhsa_accum_offset 256
  .amdhsa_group_segment_fixed_size 0
  .amdhsa_kernarg_size 96
  .amdhsa_user_sgpr_count 2
  .amdhsa_user_sgpr_kernarg_segment_ptr 1
  .amdhsa_system_sgpr_workgroup_id_x 1
  .amdhsa_float_denorm_mode_32 3
.end_amdhsa_kernel
""".format(n=NAME)
)
open(OUT, "w").write(src)
if PROFILE:
    open(OUT + ".stamps", "w").write("\n".join(stamps))
print("wrote", OUT, "instructions:", sum(1 for l in body.split("\n") if l.startswith("    ") and not l.strip().startswith(";")))
```

```python
import sys
from asmlib import Prog, vr, ar, sr

NAME = "interleave_layers__ssm_conv_h3__linear_attn_block__prompt"
PROFILE = "--prof" in sys.argv
FORCE_SLOW = "--slow" in sys.argv
SPIN = [a.split("=")[1] for a in sys.argv if a.startswith("--spin=")]
SPIN = SPIN[0] if SPIN else None
SKEW = [int(a.split("=")[1]) for a in sys.argv if a.startswith("--skew=")]
SPINWG = [int(a.split("=")[1]) for a in sys.argv if a.startswith("--spinwg=")]
OUT = [a for a in sys.argv[1:] if not a.startswith("--")]
OUT = OUT[0] if OUT else "cdna_kernels/%s.s" % NAME

EPOCH = 0
HELLO = 0x1000
FLAGB = 0x2000
KVP = 0x80000
ZP = 0x180000
YB = 0x200000
UTB = 0x400000
CLS = 0x600000
C_UTA = 0
C_X = 0x40000
C_PQ = 0xC0000
C_STATE = 0x140000
C_ST = 0x150000
C_FLAGA = 0x170000
C_FLAGX = 0x171000
C_FLAGPQ = 0x172000
PROF = 0x1800000
WS_BYTES = 0x2000000


def st_off(n):
    return C_ST + ((n + 3) % 4) * 0x8000


R1, R2, R3 = 0, 65536, 131072
HB = R2
HCOPY, HCH = 4160, 16640
UB = R3
UCH = 4608
TB = R3 + 9216
RS = R3 + 9728
EX = R1
AB = R2
OB = R2
LDS_BYTES = 163840

sQ, sK, sV, sH, sW, sWO, sWS, sOUT, sSH = 4, 8, 12, 16, 20, 24, 28, 32, 36
sD = 40
sTAG = 42
sX, sJ, sWV, sXCC, sMODE, sLIM, sCNT = 44, 45, 46, 47, 48, 49, 50
sCLS = 51
sT0, sT1, sT2, sT3 = 52, 53, 54, 55
sP = 56
sC4096, sMASK = 58, 59
sDV = 60
sG32L, sKS, sRG, sM = 61, 62, 63, 64
sEPS6, sLOG2E, sEPS5, sINV512 = 65, 66, 67, 68
sTS = 70
sERR = 72
sUSRC = 73

vL16, vL8, vXrow, vYa, vSTw, vSTr, vXw, vPQw, vSTATEw = 1, 2, 3, 4, 5, 6, 7, 8, 9
vTrW, vTrO, vDmaW, vDmaO, vTB1, vTB2, vZr, vTBw = 10, 11, 12, 13, 14, 15, 16, 17
vTAG = 18
vSEL, vONE = 20, 24
vCSK, vCSV, vCSQ = 28, 29, 30
vX, vY = 34, 50
vPROF = 66
S0 = 68
vWOB = 192
aWK, aWV, aWQ, aWOA = 0, 64, 128, 192
aH = 128

p = Prog()
tail = []
stamps = []


def stamp(name):
    if SPIN == name:
        p("s_memrealtime s[74:75]")
        p("s_waitcnt lgkmcnt(0)")
    if not PROFILE:
        return
    n = len(stamps)
    stamps.append(name)
    p("s_memrealtime %s" % sr(sTS, 2))
    p("s_waitcnt lgkmcnt(0)")
    p("v_writelane_b32 %s, %s, %d" % (vr(vPROF), sr(sTS), n))


def srd(base, nbytes):
    p("s_mov_b32 %s, %d" % (sr(base + 2), nbytes))
    p("s_mov_b32 %s, 0x20000" % sr(base + 3))


def sadd(dst, src, imm):
    p("s_add_u32 %s, %s, 0x%x" % (sr(dst), sr(src), imm))


def local_stores(lines, tag=None):
    slow, join = p.newlabel("slowst"), p.newlabel("joinst")
    p("s_cmp_eq_u32 %s, 0" % sr(sMODE))
    p("s_cbranch_scc1 %s" % slow)
    for l in lines:
        p(l, tag)
    p.label(join)

    def blk():
        p.label(slow)
        for l in lines:
            p(l + " sc1", tag)
        p("s_branch %s" % join)

    tail.append(blk)


def poll(issue, check, code):
    top, done = p.newlabel("poll"), p.newlabel("polldone")
    p("s_mov_b32 %s, %s" % (sr(sCNT), sr(sLIM)))
    p.label(top)
    issue()
    check()
    p("s_cbranch_vccz %s" % done)
    p("s_sub_u32 %s, %s, 1" % (sr(sCNT), sr(sCNT)))
    p("s_cbranch_scc0 %s" % top)
    p("s_mov_b32 %s, 0" % sr(sLIM))
    p("s_or_b32 %s, %s, %d" % (sr(sERR), sr(sERR), 1 << code))
    p.label(done)


def check_sentinel(regs, tmp):
    regs = list(regs)
    if len(regs) == 1:
        p("v_cmp_eq_u32 vcc, -1, %s" % vr(regs[0]))
        return
    first = True
    i = 0
    while i < len(regs):
        if first:
            if len(regs) >= 3:
                p("v_max3_u32 %s, %s, %s, %s" % (vr(tmp), vr(regs[0]), vr(regs[1]), vr(regs[2])))
                i = 3
            else:
                p("v_max_u32 %s, %s, %s" % (vr(tmp), vr(regs[0]), vr(regs[1])))
                i = 2
            first = False
        elif i + 1 < len(regs):
            p("v_max3_u32 %s, %s, %s, %s" % (vr(tmp), vr(tmp), vr(regs[i]), vr(regs[i + 1])))
            i += 2
        else:
            p("v_max_u32 %s, %s, %s" % (vr(tmp), vr(tmp), vr(regs[i])))
            i += 1
    p("v_cmp_eq_u32 vcc, -1, %s" % vr(tmp))


def unpack(dst, src):
    p("v_lshlrev_b32 %s, 16, %s" % (vr(dst), vr(src)))
    p("v_and_b32 %s, %s, %s" % (vr(dst + 1), sr(sMASK), vr(src)))


def flag_store(soff_sgpr, local=True, tagreg=vTAG):
    p("s_mov_b64 exec, 1")
    line = "buffer_store_dwordx2 %s, off, %s, %s" % (vr(tagreg, 2), sr(sWS, 4), sr(soff_sgpr))
    if local:
        local_stores([line])
    else:
        p(line + " sc1")
    p("s_mov_b64 exec, -1")


def barrier():
    p.waitlg()
    p("s_barrier")


def stage_w(part, region, tag):
    p("s_lshl_b32 %s, %s, 14" % (sr(sT0), sr(sWV)))
    p("s_add_u32 m0, %s, %d" % (sr(sT0), region))
    p("s_mul_i32 %s, %s, %d" % (sr(sT1), sr(sWV), 128 * 3072))
    p("s_lshl_b32 %s, %s, 7" % (sr(sT2), sr(sM)))
    p("s_add_u32 %s, %s, %s" % (sr(sT1), sr(sT1), sr(sT2)))
    sadd(sT1, sT1, part * 1024)
    for n in range(16):
        va = vDmaW if n % 2 == 0 else S0 + 122
        if n == 0:
            p("v_xor_b32 %s, 64, %s" % (vr(S0 + 122), vr(vDmaW)))
        p("buffer_load_dwordx4 %s, %s, %s offen lds" % (vr(va), sr(sW, 4), sr(sT1)), tag)
        if n < 15:
            p("s_add_u32 m0, m0, 1024")
            sadd(sT1, sT1, 8 * 3072)


def unstage_w(region, a0):
    for ks in range(16):
        for h in range(2):
            off = region + ks * 4096 + h * 512
            p("ds_read_b64_tr_b16 %s, %s offset:%d" % (ar(a0 + 4 * ks + 2 * h, 2), vr(vTrW if off < 65536 else S0 + 123), off & 0xFFFF))


def unstage_prep(region, reg):
    if region >= 65536:
        p("v_add_u32 %s, 0x10000, %s" % (vr(S0 + 123), vr(reg)))


def stage_wo(half, region, tag):
    p("s_lshl_b32 %s, %s, 14" % (sr(sT0), sr(sWV)))
    p("s_add_u32 m0, %s, %d" % (sr(sT0), region))
    p("s_lshl_b32 %s, %s, 16" % (sr(sT1), sr(sWV)))
    p("s_and_b32 %s, %s, 3" % (sr(sT2), sr(sJ)))
    p("s_lshl_b32 %s, %s, 8" % (sr(sT2), sr(sT2)))
    p("s_add_u32 %s, %s, %s" % (sr(sT1), sr(sT1), sr(sT2)))
    sadd(sT1, sT1, half * 256 * 1024)
    for n in range(16):
        p("buffer_load_dwordx4 %s, %s, %s offen lds" % (vr(vDmaO), sr(sWO, 4), sr(sT1)), tag)
        if n < 15:
            p("s_add_u32 m0, m0, 1024")
            sadd(sT1, sT1, 4096)


def unstage_wo(region, f, r0):
    assert region == 0
    for hd in range(16):
        for g in range(2):
            off = region + hd * 4096 + g * 2048
            p("ds_read_b64_tr_b16 %s, %s offset:%d" % (vr(r0 + 4 * hd + 2 * g, 2, f), vr(vTrO), off))


def stats_compute(a, b):
    t = b
    p("v_pk_mul_f32 %s, %s, %s" % (vr(t + 2, 2), vr(vX, 2), vr(vX, 2)))
    p("v_pk_add_f32 %s, %s, %s" % (vr(t, 2), vr(vX, 2), vr(vX + 2, 2)))
    for e in range(2, 16, 2):
        p("v_pk_fma_f32 %s, %s, %s, %s" % (vr(t + 2, 2), vr(vX + e, 2), vr(vX + e, 2), vr(t + 2, 2)))
        if e >= 4:
            p("v_pk_add_f32 %s, %s, %s" % (vr(t, 2), vr(t, 2), vr(vX + e, 2)))
    p("v_add_f32 %s, %s, %s" % (vr(t), vr(t), vr(t + 1)))
    p("v_add_f32 %s, %s, %s" % (vr(t + 2), vr(t + 2), vr(t + 3)))
    p("v_permlane32_swap_b32 %s, %s" % (vr(t), vr(t + 2)))
    p("v_add_f32 %s, %s, %s" % (vr(a), vr(t), vr(t + 2)))
    p("v_min_u32 %s, -2, %s" % (vr(a), vr(a)))


def stats_issue(buf, soff):
    for u in range(4):
        p("buffer_load_dwordx4 %s, %s, %s, %s offen offset:%d sc1" % (vr(buf + 4 * u, 4), vr(vSTr), sr(sWS, 4), sr(soff), 512 * u))


def stats_finish(buf, vR, vNM):
    for u in (0, 8):
        p("v_pk_add_f32 %s, %s, %s" % (vr(buf + u, 2), vr(buf + u, 2), vr(buf + u + 2, 2)))
        p("v_pk_add_f32 %s, %s, %s" % (vr(buf + u + 4, 2), vr(buf + u + 4, 2), vr(buf + u + 6, 2)))
    p("v_pk_add_f32 %s, %s, %s" % (vr(buf, 2), vr(buf, 2), vr(buf + 4, 2)))
    p("v_pk_add_f32 %s, %s, %s" % (vr(buf + 8, 2), vr(buf + 8, 2), vr(buf + 12, 2)))
    p("v_pk_add_f32 %s, %s, %s" % (vr(buf, 2), vr(buf, 2), vr(buf + 8, 2)))
    p("v_permlane32_swap_b32 %s, %s" % (vr(buf), vr(buf + 1)))
    p("v_add_f32 %s, %s, %s" % (vr(buf), vr(buf), vr(buf + 1)))
    p("v_mul_f32 %s, %s, %s" % (vr(buf), sr(sINV512), vr(buf)))
    p("v_mov_b32 %s, %s" % (vr(buf + 1), vr(buf)))
    p("v_permlane32_swap_b32 %s, %s" % (vr(buf), vr(buf + 1)))
    p("v_fma_f32 %s, -%s, %s, %s" % (vr(buf + 1), vr(buf), vr(buf), vr(buf + 1)))
    p("v_max_f32 %s, 0, %s" % (vr(buf + 1), vr(buf + 1)))
    p("v_add_f32 %s, %s, %s" % (vr(buf + 1), sr(sEPS5), vr(buf + 1)))
    p("v_rsq_f32 %s, %s" % (vr(vR), vr(buf + 1)))
    p("v_mul_f32 %s, -%s, %s" % (vr(vNM), vr(buf), vr(vR)))


def prologue():
    p("s_cmp_ge_u32 s2, 256")
    p("s_cbranch_scc1 L_exit")
    kern = NAME + "_kernel"
    if SPIN == "entry":
        p("s_memrealtime s[74:75]")
    for base, off in ((sK, 8), (sV, 16), (sWS, 88), (sSH, 24), (sH, 32), (sQ, 0), (sD, 40), (sW, 56), (sWO, 64), (sOUT, 72)):
        p("s_load_dwordx2 %s, s[0:1], %d" % (sr(base, 2), off))
    p("s_getpc_b64 %s" % sr(sP, 2))
    p("s_and_b32 %s, %s, 0xffffff00" % (sr(sP), sr(sP)))
    p("v_lshlrev_b32 %s, 7, v0" % vr(S0))
    p("v_min_u32 %s, L_exit-%s, %s" % (vr(S0), kern, vr(S0)))
    p("global_load_dword %s, %s, %s" % (vr(S0 + 1), vr(S0), sr(sP, 2)))
    if PROFILE:
        p("v_mov_b32 %s, 0" % vr(vPROF))
    p("s_and_b32 %s, s2, 7" % sr(sX))
    p("s_lshr_b32 %s, s2, 3" % sr(sJ))
    p("v_lshrrev_b32 %s, 6, v0" % vr(S0 + 2))
    p("v_and_b32 %s, 63, v0" % vr(S0 + 3))
    p("v_readfirstlane_b32 %s, %s" % (sr(sWV), vr(S0 + 2)))
    srd(sK, 2097152)
    srd(sV, 2097152)
    srd(sWS, WS_BYTES)
    srd(sSH, 4096)
    srd(sH, 2097152)
    srd(sQ, 2097152)
    srd(sW, 1572864)
    srd(sWO, 524288)
    srd(sOUT, 2097152)
    p("s_mov_b32 %s, 4096" % sr(sC4096))
    p("s_mov_b32 %s, 0xffff0000" % sr(sMASK))
    p("s_getreg_b32 %s, hwreg(HW_REG_XCC_ID, 0, 4)" % sr(sXCC))
    p("s_lshl_b32 %s, %s, 21" % (sr(sCLS), sr(sX)))
    sadd(sCLS, sCLS, CLS)
    p("s_mov_b32 %s, 200000" % sr(sLIM))
    p("s_mov_b32 %s, 0" % sr(sERR))
    p("s_mov_b32 %s, 0x358637bd" % sr(sEPS6))
    p("s_mov_b32 %s, 0x3fb8aa3b" % sr(sLOG2E))
    p("s_mov_b32 %s, 0x3727c5ac" % sr(sEPS5))
    p("s_mov_b32 %s, 0x3b000000" % sr(sINV512))
    p("s_lshr_b32 %s, %s, 2" % (sr(sG32L), sr(sJ)))
    p("s_and_b32 %s, %s, 3" % (sr(sKS), sr(sJ)))
    p("s_lshl_b32 %s, %s, 2" % (sr(sKS), sr(sKS)))
    p("s_add_u32 %s, %s, %s" % (sr(sKS), sr(sKS), sr(sWV)))
    p("s_lshr_b32 %s, %s, 3" % (sr(sRG), sr(sJ)))
    p("s_and_b32 %s, %s, 7" % (sr(sM), sr(sJ)))


vLANE = S0 + 3
vKA, vKB, vUT, vT = S0 + 4, S0 + 5, S0 + 6, S0 + 7
KK = S0 + 8
VV = S0 + 20
SH = S0 + 28
HE = S0 + 32
X0 = S0 + 44
KF = S0 + 52
WF = S0 + 74
UF = S0 + 82
UP = S0 + 98
VF = S0 + 106
FF = S0 + 112
vHA, vHB, vCL = S0 + 116, S0 + 117, S0 + 118


def p0_issue():
    l = vr(vLANE)
    t = vr(vT)
    p("s_lshl_b32 %s, %s, 7" % (sr(sT0), sr(sX)))
    p("s_lshl_b32 %s, %s, 5" % (sr(sT1), sr(sWV)))
    p("s_add_u32 %s, %s, %s" % (sr(sT0), sr(sT0), sr(sT1)))
    p("s_lshl_b32 %s, %s, 16" % (sr(sT1), sr(sJ)))
    p("s_add_u32 %s, %s, %s" % (sr(sT1), sr(sT1), sr(sT0)))
    p("v_and_b32 %s, 7, %s" % (t, l))
    p("v_lshrrev_b32 %s, 3, %s" % (vr(vKA), l))
    p("v_lshlrev_b32 %s, 13, %s" % (vr(vKA), vr(vKA)))
    p("v_lshl_add_u32 %s, %s, 2, %s" % (vr(vKB), t, vr(vKA)))
    p("v_add_u32 %s, %s, %s" % (vr(vKB), sr(sT1), vr(vKB)))
    p("v_add_u32 %s, 0xfffff400, %s" % (vr(vKA), vr(vKB)))
    p("v_lshlrev_b32 %s, 4, %s" % (vr(vUT), t))
    p("s_lshl_b32 %s, %s, 2" % (sr(sT2), sr(sT0)))
    p.waitlg()
    stamp("kernarg")
    p("s_load_dwordx2 %s, %s, %d" % (sr(sTAG, 2), sr(sWS, 2), EPOCH))
    for r in range(3):
        p("buffer_load_dword %s, %s, %s, 0 offen offset:%d" % (vr(KK + r), vr(vKA), sr(sK, 4), 1024 * r))
    for r in range(8):
        so = "0" if r < 4 else sr(sC4096)
        p("buffer_load_dword %s, %s, %s, %s offen offset:%d" % (vr(KK + 3 + r), vr(vKB), sr(sK, 4), so, 1024 * (r % 4)))
    p("buffer_load_dwordx4 %s, %s, %s, %s offen" % (vr(SH, 4), vr(vUT), sr(sSH, 4), sr(sT2)))
    for r in range(8):
        so = "0" if r < 4 else sr(sC4096)
        p("buffer_load_dword %s, %s, %s, %s offen offset:%d" % (vr(VV + r), vr(vKB), sr(sV, 4), so, 1024 * (r % 4)))
    p("s_lshl_b32 %s, %s, 5" % (sr(sT0), sr(sX)))
    p("s_add_u32 %s, %s, %s" % (sr(sT0), sr(sT0), sr(sJ)))
    p("s_lshl_b32 %s, %s, 2" % (sr(sT1), sr(sT0)))
    p("s_add_u32 %s, %s, %s" % (sr(sD), sr(sD), sr(sT1)))
    p("s_addc_u32 %s, %s, 0" % (sr(sD + 1), sr(sD + 1)))
    p("s_load_dword %s, %s, 0" % (sr(sDV), sr(sD, 2)))
    p("s_lshl_b32 %s, %s, 13" % (sr(sT0), sr(sT0)))
    p("v_lshlrev_b32 %s, 5, v0" % vr(vHA))
    p("v_add_u32 %s, %s, %s" % (vr(vHA), sr(sT0), vr(vHA)))
    p("v_add_u32 %s, -8, %s" % (vr(vHB), vr(vHA)))
    p("buffer_load_dwordx2 %s, %s, %s, 0 offen" % (vr(HE, 2), vr(vHB), sr(sH, 4)))
    p("buffer_load_dwordx4 %s, %s, %s, 0 offen" % (vr(HE + 2, 4), vr(vHA), sr(sH, 4)))
    p("buffer_load_dwordx4 %s, %s, %s, 0 offen offset:16" % (vr(HE + 6, 4), vr(vHA), sr(sH, 4)))
    p("s_lshl_b32 %s, %s, 18" % (sr(sT0), sr(sX)))
    p("s_lshl_b32 %s, %s, 15" % (sr(sT1), sr(sG32L)))
    p("s_add_u32 %s, %s, %s" % (sr(sT0), sr(sT0), sr(sT1)))
    p("s_lshl_b32 %s, %s, 6" % (sr(sT1), sr(sKS)))
    p("s_add_u32 %s, %s, %s" % (sr(sT0), sr(sT0), sr(sT1)))
    p("v_and_b32 %s, 31, %s" % (t, l))
    p("v_lshlrev_b32 %s, 10, %s" % (vr(vXrow), t))
    p("v_and_b32 %s, 32, %s" % (t, l))
    p("v_add3_u32 %s, %s, %s, %s" % (vr(vXrow), vr(vXrow), t, sr(sT0)))
    p("buffer_load_dwordx4 %s, %s, %s, 0 offen" % (vr(X0, 4), vr(vXrow), sr(sQ, 4)))
    p("buffer_load_dwordx4 %s, %s, %s, 0 offen offset:16" % (vr(X0 + 4, 4), vr(vXrow), sr(sQ, 4)))


def clears():
    for r in range(4):
        p("v_mov_b32 %s, -1" % vr(FF + r))
    p("v_lshlrev_b32 %s, 4, v0" % vr(vCL))
    st = "buffer_store_dwordx4 %s, %s, %s, %%s offen sc1" % (vr(FF, 4), vr(vCL), sr(sWS, 4))
    p("s_lshl_b32 %s, %s, 5" % (sr(sT0), sr(sX)))
    p("s_add_u32 %s, %s, %s" % (sr(sT0), sr(sT0), sr(sJ)))
    p("s_lshl_b32 %s, %s, 13" % (sr(sT0), sr(sT0)))
    sadd(sT0, sT0, YB)
    p(st % sr(sT0))
    sadd(sT0, sT0, 4096)
    p(st % sr(sT0))
    p("s_mul_i32 %s, s2, 4608" % sr(sT0))
    sadd(sT0, sT0, KVP)
    p(st % sr(sT0))
    p("s_mul_i32 %s, %s, 5120" % (sr(sT1), sr(sJ)))
    p("s_add_u32 %s, %s, %s" % (sr(sT1), sr(sT1), sr(sCLS)))
    sadd(sT1, sT1, C_STATE)
    p(st % sr(sT1))
    skip = p.newlabel("clr")
    p("s_cmp_lg_u32 %s, 0" % sr(sWV))
    p("s_cbranch_scc1 %s" % skip)
    sadd(sT1, sT1, 4096)
    p(st % sr(sT1))
    sadd(sT0, sT0, 4096)
    p("s_mov_b32 exec_hi, 0")
    p(st % sr(sT0))
    p("s_mov_b64 exec, -1")
    p.label(skip)


def addresses():
    l = vr(vLANE)
    t, t2, t3 = vr(vT), vr(VF), vr(VF + 1)
    p("v_lshlrev_b32 %s, 4, %s" % (vr(vL16), l))
    p("v_lshlrev_b32 %s, 3, %s" % (vr(vL8), l))
    p("s_lshl_b32 %s, %s, 17" % (sr(sT0), sr(sKS)))
    p("s_lshl_b32 %s, %s, 10" % (sr(sT1), sr(sX)))
    p("s_add_u32 %s, %s, %s" % (sr(sT0), sr(sT0), sr(sT1)))
    p("s_lshl_b32 %s, %s, 7" % (sr(sT1), sr(sG32L)))
    p("s_add_u32 %s, %s, %s" % (sr(sT0), sr(sT0), sr(sT1)))
    p("v_and_b32 %s, 31, %s" % (t, l))
    p("v_lshrrev_b32 %s, 5, %s" % (t2, l))
    p("v_lshlrev_b32 %s, 16, %s" % (t3, t2))
    p("v_lshl_add_u32 %s, %s, 2, %s" % (vr(vYa), t, t3))
    p("v_add_u32 %s, %s, %s" % (vr(vYa), sr(sT0), vr(vYa)))
    p("s_lshl_b32 %s, %s, 12" % (sr(sT0), sr(sG32L)))
    p("s_lshr_b32 %s, %s, 1" % (sr(sT1), sr(sKS)))
    p("s_lshl_b32 %s, %s, 9" % (sr(sT1), sr(sT1)))
    p("s_add_u32 %s, %s, %s" % (sr(sT0), sr(sT0), sr(sT1)))
    p("s_and_b32 %s, %s, 1" % (sr(sT1), sr(sKS)))
    p("s_lshl_b32 %s, %s, 3" % (sr(sT1), sr(sT1)))
    p("s_add_u32 %s, %s, %s" % (sr(sT0), sr(sT0), sr(sT1)))
    p("v_lshlrev_b32 %s, 2, %s" % (t3, t2))
    p("v_lshl_add_u32 %s, %s, 4, %s" % (vr(vSTw), t, t3))
    p("v_add_u32 %s, %s, %s" % (vr(vSTw), sr(sT0), vr(vSTw)))
    p("v_lshlrev_b32 %s, 11, %s" % (t3, t2))
    p("v_lshl_add_u32 %s, %s, 4, %s" % (vr(vSTr), t, t3))
    p("s_and_b32 %s, %s, 1" % (sr(sT0), sr(sWV)))
    p("s_lshl_b32 %s, %s, 7" % (sr(sT0), sr(sT0)))
    sadd(sT0, sT0, TB)
    p("v_lshlrev_b32 %s, 8, %s" % (t3, t2))
    p("v_lshl_add_u32 %s, %s, 2, %s" % (vr(vTBw), t, t3))
    p("v_add_u32 %s, %s, %s" % (vr(vTBw), sr(sT0), vr(vTBw)))
    p("s_lshl_b32 %s, %s, 15" % (sr(sT0), sr(sG32L)))
    p("s_lshl_b32 %s, %s, 10" % (sr(sT1), sr(sKS)))
    p("s_add_u32 %s, %s, %s" % (sr(sT0), sr(sT0), sr(sT1)))
    p("v_lshrrev_b32 %s, 4, %s" % (t3, t))
    p("v_lshlrev_b32 %s, 14, %s" % (vr(vXw), t3))
    p("v_lshl_add_u32 %s, %s, 9, %s" % (vr(vXw), t2, vr(vXw)))
    p("v_and_b32 %s, 15, %s" % (t, l))
    p("v_lshl_add_u32 %s, %s, 4, %s" % (vr(vXw), t, vr(vXw)))
    p("v_add_u32 %s, %s, %s" % (vr(vXw), sr(sT0), vr(vXw)))
    p("v_lshrrev_b32 %s, 4, %s" % (t2, l))
    p("v_lshrrev_b32 %s, 1, %s" % (t3, t2))
    p("v_lshlrev_b32 %s, 9, %s" % (vr(vSTATEw), t3))
    p("v_lshl_add_u32 %s, %s, 4, %s" % (vr(vSTATEw), t, vr(vSTATEw)))
    p("v_and_b32 %s, 1, %s" % (t3, t2))
    p("v_lshl_add_u32 %s, %s, 3, %s" % (vr(vSTATEw), t3, vr(vSTATEw)))
    p("s_lshl_b32 %s, %s, 16" % (sr(sT0), sr(sRG)))
    p("s_lshl_b32 %s, %s, 2" % (sr(sT1), sr(sM)))
    p("s_add_u32 %s, %s, %s" % (sr(sT1), sr(sT1), sr(sWV)))
    p("s_lshl_b32 %s, %s, 10" % (sr(sT1), sr(sT1)))
    p("s_add_u32 %s, %s, %s" % (sr(sT0), sr(sT0), sr(sT1)))
    p("v_add_u32 %s, %s, %s" % (vr(vPQw), sr(sT0), vr(vSTATEw)))
    p("v_lshlrev_b32 %s, 4, %s" % (vr(vTB1), t2))
    p("v_add_u32 %s, 0x%x, %s" % (vr(vTB1), TB, vr(vTB1)))
    p("v_lshlrev_b32 %s, 2, %s" % (vr(vTB2), t))
    p("v_add_u32 %s, 0x%x, %s" % (vr(vTB2), TB, vr(vTB2)))
    p("v_lshlrev_b32 %s, 4, %s" % (t3, t2))
    p("v_lshl_add_u32 %s, %s, 6, %s" % (vr(vZr), t, t3))
    a, b = vr(VF + 2), vr(VF + 3)
    p("v_and_b32 %s, 1, %s" % (a, t))
    p("v_lshlrev_b32 %s, 4, %s" % (a, a))
    p("v_mov_b32 %s, 0x3f80" % b)
    p("v_lshlrev_b32 %s, %s, %s" % (a, a, b))
    p("v_lshrrev_b32 %s, 1, %s" % (b, t))
    p("v_lshlrev_b32 %s, 1, %s" % (t3, t2))
    p("v_cmp_eq_u32 vcc, %s, %s" % (b, t3))
    p("v_cndmask_b32 %s, 0, %s, vcc" % (vr(vSEL), a))
    p("v_add_u32 %s, 1, %s" % (t3, t3))
    p("v_cmp_eq_u32 vcc, %s, %s" % (b, t3))
    p("v_cndmask_b32 %s, 0, %s, vcc" % (vr(vSEL + 1), a))
    p("v_mov_b32 %s, %s" % (vr(vSEL + 2), vr(vSEL)))
    p("v_mov_b32 %s, %s" % (vr(vSEL + 3), vr(vSEL + 1)))
    for r in range(4):
        p("v_mov_b32 %s, 0x3f803f80" % vr(vONE + r))
    p("v_lshrrev_b32 %s, 2, %s" % (a, t))
    p("v_lshl_add_u32 %s, %s, 3, %s" % (a, t2, a))
    p("v_bfe_u32 %s, %s, 1, 1" % (b, a))
    p("v_and_b32 %s, 1, %s" % (t3, t2))
    p("v_lshl_add_u32 %s, %s, 1, %s" % (b, t3, b))
    p("v_xor_b32 %s, %s, %s" % (b, sr(sWV), b))
    p("v_lshlrev_b32 %s, 7, %s" % (a, a))
    p("v_lshl_add_u32 %s, %s, 5, %s" % (a, b, a))
    p("v_and_b32 %s, 3, %s" % (b, t))
    p("v_lshl_add_u32 %s, %s, 3, %s" % (vr(vTrW), b, a))
    p("v_lshrrev_b32 %s, 2, %s" % (a, t))
    p("v_xor_b32 %s, %s, %s" % (b, sr(sWV), a))
    p("v_lshlrev_b32 %s, 6, %s" % (b, b))
    p("v_lshl_add_u32 %s, %s, 8, %s" % (b, a, b))
    p("v_lshrrev_b32 %s, 1, %s" % (a, t2))
    p("v_lshl_add_u32 %s, %s, 10, %s" % (b, a, b))
    p("v_and_b32 %s, 1, %s" % (a, t2))
    p("v_lshl_add_u32 %s, %s, 4, %s" % (b, a, b))
    p("v_and_b32 %s, 1, %s" % (a, t))
    p("v_lshl_add_u32 %s, %s, 5, %s" % (b, a, b))
    p("v_bfe_u32 %s, %s, 1, 1" % (a, t))
    p("v_lshl_add_u32 %s, %s, 3, %s" % (vr(vTrO), a, b))
    p("v_lshlrev_b32 %s, 2, %s" % (a, t2))
    p("v_xor_b32 %s, %s, %s" % (a, t, a))
    p("v_lshlrev_b32 %s, 4, %s" % (a, a))
    p("v_lshl_add_u32 %s, %s, 10, %s" % (vr(vDmaO), t2, a))


def dmaw_address():
    l = vr(vLANE)
    a, b = vr(VF), vr(VF + 1)
    p("v_lshrrev_b32 %s, 3, %s" % (a, l))
    p("v_and_b32 %s, 2, %s" % (b, a))
    p("v_mul_u32_u24 %s, 0xc00, %s" % (a, a))
    p("v_xor_b32 %s, %s, %s" % (b, l, b))
    p("v_and_b32 %s, 7, %s" % (b, b))
    p("v_lshl_add_u32 %s, %s, 4, %s" % (vr(vDmaW), b, a))


def p0_compute():
    for d in range(4):
        src0 = SH + (d >> 1)
        src1 = SH + 2 + (d >> 1)
        if d & 1:
            p("v_and_b32 %s, %s, %s" % (vr(WF + 2 * d), sr(sMASK), vr(src0)))
            p("v_and_b32 %s, %s, %s" % (vr(WF + 2 * d + 1), sr(sMASK), vr(src1)))
        else:
            p("v_lshlrev_b32 %s, 16, %s" % (vr(WF + 2 * d), vr(src0)))
            p("v_lshlrev_b32 %s, 16, %s" % (vr(WF + 2 * d + 1), vr(src1)))
    for r in range(11):
        unpack(KF + 2 * r, KK + r)
    for t in range(8):
        p("v_pk_mul_f32 %s, %s, %s" % (vr(UF + 2 * t, 2), vr(KF + 2 * t, 2), vr(WF + 6, 2)))
    for d in (2, 1, 0):
        for t in range(8):
            p("v_pk_fma_f32 %s, %s, %s, %s" % (vr(UF + 2 * t, 2), vr(KF + 2 * (t + 3 - d), 2), vr(WF + 2 * d, 2), vr(UF + 2 * t, 2)))
    for t in range(8):
        unpack(KF + 2 * t, VV + t)
    for t in range(8):
        p("v_pk_mul_f32 %s, %s, %s" % (vr(UF + 2 * t, 2), vr(UF + 2 * t, 2), vr(KF + 2 * t, 2)))
    for c in range(2):
        for n in range(4):
            p("v_cvt_pk_bf16_f32 %s, %s, %s" % (vr(UP + 4 * c + n), vr(UF + 2 * (7 - 2 * n) + c), vr(UF + 2 * (6 - 2 * n) + c)))


def ut_address():
    l = vr(vLANE)
    t = vr(vT)
    p("s_lshl_b32 %s, %s, 16" % (sr(sT0), sr(sWV)))
    p("s_lshl_b32 %s, %s, 7" % (sr(sT1), sr(sJ)))
    p("s_sub_u32 %s, %s, %s" % (sr(sT0), sr(sT0), sr(sT1)))
    sadd(sT0, sT0, 4080)
    p("v_and_b32 %s, 7, %s" % (t, l))
    p("v_lshlrev_b32 %s, 13, %s" % (vr(vUT), t))
    p("v_lshrrev_b32 %s, 3, %s" % (t, l))
    p("v_lshlrev_b32 %s, 4, %s" % (t, t))
    p("v_sub_u32 %s, %s, %s" % (vr(vUT), vr(vUT), t))
    p("v_add_u32 %s, %s, %s" % (vr(vUT), sr(sT0), vr(vUT)))


def ut_store(soff, sc, tag=None):
    p("buffer_store_dwordx4 %s, %s, %s, %s offen%s" % (vr(UP, 4), vr(vUT), sr(sWS, 4), sr(soff), sc), tag)
    sadd(sT3, soff, 4096)
    p("buffer_store_dwordx4 %s, %s, %s, %s offen%s" % (vr(UP + 4, 4), vr(vUT), sr(sWS, 4), sr(sT3), sc), tag)


def h_copies():
    A, B = KF, KF + 8
    C = KF + 16
    t = vr(vT)
    wa = vr(vHA)
    p("v_and_b32 %s, 127, v0" % t)
    p("s_lshr_b32 %s, %s, 1" % (sr(sT0), sr(sWV)))
    p("s_lshl_b32 %s, %s, 16" % (sr(sT1), sr(sDV)))
    p("s_and_b32 %s, %s, %s" % (sr(sT2), sr(sDV), sr(sMASK)))
    p("s_cmp_eq_u32 %s, 0" % sr(sT0))
    p("s_cselect_b32 %s, %s, %s" % (sr(sT1), sr(sT1), sr(sT2)))
    p("v_cmp_eq_u32 vcc, 0, %s" % t)
    p("v_lshlrev_b32 %s, 16, %s" % (vr(C), vr(HE + 2)))
    p("v_add_f32 %s, %s, %s" % (vr(C), sr(sT1), vr(C)))
    p("v_cvt_pk_bf16_f32 %s, %s, %s" % (vr(C), vr(C), vr(C)))
    p("v_bfi_b32 %s, %s, %s, %s" % (vr(C), sr(sMASK), vr(HE + 2), vr(C)))
    p("v_cndmask_b32 %s, %s, %s, vcc" % (vr(HE + 2), vr(HE + 2), vr(C)))
    p("v_cndmask_b32_e64 %s, %s, 0, vcc" % (vr(HE), vr(HE)))
    p("v_cndmask_b32_e64 %s, %s, 0, vcc" % (vr(HE + 1), vr(HE + 1)))
    p("s_mul_i32 %s, %s, %d" % (sr(sT0), sr(sT0), HCH))
    sadd(sT0, sT0, HB + 32)
    p("v_lshlrev_b32 %s, 5, %s" % (wa, t))
    p("v_add_u32 %s, %s, %s" % (wa, sr(sT0), wa))
    p("ds_write_b128 %s, %s offset:%d" % (wa, vr(HE + 2, 4), 3 * HCOPY))
    p("ds_write_b128 %s, %s offset:%d" % (wa, vr(HE + 6, 4), 3 * HCOPY + 16))
    for n in range(8):
        p("v_alignbit_b32 %s, %s, %s, 16" % (vr(A + n), vr(HE + n + 1), vr(HE + n)))
    p("ds_write_b128 %s, %s offset:%d" % (wa, vr(A, 4), 0))
    p("ds_write_b128 %s, %s offset:%d" % (wa, vr(A + 4, 4), 16))
    for n in range(8):
        p("v_alignbit_b32 %s, %s, %s, 16" % (vr(B + n), vr(HE + n + 2), vr(HE + n + 1)))
    p("ds_write_b128 %s, %s offset:%d" % (wa, vr(B, 4), 2 * HCOPY))
    p("ds_write_b128 %s, %s offset:%d" % (wa, vr(B + 4, 4), 2 * HCOPY + 16))
    for n in range(8):
        p("v_mov_b32 %s, %s" % (vr(UF + n), vr(HE + n + 1)))
    p("ds_write_b128 %s, %s offset:%d" % (wa, vr(UF, 4), HCOPY))
    p("ds_write_b128 %s, %s offset:%d" % (wa, vr(UF + 4, 4), HCOPY + 16))


def lds_zero():
    z = KF
    t, a = vr(vT), vr(vHB)
    for r in range(4):
        p("v_mov_b32 %s, 0" % vr(z + r))
    skip = p.newlabel("zero")
    skip2 = p.newlabel("zero")
    p("s_cmp_lg_u32 %s, 0" % sr(sWV))
    p("s_cbranch_scc1 %s" % skip)
    p("v_lshrrev_b32 %s, 5, v0" % t)
    p("v_mul_u32_u24 %s, %d, %s" % (a, UCH - 512, t))
    p("v_lshl_add_u32 %s, v0, 4, %s" % (a, a))
    p("v_add_u32 %s, 0x%x, %s" % (a, UB + 4096, a))
    p("ds_write_b128 %s, %s" % (a, vr(z, 4)))
    p.label(skip)
    p("s_cmp_lg_u32 %s, 1" % sr(sWV))
    p("s_cbranch_scc1 %s" % skip2)
    p("v_bfe_u32 %s, v0, 1, 3" % t)
    p("v_mul_u32_u24 %s, %d, %s" % (a, HCOPY, t))
    p("v_and_b32 %s, 1, v0" % t)
    p("v_lshl_add_u32 %s, %s, 4, %s" % (a, t, a))
    p("v_add_u32 %s, 0x%x, %s" % (a, HB, a))
    p("ds_write_b128 %s, %s" % (a, vr(z, 4)))
    p.label(skip2)


def afrag_preload():
    l = vr(vLANE)
    a, t, t2 = vr(vHA), vr(vT), vr(vHB)
    p("s_lshr_b32 %s, %s, 1" % (sr(sT0), sr(sWV)))
    p("s_mul_i32 %s, %s, %d" % (sr(sT0), sr(sT0), HCH))
    p("s_and_b32 %s, %s, 1" % (sr(sT1), sr(sWV)))
    p("s_lshl_b32 %s, %s, 8" % (sr(sT1), sr(sT1)))
    p("s_add_u32 %s, %s, %s" % (sr(sT0), sr(sT0), sr(sT1)))
    sadd(sT0, sT0, HB + 8)
    p("v_and_b32 %s, 3, %s" % (t, l))
    p("v_mul_u32_u24 %s, %d, %s" % (a, HCOPY, t))
    p("v_and_b32 %s, 12, %s" % (t, l))
    p("v_lshl_add_u32 %s, %s, 1, %s" % (a, t, a))
    p("v_and_b32 %s, 48, %s" % (t, l))
    p("v_add3_u32 %s, %s, %s, %s" % (a, a, t, sr(sT0)))
    for rho in range(4):
        for aa in range(8):
            off = 512 * aa + 64 * rho
            r = aH + 4 * (8 * rho + aa)
            p("ds_read_b64 %s, %s offset:%d" % (ar(r, 2), a, off))
            p("ds_read_b64 %s, %s offset:%d" % (ar(r + 2, 2), a, off + 8))


def handoff_ut():
    F = KF
    E = KF + 4
    FB = KF + 8
    top, fast, got = p.newlabel("h1"), p.newlabel("h1fast"), p.newlabel("h1got")
    slow, slowtop = p.newlabel("h1slow"), p.newlabel("h1slowtop")
    p("s_add_u32 %s, %s, %s" % (sr(sP), sr(sTAG), sr(sXCC)))
    p("s_addc_u32 %s, %s, 0" % (sr(sP + 1), sr(sTAG + 1)))
    sadd(sT0, sCLS, C_FLAGA)
    p("v_and_b32 %s, 0xff, %s" % (vr(E), vr(vL8)))
    p("s_mov_b32 %s, %d" % (sr(sCNT), 0 if FORCE_SLOW else 48))
    p.label(top)
    p("buffer_load_dwordx2 %s, %s, %s, %s offen sc1" % (vr(F, 2), vr(E), sr(sWS, 4), sr(sT0)))
    p("v_cmp_ne_u64 vcc, %s, %s" % (sr(sP, 2), vr(F, 2)))
    if not FORCE_SLOW:
        p("s_cbranch_vccz %s" % fast)
    p("s_sub_u32 %s, %s, 1" % (sr(sCNT), sr(sCNT)))
    p("s_cbranch_scc0 %s" % top)
    p("s_branch %s" % slow)
    p.label(fast)
    p("s_mov_b32 %s, 1" % sr(sMODE))
    sadd(sUSRC, sCLS, C_UTA)
    p.label(got)

    def blk():
        p.label(slow)
        p("s_lshl_b32 %s, %s, 18" % (sr(sUSRC), sr(sX)))
        sadd(sUSRC, sUSRC, UTB)
        ut_store(sUSRC, " sc1")
        p.waitvm()
        p("s_lshl_b32 %s, %s, 10" % (sr(sT1), sr(sX)))
        sadd(sT1, sT1, FLAGB)
        p("s_lshl_b32 %s, %s, 2" % (sr(sT2), sr(sJ)))
        p("s_add_u32 %s, %s, %s" % (sr(sT2), sr(sT2), sr(sWV)))
        p("s_lshl_b32 %s, %s, 3" % (sr(sT2), sr(sT2)))
        p("s_add_u32 %s, %s, %s" % (sr(sT2), sr(sT2), sr(sT1)))
        flag_store(sT2, local=False)
        p("s_mov_b32 %s, %s" % (sr(sCNT), sr(sLIM)))
        p("s_mov_b32 %s, 0" % sr(sMODE))
        p.label(slowtop)
        p("buffer_load_dwordx2 %s, %s, %s, %s offen sc1" % (vr(F, 2), vr(E), sr(sWS, 4), sr(sT0)))
        p("buffer_load_dwordx2 %s, %s, %s, %s offen sc1" % (vr(FB, 2), vr(vL8), sr(sWS, 4), sr(sT1)))
        p("buffer_load_dwordx2 %s, %s, %s, %s offen offset:512 sc1" % (vr(FB + 2, 2), vr(vL8), sr(sWS, 4), sr(sT1)))
        if not FORCE_SLOW:
            p("v_cmp_ne_u64 vcc, %s, %s" % (sr(sP, 2), vr(F, 2)))
            p("s_cbranch_vccz %s" % fast)
        p("v_cmp_ne_u64 vcc, %s, %s" % (sr(sTAG, 2), vr(FB, 2)))
        p("v_cmp_ne_u64 %s, %s, %s" % (sr(sTS, 2), sr(sTAG, 2), vr(FB + 2, 2)))
        p("s_or_b64 vcc, vcc, %s" % sr(sTS, 2))
        p("s_cbranch_vccz %s" % got)
        p("s_sub_u32 %s, %s, 1" % (sr(sCNT), sr(sCNT)))
        p("s_cbranch_scc0 %s" % slowtop)
        p("s_mov_b32 %s, 0" % sr(sLIM))
        p("s_or_b32 %s, %s, 1" % (sr(sERR), sr(sERR)))
        p("s_branch %s" % got)

    tail.append(blk)
    p("s_lshl_b32 %s, %s, 13" % (sr(sT0), sr(sJ)))
    p("s_add_u32 %s, %s, %s" % (sr(sT0), sr(sT0), sr(sUSRC)))
    p("s_lshl_b32 %s, %s, 11" % (sr(sT1), sr(sWV)))
    p("s_add_u32 %s, %s, %s" % (sr(sT0), sr(sT0), sr(sT1)))
    p("s_lshr_b32 %s, %s, 1" % (sr(sT2), sr(sWV)))
    p("s_lshl_b32 %s, %s, 9" % (sr(sT2), sr(sT2)))
    p("s_add_u32 %s, %s, %s" % (sr(sT1), sr(sT1), sr(sT2)))
    p("s_add_u32 m0, %s, %d" % (sr(sT1), UB))
    p("buffer_load_dwordx4 %s, %s, %s offen sc1 lds" % (vr(vL16), sr(sWS, 4), sr(sT0)))
    p("buffer_load_dwordx4 %s, %s, %s offen offset:1024 sc1 lds" % (vr(vL16), sr(sWS, 4), sr(sT0)))


CACC = S0 + 8
CB = S0 + 40
CR = S0 + 72
vCB, vCE, vYw = S0 + 4, S0 + 5, S0 + 6


def conv_addresses():
    l = vr(vLANE)
    t = vr(vT)
    p("s_lshr_b32 %s, %s, 1" % (sr(sT0), sr(sWV)))
    p("s_mul_i32 %s, %s, %d" % (sr(sT0), sr(sT0), UCH))
    p("s_and_b32 %s, %s, 1" % (sr(sT1), sr(sWV)))
    p("s_lshl_b32 %s, %s, 8" % (sr(sT1), sr(sT1)))
    p("s_add_u32 %s, %s, %s" % (sr(sT0), sr(sT0), sr(sT1)))
    sadd(sT0, sT0, UB + 480)
    p("v_and_b32 %s, 15, %s" % (t, l))
    p("v_lshlrev_b32 %s, 5, %s" % (vr(vCB), t))
    p("v_sub_u32 %s, %s, %s" % (vr(vCB), sr(sT0), vr(vCB)))
    p("v_lshlrev_b32 %s, 6, %s" % (vr(vYw), t))
    p("v_and_b32 %s, 48, %s" % (t, l))
    p("v_add_u32 %s, %s, %s" % (vr(vCB), vr(vCB), t))
    p("v_add_u32 %s, %s, %s" % (vr(vYw), vr(vYw), t))


def conv(extra):
    def rd(m, rho):
        p("ds_read_b128 %s, %s offset:%d" % (vr(CB + 4 * m, 4), vr(vCB), 512 * (7 - m) + 64 * rho))

    def mm(a, m, rho, first):
        acc = vr(CACC + 4 * (a + m), 4)
        p("v_mfma_f32_16x16x32_bf16 %s, %s, %s, %s" % (acc, ar(aH + 4 * (8 * rho + a), 4), vr(CB + 4 * m, 4), "0" if first else acc))

    for m in range(8):
        rd(m, 0)
    extra()
    for rho in range(3):
        for m in range(8):
            for a in range(8 - m):
                mm(a, m, rho, rho == 0 and m == 0)
            rd(m, rho + 1)
    p("s_lshl_b32 %s, %s, 5" % (sr(sT0), sr(sX)))
    p("s_add_u32 %s, %s, %s" % (sr(sT0), sr(sT0), sr(sJ)))
    p("s_lshl_b32 %s, %s, 13" % (sr(sT0), sr(sT0)))
    sadd(sT0, sT0, YB)
    labs = [p.newlabel("cv%d" % w) for w in range(4)]
    join = p.newlabel("cvjoin")
    for w in range(1, 4):
        p("s_cmp_eq_u32 %s, %d" % (sr(sWV), w))
        p("s_cbranch_scc1 %s" % labs[w])
    for w in range(4):
        p.label(labs[w])
        keep = (w, 7 - w)
        send = [jt for jt in range(7, -1, -1) if jt not in keep]
        pend = []
        for jt in send + list(keep):
            for a in range(jt + 1):
                mm(a, jt - a, 3, False)
            if pend:
                j2 = pend.pop()
                d = min(j2, 7 - j2)
                slot = (w - d - 1) % 4
                p("ds_write_b128 %s, %s offset:%d" % (vr(vL16), vr(CACC + 4 * j2, 4), EX + (d * 3 + slot) * 2048 + (0 if j2 < 4 else 1024)))
            if jt in send:
                pend.append(jt)
        barrier()
        for slot in range(3):
            for k2 in range(2):
                p("ds_read_b128 %s, %s offset:%d" % (vr(CR + 8 * slot + 4 * k2, 4), vr(vL16), EX + (w * 3 + slot) * 2048 + 1024 * k2))
        partner = w ^ 1
        others = [o for o in range(4) if (o >> 1) != (w >> 1)]
        sl = lambda o: (o - w - 1) % 4
        for k2 in range(2):
            jt = keep[k2]
            own = CACC + 4 * jt
            pr = CR + 8 * sl(partner) + 4 * k2
            o0 = CR + 8 * sl(others[0]) + 4 * k2
            o1 = CR + 8 * sl(others[1]) + 4 * k2
            for e in (0, 2):
                p("v_pk_add_f32 %s, %s, %s" % (vr(own + e, 2), vr(own + e, 2), vr(pr + e, 2)))
                p("v_pk_add_f32 %s, %s, %s" % (vr(o0 + e, 2), vr(o0 + e, 2), vr(o1 + e, 2)))
            lo, hi = (own, o0) if (w >> 1) == 0 else (o0, own)
            for e in range(4):
                p("v_cvt_pk_bf16_f32 %s, %s, %s" % (vr(pr + e), vr(lo + e), vr(hi + e)))
            for e in range(4):
                p("v_min_u32 %s, -2, %s" % (vr(pr + e), vr(pr + e)))
            if jt >= 4:
                sadd(sT0, sT0, 4096)
            p("buffer_store_dwordx4 %s, %s, %s, %s offen offset:%d sc1" % (vr(pr, 4), vr(vYw), sr(sWS, 4), sr(sT0), 1024 * (jt % 4)))
        if w < 3:
            p("s_branch %s" % join)
    p.label(join)


def hello_check():
    F = S0 + 8
    p("s_mov_b32 %s, 0x%x" % (sr(sT0), HELLO))

    def issue():
        for u in range(4):
            p("buffer_load_dwordx2 %s, %s, %s, %s offen offset:%d sc1" % (vr(F + 2 * u, 2), vr(vL8), sr(sWS, 4), sr(sT0), 512 * u))

    def check():
        p("v_cmp_ne_u64 vcc, %s, %s" % (sr(sTAG, 2), vr(F, 2)))
        for u in range(1, 4):
            p("v_cmp_ne_u64 %s, %s, %s" % (sr(sP, 2), sr(sTAG, 2), vr(F + 2 * u, 2)))
            p("s_or_b64 vcc, vcc, %s" % sr(sP, 2))

    poll(issue, check, 1)


def colsum(a0, dst, transposed):
    acc = S0 + 8
    for ks in range(16):
        A, B = vr(vONE, 4), ar(a0 + 4 * ks, 4)
        if transposed:
            A, B = B, A
        p("v_mfma_f32_16x16x32_bf16 %s, %s, %s, %s" % (vr(acc, 4), A, B, "0" if ks == 0 else vr(acc, 4)))
    for e in range(4 if transposed else 1):
        p("v_mov_b32 %s, %s" % (vr(dst + e), vr(acc + e)))


N0 = S0 + 32


def normalise(vR, vNM):
    for e in range(0, 16, 2):
        p("v_pk_fma_f32 %s, %s, %s, %s op_sel_hi:[1,0,0]" % (vr(N0 + e, 2), vr(vX + e, 2), vr(vR, 2), vr(vNM, 2)))


def gate_and_publish(L):
    XP = S0 + 48
    for e in range(0, 16, 2):
        p("v_pk_fma_f32 %s, %s, %s, %s" % (vr(vX + e, 2), vr(N0 + e, 2), vr(vY + e, 2), vr(vX + e, 2)))
    for e in range(8):
        p("v_cvt_pk_bf16_f32 %s, %s, %s" % (vr(XP + e), vr(vX + 2 * e), vr(vX + 2 * e + 1)))
    sadd(sT0, sCLS, C_X + L * 0x40000)
    local_stores(
        [
            "buffer_store_dwordx4 %s, %s, %s, %s offen" % (vr(XP, 4), vr(vXw), sr(sWS, 4), sr(sT0)),
            "buffer_store_dwordx4 %s, %s, %s, %s offen offset:256" % (vr(XP + 4, 4), vr(vXw), sr(sWS, 4), sr(sT0)),
        ],
        "xst",
    )
    stats_compute(S0 + 56, S0 + 58)
    p("s_lshl_b32 %s, %s, 4" % (sr(sT1), sr(sG32L)))
    p("s_add_u32 %s, %s, %s" % (sr(sT1), sr(sT1), sr(sKS)))
    p("s_lshl_b32 %s, %s, 3" % (sr(sT1), sr(sT1)))
    p("s_add_u32 %s, %s, %s" % (sr(sT1), sr(sT1), sr(sCLS)))
    sadd(sT1, sT1, C_FLAGX + L * 0x400)
    p.waitvm("xst")
    flag_store(sT1)
    sadd(sT0, sCLS, st_off(1 + 2 * L))
    local_stores(["buffer_store_dword %s, %s, %s, %s offen" % (vr(S0 + 56), vr(vSTw), sr(sWS, 4), sr(sT0))])


GA = S0 + 8
GK, GV, GQ = S0 + 40, S0 + 56, S0 + 72
GT = S0 + 88


def gemm_kv(L):
    F = GT
    p("s_lshl_b32 %s, %s, 1" % (sr(sT0), sr(sRG)))
    p("s_lshr_b32 %s, %s, 1" % (sr(sT1), sr(sWV)))
    p("s_add_u32 %s, %s, %s" % (sr(sT0), sr(sT0), sr(sT1)))
    p("s_lshl_b32 %s, %s, 7" % (sr(sT0), sr(sT0)))
    p("s_add_u32 %s, %s, %s" % (sr(sT0), sr(sT0), sr(sCLS)))
    sadd(sT0, sT0, C_FLAGX + L * 0x400)
    p("v_and_b32 %s, 0x7f, %s" % (vr(F + 2), vr(vL8)))
    p("s_lshl_b32 %s, %s, 16" % (sr(sT1), sr(sRG)))
    p("s_lshl_b32 %s, %s, 14" % (sr(sT2), sr(sWV)))
    p("s_add_u32 %s, %s, %s" % (sr(sT1), sr(sT1), sr(sT2)))
    p("s_add_u32 %s, %s, %s" % (sr(sT1), sr(sT1), sr(sCLS)))
    sadd(sT1, sT1, C_X + L * 0x40000)
    p("s_add_u32 m0, %s, %d" % (sr(sT2), AB))
    poll(
        lambda: p("buffer_load_dwordx2 %s, %s, %s, %s offen sc1" % (vr(F, 2), vr(F + 2), sr(sWS, 4), sr(sT0))),
        lambda: p("v_cmp_ne_u64 vcc, %s, %s" % (sr(sTAG, 2), vr(F, 2))),
        3,
    )
    stamp("xflag%d" % L)
    for s in range(4):
        for k2 in range(4):
            p("buffer_load_dwordx4 %s, %s, %s offen offset:%d sc1 lds" % (vr(vL16), sr(sWS, 4), sr(sT1), 1024 * k2), "a%d" % s)
        if s < 3:
            p("s_add_u32 m0, m0, 4096")
            sadd(sT1, sT1, 4096)
    p("s_lshl_b32 %s, %s, 1" % (sr(sT0), sr(sRG)))
    p("s_and_b32 %s, %s, 1" % (sr(sT1), sr(sWV)))
    p("s_add_u32 %s, %s, %s" % (sr(sT0), sr(sT0), sr(sT1)))
    p("s_lshl_b32 %s, %s, 12" % (sr(sT0), sr(sT0)))
    p("s_add_u32 %s, %s, %s" % (sr(sT0), sr(sT0), sr(sCLS)))
    sadd(sT3, sT0, st_off(1 + 2 * L))
    p("v_add_u32 %s, 0x%x, %s" % (vr(S0 + 123), AB, vr(vL16)))

    def rd(ks):
        for tt in range(4):
            p("ds_read_b128 %s, %s offset:%d" % (vr(GA + 16 * (ks & 1) + 4 * tt, 4), vr(S0 + 123), tt * 16384 + ks * 1024))

    p.waitvm("a0")
    barrier()
    if L == 0:
        stage_wo(0, R1, "wo")
    rd(0)
    for ks in range(16):
        if ks < 15:
            if (ks + 1) % 4 == 0:
                p.waitvm("a%d" % ((ks + 1) // 4))
                if ks + 1 == 12:
                    poll(lambda: stats_issue(GT, sT3), lambda: check_sentinel(range(GT, GT + 16), GT + 16), 4)
                    stats_finish(GT, GT + 16, GT + 17)
                    p("v_cmp_gt_u32 vcc, 0x200, %s" % vr(vL16))
                    p("v_cndmask_b32 %s, %s, %s, vcc" % (vr(GT + 16), vr(GT + 17), vr(GT + 16)))
                    p("ds_write_b32 %s, %s" % (vr(vTBw), vr(GT + 16)))
                    p.waitlg()
                p("s_barrier")
            rd(ks + 1)
        for tt in range(4):
            A = vr(GA + 16 * (ks & 1) + 4 * tt, 4)
            for acc, w in ((GK, aWK), (GV, aWV)):
                d = vr(acc + 4 * tt, 4)
                p("v_mfma_f32_16x16x32_bf16 %s, %s, %s, %s" % (d, A, ar(w + 4 * ks, 4), "0" if ks == 0 else d))
    stamp("gemmkv%d" % L)
    for tt in range(4):
        p("ds_read_b128 %s, %s offset:%d" % (vr(GT + 8 * tt, 4), vr(vTB1), 64 * tt))
        p("ds_read_b128 %s, %s offset:%d" % (vr(GT + 8 * tt + 4, 4), vr(vTB1), 256 + 64 * tt))
    PK, PV, T = GA, GA + 8, GA + 16
    for tt in range(4):
        Rr, NM = GT + 8 * tt, GT + 8 * tt + 4
        k0, v0 = GK + 4 * tt, GV + 4 * tt
        for e in range(4):
            p("v_fma_f32 %s, %s, %s, %s" % (vr(T + e), vr(NM + e), vr(vCSK), sr(sEPS6)))
        for e in (0, 2):
            p("v_pk_fma_f32 %s, %s, %s, %s" % (vr(k0 + e, 2), vr(k0 + e, 2), vr(Rr + e, 2), vr(T + e, 2)))
        for e in range(4):
            p("v_mul_f32 %s, %s, %s" % (vr(T + e), sr(sLOG2E), vr(k0 + e)))
        for e in range(4):
            p("v_exp_f32_e64 %s, %s clamp" % (vr(T + e), vr(T + e)))
        for e in range(4):
            p("v_max_f32 %s, %s, %s" % (vr(k0 + e), sr(sEPS6), vr(k0 + e)))
        for e in (0, 2):
            p("v_pk_add_f32 %s, %s, %s" % (vr(k0 + e, 2), vr(k0 + e, 2), vr(T + e, 2)))
        for e in range(4):
            p("v_mul_f32 %s, %s, %s" % (vr(T + 4 + e), vr(NM + e), vr(vCSV)))
        for e in (0, 2):
            p("v_pk_fma_f32 %s, %s, %s, %s" % (vr(v0 + e, 2), vr(v0 + e, 2), vr(Rr + e, 2), vr(T + 4 + e, 2)))
        for e in (0, 2):
            p("v_cvt_pk_bf16_f32 %s, %s, %s" % (vr(PK + 2 * tt + e // 2), vr(k0 + e), vr(k0 + e + 1)))
            p("v_cvt_pk_bf16_f32 %s, %s, %s" % (vr(PV + 2 * tt + e // 2), vr(v0 + e), vr(v0 + e + 1)))
    KV, Z = GK, GK + 4
    p("v_mfma_f32_16x16x32_bf16 %s, %s, %s, 0" % (vr(KV, 4), vr(PK, 4), vr(PV, 4)))
    p("v_mfma_f32_16x16x32_bf16 %s, %s, %s, %s" % (vr(KV, 4), vr(PK + 4, 4), vr(PV + 4, 4), vr(KV, 4)))
    p("v_mfma_f32_16x16x32_bf16 %s, %s, %s, 0" % (vr(Z, 4), vr(PK, 4), vr(vONE, 4)))
    p("v_mfma_f32_16x16x32_bf16 %s, %s, %s, %s" % (vr(Z, 4), vr(PK + 4, 4), vr(vONE, 4), vr(Z, 4)))
    p("s_lshl_b32 %s, %s, 2" % (sr(sT0), sr(sM)))
    p("s_add_u32 %s, %s, %s" % (sr(sT0), sr(sT0), sr(sWV)))
    p("s_lshl_b32 %s, %s, 5" % (sr(sT0), sr(sT0)))
    p("s_lshl_b32 %s, %s, 2" % (sr(sT1), sr(sX)))
    p("s_add_u32 %s, %s, %s" % (sr(sT0), sr(sT0), sr(sT1)))
    p("s_add_u32 %s, %s, %s" % (sr(sT0), sr(sT0), sr(sRG)))
    p("s_lshl_b32 %s, %s, 9" % (sr(sT1), sr(sT0)))
    sadd(sT1, sT1, KVP + L * 0x80000)
    p("s_lshl_b32 %s, %s, 6" % (sr(sT2), sr(sT0)))
    sadd(sT2, sT2, ZP + L * 0x10000)
    p("v_cvt_pk_bf16_f32 %s, %s, %s" % (vr(T), vr(KV), vr(KV + 1)))
    p("v_cvt_pk_bf16_f32 %s, %s, %s" % (vr(T + 1), vr(KV + 2), vr(KV + 3)))
    p("v_min_u32 %s, -2, %s" % (vr(T), vr(T)))
    p("v_min_u32 %s, -2, %s" % (vr(T + 1), vr(T + 1)))
    p("buffer_store_dwordx2 %s, %s, %s, %s offen sc1" % (vr(T, 2), vr(vL8), sr(sWS, 4), sr(sT1)))
    for e in range(4):
        p("v_min_u32 %s, -2, %s" % (vr(Z + e), vr(Z + e)))
    p("s_mov_b32 exec_lo, 0x00010001")
    p("s_mov_b32 exec_hi, 0x00010001")
    p("buffer_store_dwordx4 %s, %s, %s, %s offen sc1" % (vr(Z, 4), vr(vZr), sr(sWS, 4), sr(sT2)))
    p("s_mov_b64 exec, -1")
    stamp("kvpub%d" % L)


def gemm_q(L):
    def rd(ks):
        for tt in range(4):
            p("ds_read_b128 %s, %s offset:%d" % (vr(GA + 16 * (ks & 1) + 4 * tt, 4), vr(S0 + 123), tt * 16384 + ks * 1024))

    p("v_add_u32 %s, 0x%x, %s" % (vr(S0 + 123), AB, vr(vL16)))
    for tt in range(4):
        p("ds_read_b32 %s, %s offset:%d" % (vr(GT + 2 * tt), vr(vTB2), 64 * tt))
        p("ds_read_b32 %s, %s offset:%d" % (vr(GT + 2 * tt + 1), vr(vTB2), 256 + 64 * tt))
    rd(0)
    for ks in range(16):
        if ks < 15:
            rd(ks + 1)
        for tt in range(4):
            B = vr(GA + 16 * (ks & 1) + 4 * tt, 4)
            d = vr(GQ + 4 * tt, 4)
            p("v_mfma_f32_16x16x32_bf16 %s, %s, %s, %s" % (d, ar(aWQ + 4 * ks, 4), B, "0" if ks == 0 else d))
    T = GA
    PQ = GA + 8
    sadd(sT0, sCLS, C_PQ + L * 0x40000)
    sadd(sT1, sT0, 32768)
    lines = []
    for tt in range(4):
        Rr, NM = GT + 2 * tt, GT + 2 * tt + 1
        q0 = GQ + 4 * tt
        for e in range(4):
            p("v_fma_f32 %s, %s, %s, %s" % (vr(T + e), vr(NM), vr(vCSQ + e), sr(sEPS6)))
        for e in range(4):
            p("v_fma_f32 %s, %s, %s, %s" % (vr(q0 + e), vr(q0 + e), vr(Rr), vr(T + e)))
        for e in range(4):
            p("v_mul_f32 %s, %s, %s" % (vr(T + e), sr(sLOG2E), vr(q0 + e)))
        for e in range(4):
            p("v_exp_f32_e64 %s, %s clamp" % (vr(T + e), vr(T + e)))
        for e in range(4):
            p("v_max_f32 %s, %s, %s" % (vr(q0 + e), sr(sEPS6), vr(q0 + e)))
        for e in (0, 2):
            p("v_pk_add_f32 %s, %s, %s" % (vr(q0 + e, 2), vr(q0 + e, 2), vr(T + e, 2)))
        for e in (0, 2):
            p("v_cvt_pk_bf16_f32 %s, %s, %s" % (vr(PQ + 2 * tt + e // 2), vr(q0 + e), vr(q0 + e + 1)))
        lines.append(
            "buffer_store_dwordx2 %s, %s, %s, %s offen offset:%d" % (vr(PQ + 2 * tt, 2), vr(vPQw), sr(sWS, 4), sr(sT0 if tt < 2 else sT1), 256 * (tt & 1))
        )
    local_stores(lines, "pqst")
    p("s_lshl_b32 %s, %s, 5" % (sr(sT0), sr(sRG)))
    p("s_lshl_b32 %s, %s, 2" % (sr(sT1), sr(sM)))
    p("s_add_u32 %s, %s, %s" % (sr(sT0), sr(sT0), sr(sT1)))
    p("s_add_u32 %s, %s, %s" % (sr(sT0), sr(sT0), sr(sWV)))
    p("s_lshl_b32 %s, %s, 3" % (sr(sT0), sr(sT0)))
    p("s_add_u32 %s, %s, %s" % (sr(sT0), sr(sT0), sr(sCLS)))
    sadd(sT0, sT0, C_FLAGPQ + L * 0x400)
    p.waitvm("pqst")
    flag_store(sT0)


OPQ = S0 + 8
OST = S0 + 40
OD = S0 + 72
OF = S0 + 104


def head_off(u):
    return (u & 3) * 1024 + (u >> 2) * 16384


def reduce_state(L):
    P = OST
    ZL = OST + 16
    D = OST + 24
    RC = OD
    T = OD + 12
    p("s_lshl_b32 %s, %s, 5" % (sr(sT0), sr(sJ)))
    p("s_lshl_b32 %s, %s, 6" % (sr(sT2), sr(sT0)))
    sadd(sT2, sT2, ZP + L * 0x10000)
    p("s_lshl_b32 %s, %s, 3" % (sr(sT1), sr(sWV)))
    p("s_add_u32 %s, %s, %s" % (sr(sT0), sr(sT0), sr(sT1)))
    p("s_lshl_b32 %s, %s, 9" % (sr(sT0), sr(sT0)))
    sadd(sT0, sT0, KVP + L * 0x80000)

    def issue():
        for u in range(8):
            p("buffer_load_dwordx2 %s, %s, %s, %s offen offset:%d sc1" % (vr(P + 2 * u, 2), vr(vL8), sr(sWS, 4), sr(sT0), 512 * u))

    poll(issue, lambda: check_sentinel(range(P, P + 16), T), 5)
    stamp("kvgot%d" % L)
    for u in range(4):
        p("v_mfma_f32_16x16x32_bf16 %s, %s, %s, %s" % (vr(D, 4), vr(vSEL, 4), vr(P + 4 * u, 4), "0" if u == 0 else vr(D, 4)))
    p("s_lshl_b32 %s, %s, 10" % (sr(sT1), sr(sWV)))
    sadd(sT1, sT1, RS)
    p("v_add_u32 %s, %s, %s" % (vr(T), sr(sT1), vr(vL16)))
    p("s_lshl_b32 %s, %s, 10" % (sr(sT3), sr(sJ)))
    p("s_add_u32 %s, %s, %s" % (sr(sT3), sr(sT3), sr(sCLS)))
    sadd(sT3, sT3, C_STATE + L * 0x8000)
    p("ds_write_b128 %s, %s" % (vr(T), vr(D, 4)))
    barrier()
    w1, done = p.newlabel("red1"), p.newlabel("reddone")
    p("s_cmp_eq_u32 %s, 1" % sr(sWV))
    p("s_cbranch_scc1 %s" % w1)
    p("s_cmp_lg_u32 %s, 0" % sr(sWV))
    p("s_cbranch_scc1 %s" % done)
    for u in range(3):
        p("ds_read_b128 %s, %s offset:%d" % (vr(RC + 4 * u, 4), vr(T), 1024 * (u + 1)))
    for e in (0, 2):
        p("v_pk_add_f32 %s, %s, %s" % (vr(D + e, 2), vr(D + e, 2), vr(RC + e, 2)))
        p("v_pk_add_f32 %s, %s, %s" % (vr(RC + 4 + e, 2), vr(RC + 4 + e, 2), vr(RC + 8 + e, 2)))
    for e in (0, 2):
        p("v_pk_add_f32 %s, %s, %s" % (vr(D + e, 2), vr(D + e, 2), vr(RC + 4 + e, 2)))
    p("v_cvt_pk_bf16_f32 %s, %s, %s" % (vr(D), vr(D), vr(D + 1)))
    p("v_cvt_pk_bf16_f32 %s, %s, %s" % (vr(D + 1), vr(D + 2), vr(D + 3)))
    p("v_min_u32 %s, -2, %s" % (vr(D), vr(D)))
    p("v_min_u32 %s, -2, %s" % (vr(D + 1), vr(D + 1)))
    local_stores(["buffer_store_dwordx2 %s, %s, %s, %s offen" % (vr(D, 2), vr(vSTATEw), sr(sWS, 4), sr(sT3))])
    p("s_branch %s" % done)
    p.label(w1)

    def issue_z():
        for u in range(2):
            p("buffer_load_dwordx4 %s, %s, %s, %s offen offset:%d sc1" % (vr(ZL + 4 * u, 4), vr(vZr), sr(sWS, 4), sr(sT2), 1024 * u))

    poll(issue_z, lambda: check_sentinel(range(ZL, ZL + 8), T), 6)
    for e in (0, 2):
        p("v_pk_add_f32 %s, %s, %s" % (vr(ZL + e, 2), vr(ZL + e, 2), vr(ZL + 4 + e, 2)))
    for sh in (8, 4, 2, 1):
        for e in range(4):
            p("v_add_f32_dpp %s, %s, %s row_ror:%d row_mask:0xf bank_mask:0xf" % (vr(ZL + e), vr(ZL + e), vr(ZL + e), sh))
    p("v_cvt_pk_bf16_f32 %s, %s, %s" % (vr(ZL), vr(ZL), vr(ZL + 1)))
    p("v_cvt_pk_bf16_f32 %s, %s, %s" % (vr(ZL + 1), vr(ZL + 2), vr(ZL + 3)))
    p("v_min_u32 %s, -2, %s" % (vr(ZL), vr(ZL)))
    p("v_min_u32 %s, -2, %s" % (vr(ZL + 1), vr(ZL + 1)))
    local_stores(["buffer_store_dwordx2 %s, %s, %s, %s offen offset:256" % (vr(ZL, 2), vr(vSTATEw), sr(sWS, 4), sr(sT3))])
    p.label(done)


def load_pq(L):
    F = OD
    p("s_lshl_b32 %s, %s, 8" % (sr(sT0), sr(sRG)))
    p("s_add_u32 %s, %s, %s" % (sr(sT0), sr(sT0), sr(sCLS)))
    sadd(sT0, sT0, C_FLAGPQ + L * 0x400)
    p("v_and_b32 %s, 0xff, %s" % (vr(F + 2), vr(vL8)))
    poll(
        lambda: p("buffer_load_dwordx2 %s, %s, %s, %s offen sc1" % (vr(F, 2), vr(F + 2), sr(sWS, 4), sr(sT0))),
        lambda: p("v_cmp_ne_u64 vcc, %s, %s" % (sr(sTAG, 2), vr(F, 2))),
        7,
    )
    p("s_lshl_b32 %s, %s, 15" % (sr(sT0), sr(sG32L)))
    p("s_lshl_b32 %s, %s, 12" % (sr(sT1), sr(sWV)))
    p("s_add_u32 %s, %s, %s" % (sr(sT0), sr(sT0), sr(sT1)))
    p("s_add_u32 %s, %s, %s" % (sr(sT0), sr(sT0), sr(sCLS)))
    sadd(sT0, sT0, C_PQ + L * 0x40000)
    sadd(sT1, sT0, 16384)
    for u in range(8):
        p("buffer_load_dwordx4 %s, %s, %s, %s offen offset:%d sc1" % (vr(OPQ + 4 * u, 4), vr(vL16), sr(sWS, 4), sr(sT0 if u < 4 else sT1), 1024 * (u & 3)))


def attn_out(L):
    T = OF + 12
    p("s_lshl_b32 %s, %s, 12" % (sr(sT2), sr(sWV)))
    p("s_add_u32 %s, %s, %s" % (sr(sT0), sr(sT2), sr(sCLS)))
    sadd(sT0, sT0, C_STATE + L * 0x8000)
    sadd(sT1, sT0, 16384)
    sadd(sT2, sT2, OB)
    p("v_add_u32 %s, %s, %s" % (vr(S0 + 122), sr(sT2), vr(vL16)))
    p("v_add_u32 %s, 0x%x, %s" % (vr(S0 + 123), OB, vr(vL16)))

    def issue():
        for u in range(8):
            p("buffer_load_dwordx4 %s, %s, %s, %s offen offset:%d sc1" % (vr(OST + 4 * u, 4), vr(vL16), sr(sWS, 4), sr(sT0 if u < 4 else sT1), 1024 * (u & 3)))

    poll(issue, lambda: check_sentinel([OST + 2 * n for n in range(16)], T), 8)
    stamp("stgot%d" % L)

    def mm(u):
        p("v_mfma_f32_32x32x16_bf16 %s, %s, %s, 0" % (vr(OD + 16 * (u & 1), 16), vr(OST + 4 * u, 4), vr(OPQ + 4 * u, 4)))

    def fin(u):
        d = OD + 16 * (u & 1)
        of = OF + 4 * (u & 1)
        p("v_add_f32 %s, %s, %s" % (vr(d + 8), sr(sEPS6), vr(d + 8)))
        p("v_rcp_f32 %s, %s" % (vr(d + 8), vr(d + 8)))
        for e in range(0, 8, 2):
            p("v_pk_mul_f32 %s, %s, %s op_sel_hi:[1,0]" % (vr(d + e, 2), vr(d + e, 2), vr(d + 8, 2)))
        for e in range(4):
            p("v_cvt_pk_bf16_f32 %s, %s, %s" % (vr(of + e), vr(d + 2 * e), vr(d + 2 * e + 1)))
        p("ds_write_b128 %s, %s offset:%d" % (vr(S0 + 122), vr(of, 4), head_off(u)))

    def wreg(h):
        return ar(aWOA + 4 * h, 4) if h < 16 else vr(vWOB + 4 * (h - 16), 4)

    def breg(h):
        return (OST + 4 * (h % 4)) if (h // 4) % 2 == 0 else (OPQ + 4 * (h % 4))

    def rdb(h):
        p("ds_read_b128 %s, %s offset:%d" % (vr(breg(h), 4), vr(S0 + 123), 1024 * h))

    def wm(h):
        p("v_mfma_f32_32x32x16_bf16 %s, %s, %s, %s" % (vr(vX, 16), wreg(h), vr(breg(h), 4), vr(vX, 16)))

    mm(0)
    for u in range(4):
        mm(u + 1)
        fin(u)
    barrier()
    for h in range(8):
        rdb(h)
    for u in range(4, 8):
        if u < 7:
            mm(u + 1)
        for h in range(4 * (u - 4), 4 * (u - 4) + 4):
            wm(h)
            if h + 8 < 16:
                rdb(h + 8)
        fin(u)
    barrier()
    for h in range(16, 24):
        rdb(h)
    for h in range(16, 32):
        wm(h)
        if h + 8 < 32:
            rdb(h + 8)
    stamp("wo%d" % L)


def stats_hop():
    stats_compute(S0 + 8, S0 + 10)
    sadd(sT0, sCLS, st_off(2))
    local_stores(["buffer_store_dword %s, %s, %s, %s offen" % (vr(S0 + 8), vr(vSTw), sr(sWS, 4), sr(sT0))])
    p("s_lshl_b32 %s, %s, 12" % (sr(sT1), sr(sG32L)))
    p("s_add_u32 %s, %s, %s" % (sr(sT1), sr(sT1), sr(sT0)))
    B = S0 + 12
    poll(lambda: stats_issue(B, sT1), lambda: check_sentinel(range(B, B + 16), S0 + 28), 9)
    stats_finish(B, S0 + 28, S0 + 30)
    normalise(S0 + 28, S0 + 30)
    stamp("stats2")


def main():
    prologue()
    p0_issue()
    clears()
    dmaw_address()
    stage_w(1, R1, "wk")
    addresses()
    lds_zero()
    ut_address()
    stamp("issued")
    p0_compute()
    sadd(sT0, sCLS, C_UTA)
    ut_store(sT0, "")
    stamp("p0")
    p("s_add_u32 %s, %s, 16" % (sr(sTAG), sr(sTAG)))
    p("s_addc_u32 %s, %s, 0" % (sr(sTAG + 1), sr(sTAG + 1)))
    p("v_mov_b32 %s, %s" % (vr(vTAG), sr(sTAG)))
    p("v_mov_b32 %s, %s" % (vr(vTAG + 1), sr(sTAG + 1)))
    h_copies()
    for e in range(8):
        unpack(vX + 2 * e, X0 + e)
    stats_compute(VF, KF)
    p.waitvm()
    barrier()
    skip = p.newlabel("fa")
    p("s_cmp_lg_u32 %s, 0" % sr(sWV))
    p("s_cbranch_scc1 %s" % skip)
    p("s_add_u32 %s, %s, %s" % (sr(sP), sr(sTAG), sr(sXCC)))
    p("s_addc_u32 %s, %s, 0" % (sr(sP + 1), sr(sTAG + 1)))
    p("v_mov_b32 %s, %s" % (vr(KF), sr(sP)))
    p("v_mov_b32 %s, %s" % (vr(KF + 1), sr(sP + 1)))
    p("s_lshl_b32 %s, %s, 3" % (sr(sT0), sr(sJ)))
    p("s_add_u32 %s, %s, %s" % (sr(sT0), sr(sT0), sr(sCLS)))
    sadd(sT0, sT0, C_FLAGA)
    p("s_mov_b64 exec, 1")
    p("buffer_store_dwordx2 %s, off, %s, %s" % (vr(KF, 2), sr(sWS, 4), sr(sT0)))
    p("s_mov_b64 exec, -1")
    p.label(skip)
    stamp("flagA")
    sadd(sT0, sCLS, st_off(0))
    p("buffer_store_dword %s, %s, %s, %s offen sc1" % (vr(VF), vr(vSTw), sr(sWS, 4), sr(sT0)))
    if SKEW:
        p("v_mov_b32 %s, s74" % vr(KF + 20))
        p("s_lshl_b32 %s, s2, 2" % sr(sT0))
        sadd(sT0, sT0, PROF)
        p("buffer_store_dword %s, off, %s, %s sc1" % (vr(KF + 20), sr(sWS, 4), sr(sT0)))
    afrag_preload()
    unstage_w(R1, aWK)
    handoff_ut()
    stamp("utflag")
    conv_addresses()
    p.waitvm()
    barrier()
    skip = p.newlabel("hello")
    p("s_cmp_lg_u32 %s, 1" % sr(sWV))
    p("s_cbranch_scc1 %s" % skip)
    p("s_lshl_b32 %s, s2, 3" % sr(sT0))
    sadd(sT0, sT0, HELLO)
    flag_store(sT0, local=False)
    p.label(skip)
    stamp("convstart")
    conv(lambda: stage_w(2, R2, "wv"))
    stamp("convdone")
    p.waitvm("wv")
    barrier()
    stage_w(0, R1, "wq")
    unstage_prep(R2, vTrW)
    unstage_w(R2, aWV)
    hello_check()
    stamp("hello")
    p("s_lshl_b32 %s, %s, 12" % (sr(sT1), sr(sG32L)))
    p("s_add_u32 %s, %s, %s" % (sr(sT1), sr(sT1), sr(sCLS)))
    sadd(sT1, sT1, st_off(0))
    stats_issue(S0 + 12, sT1)
    colsum(aWK, vCSK, False)
    colsum(aWV, vCSV, False)
    stats_finish(S0 + 12, S0 + 28, S0 + 30)
    normalise(S0 + 28, S0 + 30)
    YR = S0 + 8
    stamp("ypoll")

    def issue_y():
        p("s_mov_b32 %s, 0x%x" % (sr(sT0), YB))
        for u in range(8):
            p("buffer_load_dword %s, %s, %s, %s offen sc1" % (vr(YR + u), vr(vYa), sr(sWS, 4), sr(sT0)))
            if u < 7:
                sadd(sT0, sT0, 8192)

    poll(issue_y, lambda: check_sentinel(range(YR, YR + 8), S0 + 16), 2)
    stamp("ygot")
    for u in range(8):
        unpack(vY + 2 * u, YR + u)
    for L in range(2):
        gate_and_publish(L)
        stamp("xpub%d" % L)
        if L == 0:
            barrier()
            unstage_w(R1, aWQ)
            colsum(aWQ, vCSQ, True)
        else:
            barrier()
        gemm_kv(L)
        if L == 0:
            p.waitvm("wo")
            barrier()
            unstage_wo(R1, "a", aWOA)
            barrier()
            stage_wo(1, R1, "wo")
        gemm_q(L)
        if L == 0:
            p.waitvm("wo")
            barrier()
            unstage_wo(R1, "v", vWOB)
        stamp("qdone%d" % L)
        load_pq(L)
        reduce_state(L)
        stamp("stpub%d" % L)
        attn_out(L)
        if L == 0:
            stats_hop()
    XP = S0 + 8
    for e in range(8):
        p("v_cvt_pk_bf16_f32 %s, %s, %s" % (vr(XP + e), vr(vX + 2 * e), vr(vX + 2 * e + 1)))
    p("buffer_store_dwordx4 %s, %s, %s, 0 offen" % (vr(XP, 4), vr(vXrow), sr(sOUT, 4)))
    p("buffer_store_dwordx4 %s, %s, %s, 0 offen offset:16" % (vr(XP + 4, 4), vr(vXrow), sr(sOUT, 4)))
    skip = p.newlabel("epoch")
    p("s_or_b32 %s, s2, %s" % (sr(sT0), sr(sWV)))
    p("s_cmp_lg_u32 %s, 0" % sr(sT0))
    p("s_cbranch_scc1 %s" % skip)
    p("s_mov_b32 %s, %d" % (sr(sT0), EPOCH))
    flag_store(sT0, local=False)
    p.label(skip)
    if PROFILE:
        p.waitvm()
        stamp("end")
        p("v_writelane_b32 %s, %s, 63" % (vr(vPROF), sr(sERR)))
        p("v_writelane_b32 %s, %s, 62" % (vr(vPROF), sr(sMODE)))
        p("v_writelane_b32 %s, %s, 61" % (vr(vPROF), sr(sXCC)))
        p("s_lshl_b32 %s, s2, 10" % sr(sT0))
        sadd(sT0, sT0, PROF)
        p("v_lshlrev_b32 %s, 2, v0" % vr(S0))
        p("buffer_store_dword %s, %s, %s, %s offen" % (vr(vPROF), vr(S0), sr(sWS, 4), sr(sT0)))
    if SPIN:
        if SPIN == "end":
            p.waitvm()
            stamp("end")
        if "--wbl2" in sys.argv:
            p.waitvm()
            p("buffer_wbl2 sc1")
            p("s_waitcnt vmcnt(0)")
        if SPINWG:
            p("s_cmp_lg_u32 s2, %d" % SPINWG[0])
            p("s_cbranch_scc1 L_exit")
        if SKEW:
            p("s_mov_b32 %s, 0x%x" % (sr(sT0), PROF + 4 * SKEW[0]))
            p("buffer_load_dword %s, off, %s, %s sc1" % (vr(S0), sr(sWS, 4), sr(sT0)))
            p("v_readfirstlane_b32 s74, %s" % vr(S0))
        p.label("L_spin")
        p("s_memrealtime s[76:77]")
        p("s_waitcnt lgkmcnt(0)")
        p("s_sub_u32 s76, s76, s74")
        p("s_cmp_lt_u32 s76, 8000")
        p("s_cbranch_scc1 L_spin")
    p("s_endpgm")
    i = 0
    while i < len(tail):
        tail[i]()
        i += 1
    p.label("L_exit")
    p("s_endpgm")


main()

HEAD = open("cdna_kernels/%s.s.ref" % NAME).read().split("; Override launch geometry")[0]
body = p.text()
src = (
    HEAD
    + "; One persistent launch, one workgroup per CU; generated by a script (phases hand data over through d_ws).\n"
    + "; @launch grid=(256,1,1) block=(256,1,1) lds=%d\n" % LDS_BYTES
    + """.amdgcn_target "amdgcn-amd-amdhsa--gfx950"
.text
.globl {n}_kernel
.p2align 8
.type {n}_kernel,@function
{n}_kernel:
""".format(n=NAME)
    + body
    + """.section .rodata,"a"
.p2align 6
.amdhsa_kernel {n}_kernel
  .amdhsa_next_free_vgpr 512
  .amdhsa_next_free_sgpr 102
  .amdhsa_accum_offset 256
  .amdhsa_group_segment_fixed_size 0
  .amdhsa_kernarg_size 96
  .amdhsa_user_sgpr_count 2
  .amdhsa_user_sgpr_kernarg_segment_ptr 1
  .amdhsa_system_sgpr_workgroup_id_x 1
  .amdhsa_float_denorm_mode_32 3
.end_amdhsa_kernel
""".format(n=NAME)
)
LIST = [a.split("=")[1] for a in sys.argv if a.startswith("--list=")]
if LIST:
    main_l = "; @launch kernel=%s_kernel grid=(256,1,1) block=(256,1,1) lds=%d\n" % (NAME, LDS_BYTES)
    triv = "; @launch kernel=triv_kernel grid=(256,1,1) block=(64,1,1) lds=0\n"
    lines = "".join(main_l if c == "m" else triv for c in LIST[0])
    src = src.replace("; @launch grid=(256,1,1) block=(256,1,1) lds=%d\n" % LDS_BYTES, lines)
    src = src.replace(""".section .rodata,"a"
""", """.globl triv_kernel
.p2align 8
.type triv_kernel,@function
triv_kernel:
    s_endpgm
.section .rodata,"a"
.p2align 6
.amdhsa_kernel triv_kernel
  .amdhsa_next_free_vgpr 8
  .amdhsa_next_free_sgpr 16
  .amdhsa_accum_offset 8
  .amdhsa_group_segment_fixed_size 0
  .amdhsa_kernarg_size 96
  .amdhsa_user_sgpr_count 2
  .amdhsa_user_sgpr_kernarg_segment_ptr 1
  .amdhsa_system_sgpr_workgroup_id_x 1
.end_amdhsa_kernel
""")
open(OUT, "w").write(src)
if PROFILE:
    open(OUT + ".stamps", "w").write("\n".join(stamps))
print("wrote", OUT, "instructions:", sum(1 for l in body.split("\n") if l.startswith("    ") and not l.strip().startswith(";")))
```

```python
import re

TRANS = ("v_exp_f32", "v_log_f32", "v_rcp_f32", "v_rsq_f32", "v_sqrt_f32", "v_sin_f32", "v_cos_f32")
RMW_VALU = ("v_fmac_f32", "v_dot2c_f32_bf16", "v_writelane_b32")
_reg_re = re.compile(r"^(-|abs\()?([vas])(\d+)\)?$")
_rng_re = re.compile(r"^(-|abs\()?([vas])\[(\d+):(\d+)\]\)?$")


def regs_of(tok):
    tok = tok.strip()
    m = _reg_re.match(tok)
    if m:
        return {(m.group(2), int(m.group(3)))}
    m = _rng_re.match(tok)
    if m:
        return {(m.group(2), i) for i in range(int(m.group(3)), int(m.group(4)) + 1)}
    if tok == "vcc":
        return {("s", "vcc")}
    if tok == "exec":
        return {("s", "exec")}
    if tok == "m0":
        return {("s", "m0")}
    return set()


def base_op(op):
    for suf in ("_e32", "_e64", "_dpp", "_sdwa"):
        if op.endswith(suf):
            return op[: -len(suf)]
    return op


class Ins:
    def __init__(self, text, tag=None):
        self.text = text
        self.tag = tag
        self.label = None
        self.pseudo = None
        self.defs = set()
        self.uses = set()
        self.kind = "other"
        self.op = ""
        self.mf = None
        self.target = None
        self.store_data = set()
        self.size = None
        if text.endswith(":"):
            self.label = text[:-1]
            self.kind = "label"
            return
        if text.startswith("@"):
            self.pseudo = text[1:].split()
            self.kind = "pseudo"
            return
        if text.startswith(";") or text.startswith("."):
            self.kind = "comment"
            return
        self.parse()

    def parse(self):
        t = self.text.split(";")[0].strip()
        sp = t.split(None, 1)
        self.op = op = sp[0]
        rest = sp[1] if len(sp) > 1 else ""
        parts = [p.strip() for p in re.split(r",(?![^\[(]*[\])])", rest)] if rest else []
        mods = ""
        if parts:
            last = parts[-1].split(None, 1)
            parts[-1] = last[0]
            mods = last[1] if len(last) > 1 else ""
        self.mods = mods
        self.parts = parts
        R = [regs_of(p) for p in parts]
        b = base_op(op)
        self.b = b
        U = lambda idx: set().union(*[R[i] for i in idx]) if idx else set()
        n = len(parts)
        if op.startswith("v_mfma"):
            self.kind = "mfma"
            self.defs = R[0]
            self.uses = U(range(1, n))
            passes = 8 if "32x32x16" in op or "32x32x8" in op else 4
            self.mf = dict(D=R[0], A=R[1], B=R[2], C=R[3], passes=passes)
        elif op.startswith("v_"):
            self.kind = "valu"
            if b.startswith("v_cmp"):
                self.defs = R[0]
                self.uses = U(range(1, n))
            elif b in ("v_add_co_u32", "v_sub_co_u32", "v_addc_co_u32"):
                self.defs = R[0] | R[1]
                self.uses = U(range(2, n))
            elif b.startswith("v_permlane") and b.endswith("swap_b32"):
                self.defs = R[0] | R[1]
                self.uses = R[0] | R[1]
            elif b == "v_nop":
                pass
            else:
                self.defs = R[0]
                self.uses = U(range(1, n))
                if b in RMW_VALU or "_dpp" in op or "row_" in mods or "quad_perm" in mods:
                    self.uses |= R[0]
            self.is_dpp = "_dpp" in op or "row_" in mods or "quad_perm" in mods
            self.is_trans = b in TRANS
            self.is_dot = b.startswith("v_dot")
            self.is_opsel = "_sdwa" in op and "dst_sel:DWORD" not in mods
        elif op.startswith("ds_"):
            self.kind = "ds"
            if op.startswith("ds_read") or op.startswith("ds_bpermute") or op.startswith("ds_swizzle"):
                self.defs = R[0]
                self.uses = U(range(1, n))
            else:
                self.uses = U(range(n))
        elif op.startswith("buffer_") or op.startswith("global_"):
            self.kind = "vmem"
            self.is_dma = bool(re.search(r"\blds\b", mods)) or "load_lds" in op
            if op in ("buffer_wbl2", "buffer_inv"):
                pass
            elif self.is_dma:
                self.uses = U(range(n)) | {("s", "m0")}
            elif "load" in op:
                self.defs = R[0]
                self.uses = U(range(1, n))
            elif "atomic" in op:
                self.uses = U(range(n))
                if "sc0" in mods:
                    self.defs = R[0]
            else:
                self.uses = U(range(n))
                if op.endswith("x3") or op.endswith("x4"):
                    self.store_data = R[0] if op.startswith("buffer_") else R[1]
        elif op.startswith("s_load") or op in ("s_memtime", "s_memrealtime"):
            self.kind = "smem"
            self.defs = R[0]
            self.uses = U(range(1, n))
        elif op == "s_waitcnt":
            self.kind = "wait"
            s = rest
            m = re.search(r"vmcnt\((\d+)\)", s)
            self.vm = int(m.group(1)) if m else None
            m = re.search(r"lgkmcnt\((\d+)\)", s)
            self.lg = int(m.group(1)) if m else None
        elif op == "s_nop":
            self.kind = "nop"
            self.n = int(parts[0]) + 1
        elif op in ("s_branch",) or op.startswith("s_cbranch"):
            self.kind = "branch"
            self.target = parts[0]
            if "vcc" in op:
                self.uses = {("s", "vcc")}
        elif op == "s_endpgm":
            self.kind = "end"
        elif op.startswith("s_"):
            self.kind = "salu"
            if op.startswith("s_cmp") or op.startswith("s_bitcmp") or op in ("s_barrier", "s_setprio", "s_sleep"):
                self.uses = U(range(n))
            else:
                self.defs = R[0]
                self.uses = U(range(1, n))
                if "saveexec" in op:
                    self.defs |= {("s", "exec")}
        else:
            raise ValueError("unknown instruction: " + self.text)


class State:
    def __init__(self):
        self.vm = {}
        self.lg = {}
        self.smem = False
        self.hz = {}

    def copy(self):
        s = State()
        s.vm = dict(self.vm)
        s.lg = dict(self.lg)
        s.smem = self.smem
        s.hz = dict(self.hz)
        return s

    def merge(self, o):
        changed = False
        for mine, other in ((self.vm, o.vm), (self.lg, o.lg)):
            for k, a in other.items():
                if k not in mine or a < mine[k]:
                    mine[k] = a
                    changed = True
        if o.smem and not self.smem:
            self.smem = True
            changed = True
        for k, age in o.hz.items():
            if k not in self.hz or age < self.hz[k]:
                self.hz[k] = age
                changed = True
        return changed


MAXHZ = 24


def need_states(st, ins):
    need = 0
    vdefs = ins.defs
    vuses = ins.uses
    for (typ, regs, extra), age in st.hz.items():
        req = 0
        if typ == "valu_v":
            if ins.kind == "mfma" and regs & vuses:
                req = 2
            elif ins.kind == "valu":
                if (ins.b.startswith("v_permlane") or ins.is_dpp) and regs & vuses:
                    req = 2
                elif ins.b in ("v_readfirstlane_b32", "v_readlane_b32") and regs & vuses:
                    req = 1
        elif typ == "trans":
            if ins.kind in ("valu",) and not ins.is_trans and regs & vuses:
                req = 1
        elif typ == "opsel":
            if ins.kind == "valu" and regs & (vuses | vdefs):
                req = 1
        elif typ == "dot":
            if ins.kind in ("valu", "mfma", "vmem", "ds") and regs & (vuses | vdefs):
                req = 3
                if ins.kind == "valu" and ins.b == extra:
                    srcab = set()
                    for p in ins.parts[1:3]:
                        srcab |= regs_of(p)
                    req = 3 if regs & srcab else 0
        elif typ == "valu_s":
            if ins.kind == "vmem" and regs & vuses:
                req = 5
            elif ins.kind == "valu" and regs & vuses:
                req = 4 if ins.b in ("v_readlane_b32", "v_writelane_b32") else 2
            elif ins.kind == "mfma" and ("s", "exec") in regs:
                req = 4
            elif ins.kind in ("salu", "branch", "smem") and regs & vuses:
                req = 1
        elif typ == "m0":
            if ins.kind == "vmem" and ins.is_dma:
                req = 1
        elif typ == "store":
            if regs & vdefs:
                req = 2
        elif typ == "mfma_d":
            p = extra
            far = {2: 5, 4: 8, 8: 12, 16: 20}[p]
            if ins.kind == "mfma":
                if regs & (ins.mf["A"] | ins.mf["B"]):
                    req = far
                elif regs & ins.mf["C"]:
                    if regs == ins.mf["C"] and ins.mf["passes"] == p:
                        req = 0
                    else:
                        req = far - 2
                elif regs & ins.mf["D"]:
                    req = far - 2
            elif ins.kind in ("valu", "vmem", "ds") and regs & (vuses | vdefs):
                req = far
        elif typ == "mfma_c":
            p = extra
            if ins.kind == "valu" and regs & vdefs:
                req = {2: 1, 4: 3, 8: 7, 16: 15}[p]
        need = max(need, req - age)
    return need


def advance(st, n):
    st.hz = {k: a + n for k, a in st.hz.items() if a + n < MAXHZ}


def record(st, ins):
    advance(st, ins.n if ins.kind == "nop" else 1)
    k = ins.kind
    if k == "valu":
        vd = frozenset(r for r in ins.defs if r[0] in "va")
        sd = frozenset(r for r in ins.defs if r[0] == "s")
        if vd:
            st.hz[("valu_v", vd, None)] = 0
            if ins.is_trans:
                st.hz[("trans", vd, None)] = 0
            if ins.is_dot:
                st.hz[("dot", vd, ins.b)] = 0
            if ins.is_opsel:
                st.hz[("opsel", vd, None)] = 0
        if sd:
            st.hz[("valu_s", sd, None)] = 0
    elif k == "mfma":
        st.hz[("mfma_d", frozenset(ins.mf["D"]), ins.mf["passes"])] = 0
        if ins.mf["C"]:
            st.hz[("mfma_c", frozenset(ins.mf["C"]), ins.mf["passes"])] = 0
    elif k == "salu":
        if ("s", "m0") in ins.defs:
            st.hz[("m0", frozenset({("s", "m0")}), None)] = 0
    elif k == "vmem":
        if ins.store_data:
            st.hz[("store", frozenset(ins.store_data), None)] = 0
    if k == "vmem":
        st.vm = {key: a + 1 for key, a in st.vm.items()}
        for r in ins.defs:
            st.vm[r] = 0
        if ins.tag:
            st.vm[("tag", ins.tag)] = 0
        st.vm[("any", 0)] = 0
    elif k == "ds":
        st.lg = {key: a + 1 for key, a in st.lg.items()}
        for r in ins.defs:
            st.lg[r] = 0
        if ins.tag:
            st.lg[("tag", ins.tag)] = 0
        st.lg[("any", 0)] = 0
    elif k == "smem":
        st.smem = True
        st.lg = {key: a + 1 for key, a in st.lg.items()}
        for r in ins.defs:
            st.lg[r] = 0
    elif k == "wait":
        apply_wait(st, ins.vm, ins.lg)


def apply_wait(st, vm, lg):
    if vm is not None:
        st.vm = {k: a for k, a in st.vm.items() if a < vm}
    if lg is not None:
        if lg == 0:
            st.lg = {}
            st.smem = False
        elif not st.smem:
            st.lg = {k: a for k, a in st.lg.items() if a < lg}


def needed_wait(st, ins):
    vm = lg = None
    if ins.kind == "pseudo":
        what, tag = ins.pseudo[0], ins.pseudo[1] if len(ins.pseudo) > 1 else None
        if what == "waitvm":
            a = st.vm.get(("tag", tag)) if tag else st.vm.get(("any", 0))
            if a is not None:
                vm = a
        elif what == "waitlg":
            a = st.lg.get(("tag", tag)) if tag else (0 if st.lg else None)
            if a is not None:
                lg = a
        elif what == "waitall":
            if st.vm:
                vm = 0
            if st.lg:
                lg = 0
    else:
        for r in ins.uses:
            if r in st.vm:
                vm = st.vm[r] if vm is None else min(vm, st.vm[r])
            if r in st.lg:
                lg = st.lg[r] if lg is None else min(lg, st.lg[r])
        for r in ins.defs:
            if r in st.vm and ins.kind != "vmem":
                vm = st.vm[r] if vm is None else min(vm, st.vm[r])
            if r in st.lg and not (ins.kind == "ds" and not st.smem):
                lg = st.lg[r] if lg is None else min(lg, st.lg[r])
    if lg is not None and st.smem:
        lg = 0
    if vm is not None:
        vm = min(vm, 63)
    if lg is not None:
        lg = min(lg, 15)
    return vm, lg


class Prog:
    def __init__(self):
        self.ins = []
        self.uid = 0

    def __call__(self, text, tag=None):
        for line in text.split("\n"):
            line = line.strip()
            if line:
                self.ins.append(Ins(line, tag))

    def cap(self, fn, *a):
        saved, self.ins = self.ins, []
        fn(*a)
        got, self.ins = self.ins, saved
        return got

    def put(self, lst):
        self.ins.extend(lst)

    def weave(self, primary, filler, per_gap=2, start=0):
        filler = list(filler)
        n = 0
        credit = 0.0
        for ins in primary:
            self.ins.append(ins)
            if ins.kind == "mfma":
                n += 1
                if n > start:
                    credit += per_gap
                    while filler:
                        f = filler[0]
                        grp = f if isinstance(f, list) else [f]
                        cost = sum(1 for g in grp if g.kind not in ("pseudo", "comment", "label"))
                        if cost > credit and not (credit >= per_gap and cost > per_gap and credit > 0):
                            break
                        self.ins.extend(grp)
                        credit -= cost
                        filler.pop(0)
                    credit = min(credit, per_gap)
            elif ins.kind not in ("pseudo", "comment", "label"):
                credit -= 1
        out = []
        for f in filler:
            out.extend(f if isinstance(f, list) else [f])
        return out

    def label(self, name):
        self.ins.append(Ins(name + ":"))

    def newlabel(self, stem):
        self.uid += 1
        return "L_%s_%d" % (stem, self.uid)

    def comment(self, text):
        self.ins.append(Ins("; " + text))

    def waitvm(self, tag=None):
        self.ins.append(Ins("@waitvm " + (tag or "")))

    def waitlg(self, tag=None):
        self.ins.append(Ins("@waitlg " + (tag or "")))

    def waitall(self):
        self.ins.append(Ins("@waitall"))

    def resolve(self):
        instates = {}
        for _ in range(50):
            out = []
            changed = False
            st = State()
            live = True
            for ins in self.ins:
                if ins.kind == "label":
                    inc = instates.get(ins.label)
                    if live:
                        if inc is not None:
                            st.merge(inc)
                    else:
                        st = inc.copy() if inc is not None else State()
                    live = True
                    out.append(ins)
                    continue
                if ins.kind == "comment":
                    out.append(ins)
                    continue
                vm, lg = needed_wait(st, ins)
                if vm is not None or lg is not None:
                    txt = "s_waitcnt" + ("" if vm is None else " vmcnt(%d)" % vm) + ("" if lg is None else " lgkmcnt(%d)" % lg)
                    w = Ins(txt)
                    out.append(w)
                    record(st, w)
                if ins.kind == "pseudo":
                    continue
                n = need_states(st, ins)
                if n > 0:
                    w = Ins("s_nop %d" % (n - 1))
                    out.append(w)
                    record(st, w)
                out.append(ins)
                record(st, ins)
                if ins.kind == "branch":
                    t = instates.get(ins.target)
                    if t is None:
                        instates[ins.target] = st.copy()
                        changed = True
                    elif t.merge(st):
                        changed = True
                    if ins.op == "s_branch":
                        live = False
                elif ins.kind == "end":
                    live = False
            if not changed:
                return out
        raise RuntimeError("no fixpoint")

    def text(self):
        lines = []
        for i in self.resolve():
            lines.append(i.text if i.kind in ("label",) else "    " + i.text)
        return "\n".join(lines) + "\n"


def vr(base, n=1, f="v"):
    return "%s%d" % (f, base) if n == 1 else "%s[%d:%d]" % (f, base, base + n - 1)


def ar(base, n=1):
    return vr(base, n, "a")


def sr(base, n=1):
    return vr(base, n, "s")
```

```python
import sys
from asmlib import Prog, vr, ar, sr

NAME = "interleave_layers__ssm_conv_h3__linear_attn_block__prompt"
PROFILE = "--prof" in sys.argv
FORCE_SLOW = "--slow" in sys.argv
SPIN = [a.split("=")[1] for a in sys.argv if a.startswith("--spin=")]
SPIN = SPIN[0] if SPIN else None
SKEW = [int(a.split("=")[1]) for a in sys.argv if a.startswith("--skew=")]
SPINWG = [int(a.split("=")[1]) for a in sys.argv if a.startswith("--spinwg=")]
OUT = [a for a in sys.argv[1:] if not a.startswith("--")]
OUT = OUT[0] if OUT else "cdna_kernels/%s.s" % NAME

EPOCH = 0
HELLO = 0x1000
FLAGB = 0x2000
KVP = 0x80000
ZP = 0x180000
YB = 0x200000
UTB = 0x400000
CLS = 0x600000
C_UTA = 0
C_X = 0x40000
C_PQ = 0xC0000
C_STATE = 0x140000
C_ST = 0x150000
C_FLAGA = 0x170000
C_FLAGX = 0x171000
C_FLAGPQ = 0x172000
PROF = 0x1800000
WS_BYTES = 0x2000000


def st_off(n):
    return C_ST + ((n + 3) % 4) * 0x8000


R1, R2, R3 = 0, 65536, 131072
HB = R2
HCOPY, HCH = 4160, 16640
UB = R3
UCH = 4608
TB = R3 + 9216
RS = R3 + 9728
EX = R1
AB = R2
OB = R2
LDS_BYTES = 163840

sQ, sK, sV, sH, sW, sWO, sWS, sOUT, sSH = 4, 8, 12, 16, 20, 24, 28, 32, 36
sD = 40
sTAG = 42
sX, sJ, sWV, sXCC, sMODE, sLIM, sCNT = 44, 45, 46, 47, 48, 49, 50
sCLS = 51
sT0, sT1, sT2, sT3 = 52, 53, 54, 55
sP = 56
sC4096, sMASK = 58, 59
sDV = 60
sG32L, sKS, sRG, sM = 61, 62, 63, 64
sEPS6, sLOG2E, sEPS5, sINV512 = 65, 66, 67, 68
sTS = 70
sERR = 72
sUSRC = 73

vL16, vL8, vXrow, vYa, vSTw, vSTr, vXw, vPQw, vSTATEw = 1, 2, 3, 4, 5, 6, 7, 8, 9
vTrW, vTrO, vDmaW, vDmaO, vTB1, vTB2, vZr, vTBw = 10, 11, 12, 13, 14, 15, 16, 17
vTAG = 18
vSEL, vONE = 20, 24
vCSK, vCSV, vCSQ = 28, 29, 30
vX, vY = 34, 50
vPROF = 66
S0 = 68
vWOB = 192
aWK, aWV, aWQ, aWOA = 0, 64, 128, 192
aH = 128

p = Prog()
tail = []
stamps = []


def stamp(name):
    if SPIN == name:
        p("s_memrealtime s[74:75]")
        p("s_waitcnt lgkmcnt(0)")
    if not PROFILE:
        return
    n = len(stamps)
    stamps.append(name)
    p("s_memrealtime %s" % sr(sTS, 2))
    if "--clk" in sys.argv:
        p("s_memtime s[78:79]")
    p("s_waitcnt lgkmcnt(0)")
    p("v_writelane_b32 %s, %s, %d" % (vr(vPROF), sr(sTS), n))
    if "--clk" in sys.argv:
        p("v_writelane_b32 %s, s78, %d" % (vr(vPROF + 1), n))


def srd(base, nbytes):
    p("s_mov_b32 %s, %d" % (sr(base + 2), nbytes))
    p("s_mov_b32 %s, 0x20000" % sr(base + 3))


def sadd(dst, src, imm):
    p("s_add_u32 %s, %s, 0x%x" % (sr(dst), sr(src), imm))


def local_stores(lines, tag=None):
    slow, join = p.newlabel("slowst"), p.newlabel("joinst")
    p("s_cmp_eq_u32 %s, 0" % sr(sMODE))
    p("s_cbranch_scc1 %s" % slow)
    for l in lines:
        p(l, tag)
    p.label(join)

    def blk():
        p.label(slow)
        for l in lines:
            p(l + " sc1", tag)
        p("s_branch %s" % join)

    tail.append(blk)


def poll(issue, check, code):
    top, done = p.newlabel("poll"), p.newlabel("polldone")
    p("s_mov_b32 %s, %s" % (sr(sCNT), sr(sLIM)))
    p.label(top)
    issue()
    check()
    p("s_cbranch_vccz %s" % done)
    p("s_sub_u32 %s, %s, 1" % (sr(sCNT), sr(sCNT)))
    p("s_cbranch_scc0 %s" % top)
    p("s_mov_b32 %s, 0" % sr(sLIM))
    p("s_or_b32 %s, %s, %d" % (sr(sERR), sr(sERR), 1 << code))
    p.label(done)


def check_sentinel(regs, tmp):
    regs = list(regs)
    if len(regs) == 1:
        p("v_cmp_eq_u32 vcc, -1, %s" % vr(regs[0]))
        return
    first = True
    i = 0
    while i < len(regs):
        if first:
            if len(regs) >= 3:
                p("v_max3_u32 %s, %s, %s, %s" % (vr(tmp), vr(regs[0]), vr(regs[1]), vr(regs[2])))
                i = 3
            else:
                p("v_max_u32 %s, %s, %s" % (vr(tmp), vr(regs[0]), vr(regs[1])))
                i = 2
            first = False
        elif i + 1 < len(regs):
            p("v_max3_u32 %s, %s, %s, %s" % (vr(tmp), vr(tmp), vr(regs[i]), vr(regs[i + 1])))
            i += 2
        else:
            p("v_max_u32 %s, %s, %s" % (vr(tmp), vr(tmp), vr(regs[i])))
            i += 1
    p("v_cmp_eq_u32 vcc, -1, %s" % vr(tmp))


def unpack(dst, src):
    p("v_lshlrev_b32 %s, 16, %s" % (vr(dst), vr(src)))
    p("v_and_b32 %s, %s, %s" % (vr(dst + 1), sr(sMASK), vr(src)))


def flag_store(soff_sgpr, local=True, tagreg=vTAG):
    p("s_mov_b64 exec, 1")
    line = "buffer_store_dwordx2 %s, off, %s, %s" % (vr(tagreg, 2), sr(sWS, 4), sr(soff_sgpr))
    if local:
        local_stores([line])
    else:
        p(line + " sc1")
    p("s_mov_b64 exec, -1")


def barrier():
    p.waitlg()
    p("s_barrier")


def stage_w(part, region, tag):
    p("s_lshl_b32 %s, %s, 14" % (sr(sT0), sr(sWV)))
    p("s_add_u32 m0, %s, %d" % (sr(sT0), region))
    p("s_mul_i32 %s, %s, %d" % (sr(sT1), sr(sWV), 128 * 3072))
    p("s_lshl_b32 %s, %s, 7" % (sr(sT2), sr(sM)))
    p("s_add_u32 %s, %s, %s" % (sr(sT1), sr(sT1), sr(sT2)))
    sadd(sT1, sT1, part * 1024)
    for n in range(16):
        va = vDmaW if n % 2 == 0 else S0 + 122
        if n == 0:
            p("v_xor_b32 %s, 64, %s" % (vr(S0 + 122), vr(vDmaW)))
        p("buffer_load_dwordx4 %s, %s, %s offen lds" % (vr(va), sr(sW, 4), sr(sT1)), tag)
        if n < 15:
            p("s_add_u32 m0, m0, 1024")
            sadd(sT1, sT1, 8 * 3072)


def unstage_w(region, a0):
    for ks in range(16):
        for h in range(2):
            off = region + ks * 4096 + h * 512
            p("ds_read_b64_tr_b16 %s, %s offset:%d" % (ar(a0 + 4 * ks + 2 * h, 2), vr(vTrW if off < 65536 else S0 + 123), off & 0xFFFF))


def unstage_prep(region, reg):
    if region >= 65536:
        p("v_add_u32 %s, 0x10000, %s" % (vr(S0 + 123), vr(reg)))


def stage_wo(half, region, tag):
    p("s_lshl_b32 %s, %s, 14" % (sr(sT0), sr(sWV)))
    p("s_add_u32 m0, %s, %d" % (sr(sT0), region))
    p("s_lshl_b32 %s, %s, 16" % (sr(sT1), sr(sWV)))
    p("s_and_b32 %s, %s, 3" % (sr(sT2), sr(sJ)))
    p("s_lshl_b32 %s, %s, 8" % (sr(sT2), sr(sT2)))
    p("s_add_u32 %s, %s, %s" % (sr(sT1), sr(sT1), sr(sT2)))
    sadd(sT1, sT1, half * 256 * 1024)
    for n in range(16):
        p("buffer_load_dwordx4 %s, %s, %s offen lds" % (vr(vDmaO), sr(sWO, 4), sr(sT1)), tag)
        if n < 15:
            p("s_add_u32 m0, m0, 1024")
            sadd(sT1, sT1, 4096)


def unstage_wo(region, f, r0):
    assert region == 0
    for hd in range(16):
        for g in range(2):
            off = region + hd * 4096 + g * 2048
            p("ds_read_b64_tr_b16 %s, %s offset:%d" % (vr(r0 + 4 * hd + 2 * g, 2, f), vr(vTrO), off))


def stats_compute(a, b):
    t = b
    p("v_pk_mul_f32 %s, %s, %s" % (vr(t + 2, 2), vr(vX, 2), vr(vX, 2)))
    p("v_pk_add_f32 %s, %s, %s" % (vr(t, 2), vr(vX, 2), vr(vX + 2, 2)))
    for e in range(2, 16, 2):
        p("v_pk_fma_f32 %s, %s, %s, %s" % (vr(t + 2, 2), vr(vX + e, 2), vr(vX + e, 2), vr(t + 2, 2)))
        if e >= 4:
            p("v_pk_add_f32 %s, %s, %s" % (vr(t, 2), vr(t, 2), vr(vX + e, 2)))
    p("v_add_f32 %s, %s, %s" % (vr(t), vr(t), vr(t + 1)))
    p("v_add_f32 %s, %s, %s" % (vr(t + 2), vr(t + 2), vr(t + 3)))
    p("v_permlane32_swap_b32 %s, %s" % (vr(t), vr(t + 2)))
    p("v_add_f32 %s, %s, %s" % (vr(a), vr(t), vr(t + 2)))
    p("v_min_u32 %s, -2, %s" % (vr(a), vr(a)))


def stats_issue(buf, soff):
    for u in range(4):
        p("buffer_load_dwordx4 %s, %s, %s, %s offen offset:%d sc1" % (vr(buf + 4 * u, 4), vr(vSTr), sr(sWS, 4), sr(soff), 512 * u))


def stats_finish(buf, vR, vNM):
    for u in (0, 8):
        p("v_pk_add_f32 %s, %s, %s" % (vr(buf + u, 2), vr(buf + u, 2), vr(buf + u + 2, 2)))
        p("v_pk_add_f32 %s, %s, %s" % (vr(buf + u + 4, 2), vr(buf + u + 4, 2), vr(buf + u + 6, 2)))
    p("v_pk_add_f32 %s, %s, %s" % (vr(buf, 2), vr(buf, 2), vr(buf + 4, 2)))
    p("v_pk_add_f32 %s, %s, %s" % (vr(buf + 8, 2), vr(buf + 8, 2), vr(buf + 12, 2)))
    p("v_pk_add_f32 %s, %s, %s" % (vr(buf, 2), vr(buf, 2), vr(buf + 8, 2)))
    p("v_permlane32_swap_b32 %s, %s" % (vr(buf), vr(buf + 1)))
    p("v_add_f32 %s, %s, %s" % (vr(buf), vr(buf), vr(buf + 1)))
    p("v_mul_f32 %s, %s, %s" % (vr(buf), sr(sINV512), vr(buf)))
    p("v_mov_b32 %s, %s" % (vr(buf + 1), vr(buf)))
    p("v_permlane32_swap_b32 %s, %s" % (vr(buf), vr(buf + 1)))
    p("v_fma_f32 %s, -%s, %s, %s" % (vr(buf + 1), vr(buf), vr(buf), vr(buf + 1)))
    p("v_max_f32 %s, 0, %s" % (vr(buf + 1), vr(buf + 1)))
    p("v_add_f32 %s, %s, %s" % (vr(buf + 1), sr(sEPS5), vr(buf + 1)))
    p("v_rsq_f32 %s, %s" % (vr(vR), vr(buf + 1)))
    p("v_mul_f32 %s, -%s, %s" % (vr(vNM), vr(buf), vr(vR)))


def prologue():
    p("s_cmp_ge_u32 s2, 256")
    p("s_cbranch_scc1 L_exit")
    kern = NAME + "_kernel"
    if SPIN == "entry":
        p("s_memrealtime s[74:75]")
    for base, off in ((sK, 8), (sV, 16), (sWS, 88), (sSH, 24), (sH, 32), (sQ, 0), (sD, 40), (sW, 56), (sWO, 64), (sOUT, 72)):
        p("s_load_dwordx2 %s, s[0:1], %d" % (sr(base, 2), off))
    p("s_getpc_b64 %s" % sr(sP, 2))
    p("s_and_b32 %s, %s, 0xffffff00" % (sr(sP), sr(sP)))
    if "--nopf" not in sys.argv:
        p("s_lshr_b32 %s, s2, 3" % sr(sJ))
        p("s_lshl_b32 %s, %s, 10" % (sr(sT0), sr(sJ)))
        p("v_lshl_add_u32 %s, v0, 7, %s" % (vr(S0), sr(sT0)))
        p("v_min_u32 %s, L_exit-%s, %s" % (vr(S0), kern, vr(S0)))
        p("v_cmp_gt_u32 vcc, 8, v0")
        p("s_and_saveexec_b64 %s, vcc" % sr(sTS, 2))
        p("s_cbranch_execz L_nopf")
        p("global_load_dword %s, %s, %s" % (vr(S0 + 1), vr(S0), sr(sP, 2)))
        p.label("L_nopf")
        p("s_mov_b64 exec, -1")
    if PROFILE:
        p("v_mov_b32 %s, 0" % vr(vPROF))
        p("v_mov_b32 %s, 0" % vr(vPROF + 1))
    p("s_and_b32 %s, s2, 7" % sr(sX))
    p("s_lshr_b32 %s, s2, 3" % sr(sJ))
    p("v_lshrrev_b32 %s, 6, v0" % vr(S0 + 2))
    p("v_and_b32 %s, 63, v0" % vr(S0 + 3))
    p("v_readfirstlane_b32 %s, %s" % (sr(sWV), vr(S0 + 2)))
    srd(sK, 2097152)
    srd(sV, 2097152)
    srd(sWS, WS_BYTES)
    srd(sSH, 4096)
    srd(sH, 2097152)
    srd(sQ, 2097152)
    srd(sW, 1572864)
    srd(sWO, 524288)
    srd(sOUT, 2097152)
    p("s_mov_b32 %s, 4096" % sr(sC4096))
    p("s_mov_b32 %s, 0xffff0000" % sr(sMASK))
    p("s_getreg_b32 %s, hwreg(HW_REG_XCC_ID, 0, 4)" % sr(sXCC))
    p("s_lshl_b32 %s, %s, 21" % (sr(sCLS), sr(sX)))
    sadd(sCLS, sCLS, CLS)
    p("s_mov_b32 %s, 200000" % sr(sLIM))
    p("s_mov_b32 %s, 0" % sr(sERR))
    p("s_mov_b32 %s, 0x358637bd" % sr(sEPS6))
    p("s_mov_b32 %s, 0x3fb8aa3b" % sr(sLOG2E))
    p("s_mov_b32 %s, 0x3727c5ac" % sr(sEPS5))
    p("s_mov_b32 %s, 0x3b000000" % sr(sINV512))
    p("s_lshr_b32 %s, %s, 2" % (sr(sG32L), sr(sJ)))
    p("s_and_b32 %s, %s, 3" % (sr(sKS), sr(sJ)))
    p("s_lshl_b32 %s, %s, 2" % (sr(sKS), sr(sKS)))
    p("s_add_u32 %s, %s, %s" % (sr(sKS), sr(sKS), sr(sWV)))
    p("s_lshr_b32 %s, %s, 3" % (sr(sRG), sr(sJ)))
    p("s_and_b32 %s, %s, 7" % (sr(sM), sr(sJ)))


vLANE = S0 + 3
vKA, vKB, vUT, vT = S0 + 4, S0 + 5, S0 + 6, S0 + 7
KK = S0 + 8
VV = S0 + 20
SH = S0 + 28
HE = S0 + 32
X0 = S0 + 44
KF = S0 + 52
WF = S0 + 74
UF = S0 + 82
UP = S0 + 98
VF = S0 + 106
FF = S0 + 112
vHA, vHB, vCL = S0 + 116, S0 + 117, S0 + 118


NPB = [int(a.split("=")[1]) for a in sys.argv if a.startswith("--npb=")]
NPB = NPB[0] if NPB else 3


def p0_pair_chunk(vp, vc):
    nb = 5 - NPB
    p("v_and_b32 %s, %d, v0" % (vp, (1 << NPB) - 1))
    if nb:
        p("v_bfe_u32 %s, v0, 6, %d" % (vc, nb))
        p("v_lshl_add_u32 %s, %s, %d, %s" % (vp, vc, NPB, vp))
    p("v_bfe_u32 %s, v0, %d, %d" % (vc, NPB, 6 - NPB))
    if nb < 2:
        p("v_lshrrev_b32 %s, %d, v0" % (vr(VF), 6 + nb))
        p("v_lshl_add_u32 %s, %s, %d, %s" % (vc, vr(VF), 6 - NPB, vc))


def p0_issue():
    l = vr(vLANE)
    t = vr(vT)
    p("s_lshl_b32 %s, %s, 7" % (sr(sT0), sr(sX)))
    p("s_lshl_b32 %s, %s, 16" % (sr(sT1), sr(sJ)))
    p("s_add_u32 %s, %s, %s" % (sr(sT1), sr(sT1), sr(sT0)))
    p0_pair_chunk(t, vr(vKA))
    p("v_lshlrev_b32 %s, 13, %s" % (vr(vKA), vr(vKA)))
    p("v_lshl_add_u32 %s, %s, 2, %s" % (vr(vKB), t, vr(vKA)))
    p("v_add_u32 %s, %s, %s" % (vr(vKB), sr(sT1), vr(vKB)))
    p("v_add_u32 %s, 0xfffff400, %s" % (vr(vKA), vr(vKB)))
    p("v_lshlrev_b32 %s, 4, %s" % (vr(vUT), t))
    p("s_lshl_b32 %s, %s, 2" % (sr(sT2), sr(sT0)))
    p.waitlg()
    stamp("kernarg")
    p("s_load_dwordx2 %s, %s, %d" % (sr(sTAG, 2), sr(sWS, 2), EPOCH))
    for r in range(3):
        p("buffer_load_dword %s, %s, %s, 0 offen offset:%d" % (vr(KK + r), vr(vKA), sr(sK, 4), 1024 * r))
    for r in range(8):
        so = "0" if r < 4 else sr(sC4096)
        p("buffer_load_dword %s, %s, %s, %s offen offset:%d" % (vr(KK + 3 + r), vr(vKB), sr(sK, 4), so, 1024 * (r % 4)))
    p("buffer_load_dwordx4 %s, %s, %s, %s offen" % (vr(SH, 4), vr(vUT), sr(sSH, 4), sr(sT2)))
    for r in range(8):
        so = "0" if r < 4 else sr(sC4096)
        p("buffer_load_dword %s, %s, %s, %s offen offset:%d" % (vr(VV + r), vr(vKB), sr(sV, 4), so, 1024 * (r % 4)))
    p("s_lshl_b32 %s, %s, 5" % (sr(sT0), sr(sX)))
    p("s_add_u32 %s, %s, %s" % (sr(sT0), sr(sT0), sr(sJ)))
    p("s_lshl_b32 %s, %s, 2" % (sr(sT1), sr(sT0)))
    p("s_add_u32 %s, %s, %s" % (sr(sD), sr(sD), sr(sT1)))
    p("s_addc_u32 %s, %s, 0" % (sr(sD + 1), sr(sD + 1)))
    p("s_load_dword %s, %s, 0" % (sr(sDV), sr(sD, 2)))
    p("s_lshl_b32 %s, %s, 13" % (sr(sT0), sr(sT0)))
    p("v_lshlrev_b32 %s, 5, v0" % vr(vHA))
    p("v_add_u32 %s, %s, %s" % (vr(vHA), sr(sT0), vr(vHA)))
    p("v_add_u32 %s, -8, %s" % (vr(vHB), vr(vHA)))
    p("buffer_load_dwordx2 %s, %s, %s, 0 offen" % (vr(HE, 2), vr(vHB), sr(sH, 4)))
    p("buffer_load_dwordx4 %s, %s, %s, 0 offen" % (vr(HE + 2, 4), vr(vHA), sr(sH, 4)))
    p("buffer_load_dwordx4 %s, %s, %s, 0 offen offset:16" % (vr(HE + 6, 4), vr(vHA), sr(sH, 4)))
    p("s_lshl_b32 %s, %s, 18" % (sr(sT0), sr(sX)))
    p("s_lshl_b32 %s, %s, 15" % (sr(sT1), sr(sG32L)))
    p("s_add_u32 %s, %s, %s" % (sr(sT0), sr(sT0), sr(sT1)))
    p("s_lshl_b32 %s, %s, 6" % (sr(sT1), sr(sKS)))
    p("s_add_u32 %s, %s, %s" % (sr(sT0), sr(sT0), sr(sT1)))
    p("v_and_b32 %s, 31, %s" % (t, l))
    p("v_lshlrev_b32 %s, 10, %s" % (vr(vXrow), t))
    p("v_and_b32 %s, 32, %s" % (t, l))
    p("v_add3_u32 %s, %s, %s, %s" % (vr(vXrow), vr(vXrow), t, sr(sT0)))
    p("buffer_load_dwordx4 %s, %s, %s, 0 offen" % (vr(X0, 4), vr(vXrow), sr(sQ, 4)))
    p("buffer_load_dwordx4 %s, %s, %s, 0 offen offset:16" % (vr(X0 + 4, 4), vr(vXrow), sr(sQ, 4)))


def clears():
    for r in range(4):
        p("v_mov_b32 %s, -1" % vr(FF + r))
    p("v_lshlrev_b32 %s, 4, v0" % vr(vCL))
    st = "buffer_store_dwordx4 %s, %s, %s, %%s offen sc1" % (vr(FF, 4), vr(vCL), sr(sWS, 4))
    p("s_lshl_b32 %s, %s, 5" % (sr(sT0), sr(sX)))
    p("s_add_u32 %s, %s, %s" % (sr(sT0), sr(sT0), sr(sJ)))
    p("s_lshl_b32 %s, %s, 13" % (sr(sT0), sr(sT0)))
    sadd(sT0, sT0, YB)
    p(st % sr(sT0))
    sadd(sT0, sT0, 4096)
    p(st % sr(sT0))
    p("s_mul_i32 %s, s2, 4608" % sr(sT0))
    sadd(sT0, sT0, KVP)
    p(st % sr(sT0))
    p("s_mul_i32 %s, %s, 5120" % (sr(sT1), sr(sJ)))
    p("s_add_u32 %s, %s, %s" % (sr(sT1), sr(sT1), sr(sCLS)))
    sadd(sT1, sT1, C_STATE)
    p(st % sr(sT1))
    skip = p.newlabel("clr")
    p("s_cmp_lg_u32 %s, 0" % sr(sWV))
    p("s_cbranch_scc1 %s" % skip)
    sadd(sT1, sT1, 4096)
    p(st % sr(sT1))
    sadd(sT0, sT0, 4096)
    p("s_mov_b32 exec_hi, 0")
    p(st % sr(sT0))
    p("s_mov_b64 exec, -1")
    p.label(skip)


def addresses():
    l = vr(vLANE)
    t, t2, t3 = vr(vT), vr(VF), vr(VF + 1)
    p("v_lshlrev_b32 %s, 4, %s" % (vr(vL16), l))
    p("v_lshlrev_b32 %s, 3, %s" % (vr(vL8), l))
    p("s_lshl_b32 %s, %s, 17" % (sr(sT0), sr(sKS)))
    p("s_lshl_b32 %s, %s, 10" % (sr(sT1), sr(sX)))
    p("s_add_u32 %s, %s, %s" % (sr(sT0), sr(sT0), sr(sT1)))
    p("s_lshl_b32 %s, %s, 7" % (sr(sT1), sr(sG32L)))
    p("s_add_u32 %s, %s, %s" % (sr(sT0), sr(sT0), sr(sT1)))
    p("v_and_b32 %s, 31, %s" % (t, l))
    p("v_lshrrev_b32 %s, 5, %s" % (t2, l))
    p("v_lshlrev_b32 %s, 16, %s" % (t3, t2))
    p("v_lshl_add_u32 %s, %s, 2, %s" % (vr(vYa), t, t3))
    p("v_add_u32 %s, %s, %s" % (vr(vYa), sr(sT0), vr(vYa)))
    p("s_lshl_b32 %s, %s, 12" % (sr(sT0), sr(sG32L)))
    p("s_lshr_b32 %s, %s, 1" % (sr(sT1), sr(sKS)))
    p("s_lshl_b32 %s, %s, 9" % (sr(sT1), sr(sT1)))
    p("s_add_u32 %s, %s, %s" % (sr(sT0), sr(sT0), sr(sT1)))
    p("s_and_b32 %s, %s, 1" % (sr(sT1), sr(sKS)))
    p("s_lshl_b32 %s, %s, 3" % (sr(sT1), sr(sT1)))
    p("s_add_u32 %s, %s, %s" % (sr(sT0), sr(sT0), sr(sT1)))
    p("v_lshlrev_b32 %s, 2, %s" % (t3, t2))
    p("v_lshl_add_u32 %s, %s, 4, %s" % (vr(vSTw), t, t3))
    p("v_add_u32 %s, %s, %s" % (vr(vSTw), sr(sT0), vr(vSTw)))
    p("v_lshlrev_b32 %s, 11, %s" % (t3, t2))
    p("v_lshl_add_u32 %s, %s, 4, %s" % (vr(vSTr), t, t3))
    p("s_and_b32 %s, %s, 1" % (sr(sT0), sr(sWV)))
    p("s_lshl_b32 %s, %s, 7" % (sr(sT0), sr(sT0)))
    sadd(sT0, sT0, TB)
    p("v_lshlrev_b32 %s, 8, %s" % (t3, t2))
    p("v_lshl_add_u32 %s, %s, 2, %s" % (vr(vTBw), t, t3))
    p("v_add_u32 %s, %s, %s" % (vr(vTBw), sr(sT0), vr(vTBw)))
    p("s_lshl_b32 %s, %s, 15" % (sr(sT0), sr(sG32L)))
    p("s_lshl_b32 %s, %s, 10" % (sr(sT1), sr(sKS)))
    p("s_add_u32 %s, %s, %s" % (sr(sT0), sr(sT0), sr(sT1)))
    p("v_lshrrev_b32 %s, 4, %s" % (t3, t))
    p("v_lshlrev_b32 %s, 14, %s" % (vr(vXw), t3))
    p("v_lshl_add_u32 %s, %s, 9, %s" % (vr(vXw), t2, vr(vXw)))
    p("v_and_b32 %s, 15, %s" % (t, l))
    p("v_lshl_add_u32 %s, %s, 4, %s" % (vr(vXw), t, vr(vXw)))
    p("v_add_u32 %s, %s, %s" % (vr(vXw), sr(sT0), vr(vXw)))
    p("v_lshrrev_b32 %s, 4, %s" % (t2, l))
    p("v_lshrrev_b32 %s, 1, %s" % (t3, t2))
    p("v_lshlrev_b32 %s, 9, %s" % (vr(vSTATEw), t3))
    p("v_lshl_add_u32 %s, %s, 4, %s" % (vr(vSTATEw), t, vr(vSTATEw)))
    p("v_and_b32 %s, 1, %s" % (t3, t2))
    p("v_lshl_add_u32 %s, %s, 3, %s" % (vr(vSTATEw), t3, vr(vSTATEw)))
    p("s_lshl_b32 %s, %s, 16" % (sr(sT0), sr(sRG)))
    p("s_lshl_b32 %s, %s, 2" % (sr(sT1), sr(sM)))
    p("s_add_u32 %s, %s, %s" % (sr(sT1), sr(sT1), sr(sWV)))
    p("s_lshl_b32 %s, %s, 10" % (sr(sT1), sr(sT1)))
    p("s_add_u32 %s, %s, %s" % (sr(sT0), sr(sT0), sr(sT1)))
    p("v_add_u32 %s, %s, %s" % (vr(vPQw), sr(sT0), vr(vSTATEw)))
    p("v_lshlrev_b32 %s, 4, %s" % (vr(vTB1), t2))
    p("v_add_u32 %s, 0x%x, %s" % (vr(vTB1), TB, vr(vTB1)))
    p("v_lshlrev_b32 %s, 2, %s" % (vr(vTB2), t))
    p("v_add_u32 %s, 0x%x, %s" % (vr(vTB2), TB, vr(vTB2)))
    p("v_lshlrev_b32 %s, 4, %s" % (t3, t2))
    p("v_lshl_add_u32 %s, %s, 6, %s" % (vr(vZr), t, t3))
    a, b = vr(VF + 2), vr(VF + 3)
    p("v_and_b32 %s, 1, %s" % (a, t))
    p("v_lshlrev_b32 %s, 4, %s" % (a, a))
    p("v_mov_b32 %s, 0x3f80" % b)
    p("v_lshlrev_b32 %s, %s, %s" % (a, a, b))
    p("v_lshrrev_b32 %s, 1, %s" % (b, t))
    p("v_lshlrev_b32 %s, 1, %s" % (t3, t2))
    p("v_cmp_eq_u32 vcc, %s, %s" % (b, t3))
    p("v_cndmask_b32 %s, 0, %s, vcc" % (vr(vSEL), a))
    p("v_add_u32 %s, 1, %s" % (t3, t3))
    p("v_cmp_eq_u32 vcc, %s, %s" % (b, t3))
    p("v_cndmask_b32 %s, 0, %s, vcc" % (vr(vSEL + 1), a))
    p("v_mov_b32 %s, %s" % (vr(vSEL + 2), vr(vSEL)))
    p("v_mov_b32 %s, %s" % (vr(vSEL + 3), vr(vSEL + 1)))
    for r in range(4):
        p("v_mov_b32 %s, 0x3f803f80" % vr(vONE + r))
    p("v_lshrrev_b32 %s, 2, %s" % (a, t))
    p("v_lshl_add_u32 %s, %s, 3, %s" % (a, t2, a))
    p("v_bfe_u32 %s, %s, 1, 1" % (b, a))
    p("v_and_b32 %s, 1, %s" % (t3, t2))
    p("v_lshl_add_u32 %s, %s, 1, %s" % (b, t3, b))
    p("v_xor_b32 %s, %s, %s" % (b, sr(sWV), b))
    p("v_lshlrev_b32 %s, 7, %s" % (a, a))
    p("v_lshl_add_u32 %s, %s, 5, %s" % (a, b, a))
    p("v_and_b32 %s, 3, %s" % (b, t))
    p("v_lshl_add_u32 %s, %s, 3, %s" % (vr(vTrW), b, a))
    p("v_lshrrev_b32 %s, 2, %s" % (a, t))
    p("v_xor_b32 %s, %s, %s" % (b, sr(sWV), a))
    p("v_lshlrev_b32 %s, 6, %s" % (b, b))
    p("v_lshl_add_u32 %s, %s, 8, %s" % (b, a, b))
    p("v_lshrrev_b32 %s, 1, %s" % (a, t2))
    p("v_lshl_add_u32 %s, %s, 10, %s" % (b, a, b))
    p("v_and_b32 %s, 1, %s" % (a, t2))
    p("v_lshl_add_u32 %s, %s, 4, %s" % (b, a, b))
    p("v_and_b32 %s, 1, %s" % (a, t))
    p("v_lshl_add_u32 %s, %s, 5, %s" % (b, a, b))
    p("v_bfe_u32 %s, %s, 1, 1" % (a, t))
    p("v_lshl_add_u32 %s, %s, 3, %s" % (vr(vTrO), a, b))
    p("v_lshlrev_b32 %s, 2, %s" % (a, t2))
    p("v_xor_b32 %s, %s, %s" % (a, t, a))
    p("v_lshlrev_b32 %s, 4, %s" % (a, a))
    p("v_lshl_add_u32 %s, %s, 10, %s" % (vr(vDmaO), t2, a))


def dmaw_address():
    l = vr(vLANE)
    a, b = vr(VF), vr(VF + 1)
    p("v_lshrrev_b32 %s, 3, %s" % (a, l))
    p("v_and_b32 %s, 2, %s" % (b, a))
    p("v_mul_u32_u24 %s, 0xc00, %s" % (a, a))
    p("v_xor_b32 %s, %s, %s" % (b, l, b))
    p("v_and_b32 %s, 7, %s" % (b, b))
    p("v_lshl_add_u32 %s, %s, 4, %s" % (vr(vDmaW), b, a))


def p0_compute():
    for d in range(4):
        src0 = SH + (d >> 1)
        src1 = SH + 2 + (d >> 1)
        if d & 1:
            p("v_and_b32 %s, %s, %s" % (vr(WF + 2 * d), sr(sMASK), vr(src0)))
            p("v_and_b32 %s, %s, %s" % (vr(WF + 2 * d + 1), sr(sMASK), vr(src1)))
        else:
            p("v_lshlrev_b32 %s, 16, %s" % (vr(WF + 2 * d), vr(src0)))
            p("v_lshlrev_b32 %s, 16, %s" % (vr(WF + 2 * d + 1), vr(src1)))
    for r in range(11):
        unpack(KF + 2 * r, KK + r)
    for t in range(8):
        p("v_pk_mul_f32 %s, %s, %s" % (vr(UF + 2 * t, 2), vr(KF + 2 * t, 2), vr(WF + 6, 2)))
    for d in (2, 1, 0):
        for t in range(8):
            p("v_pk_fma_f32 %s, %s, %s, %s" % (vr(UF + 2 * t, 2), vr(KF + 2 * (t + 3 - d), 2), vr(WF + 2 * d, 2), vr(UF + 2 * t, 2)))
    for t in range(8):
        unpack(KF + 2 * t, VV + t)
    for t in range(8):
        p("v_pk_mul_f32 %s, %s, %s" % (vr(UF + 2 * t, 2), vr(UF + 2 * t, 2), vr(KF + 2 * t, 2)))
    for c in range(2):
        for n in range(4):
            p("v_cvt_pk_bf16_f32 %s, %s, %s" % (vr(UP + 4 * c + n), vr(UF + 2 * (7 - 2 * n) + c), vr(UF + 2 * (6 - 2 * n) + c)))


def ut_address():
    t = vr(vT)
    p("s_lshl_b32 %s, %s, 7" % (sr(sT1), sr(sJ)))
    p("s_sub_u32 %s, 4080, %s" % (sr(sT0), sr(sT1)))
    p0_pair_chunk(vr(vUT), t)
    p("v_lshlrev_b32 %s, 13, %s" % (vr(vUT), vr(vUT)))
    p("v_lshlrev_b32 %s, 4, %s" % (t, t))
    p("v_sub_u32 %s, %s, %s" % (vr(vUT), vr(vUT), t))
    p("v_add_u32 %s, %s, %s" % (vr(vUT), sr(sT0), vr(vUT)))


def ut_store(soff, sc, tag=None):
    p("buffer_store_dwordx4 %s, %s, %s, %s offen%s" % (vr(UP, 4), vr(vUT), sr(sWS, 4), sr(soff), sc), tag)
    sadd(sT3, soff, 4096)
    p("buffer_store_dwordx4 %s, %s, %s, %s offen%s" % (vr(UP + 4, 4), vr(vUT), sr(sWS, 4), sr(sT3), sc), tag)


def h_copies():
    A, B = KF, KF + 8
    C = KF + 16
    t = vr(vT)
    wa = vr(vHA)
    p("v_and_b32 %s, 127, v0" % t)
    p("s_lshr_b32 %s, %s, 1" % (sr(sT0), sr(sWV)))
    p("s_lshl_b32 %s, %s, 16" % (sr(sT1), sr(sDV)))
    p("s_and_b32 %s, %s, %s" % (sr(sT2), sr(sDV), sr(sMASK)))
    p("s_cmp_eq_u32 %s, 0" % sr(sT0))
    p("s_cselect_b32 %s, %s, %s" % (sr(sT1), sr(sT1), sr(sT2)))
    p("v_cmp_eq_u32 vcc, 0, %s" % t)
    p("v_lshlrev_b32 %s, 16, %s" % (vr(C), vr(HE + 2)))
    p("v_add_f32 %s, %s, %s" % (vr(C), sr(sT1), vr(C)))
    p("v_cvt_pk_bf16_f32 %s, %s, %s" % (vr(C), vr(C), vr(C)))
    p("v_bfi_b32 %s, %s, %s, %s" % (vr(C), sr(sMASK), vr(HE + 2), vr(C)))
    p("v_cndmask_b32 %s, %s, %s, vcc" % (vr(HE + 2), vr(HE + 2), vr(C)))
    p("v_cndmask_b32_e64 %s, %s, 0, vcc" % (vr(HE), vr(HE)))
    p("v_cndmask_b32_e64 %s, %s, 0, vcc" % (vr(HE + 1), vr(HE + 1)))
    p("s_mul_i32 %s, %s, %d" % (sr(sT0), sr(sT0), HCH))
    sadd(sT0, sT0, HB + 32)
    p("v_lshlrev_b32 %s, 5, %s" % (wa, t))
    p("v_add_u32 %s, %s, %s" % (wa, sr(sT0), wa))
    p("ds_write_b128 %s, %s offset:%d" % (wa, vr(HE + 2, 4), 3 * HCOPY))
    p("ds_write_b128 %s, %s offset:%d" % (wa, vr(HE + 6, 4), 3 * HCOPY + 16))
    for n in range(8):
        p("v_alignbit_b32 %s, %s, %s, 16" % (vr(A + n), vr(HE + n + 1), vr(HE + n)))
    p("ds_write_b128 %s, %s offset:%d" % (wa, vr(A, 4), 0))
    p("ds_write_b128 %s, %s offset:%d" % (wa, vr(A + 4, 4), 16))
    for n in range(8):
        p("v_alignbit_b32 %s, %s, %s, 16" % (vr(B + n), vr(HE + n + 2), vr(HE + n + 1)))
    p("ds_write_b128 %s, %s offset:%d" % (wa, vr(B, 4), 2 * HCOPY))
    p("ds_write_b128 %s, %s offset:%d" % (wa, vr(B + 4, 4), 2 * HCOPY + 16))
    for n in range(8):
        p("v_mov_b32 %s, %s" % (vr(UF + n), vr(HE + n + 1)))
    p("ds_write_b128 %s, %s offset:%d" % (wa, vr(UF, 4), HCOPY))
    p("ds_write_b128 %s, %s offset:%d" % (wa, vr(UF + 4, 4), HCOPY + 16))


def lds_zero():
    z = KF
    t, a = vr(vT), vr(vHB)
    for r in range(4):
        p("v_mov_b32 %s, 0" % vr(z + r))
    skip = p.newlabel("zero")
    skip2 = p.newlabel("zero")
    p("s_cmp_lg_u32 %s, 0" % sr(sWV))
    p("s_cbranch_scc1 %s" % skip)
    p("v_lshrrev_b32 %s, 5, v0" % t)
    p("v_mul_u32_u24 %s, %d, %s" % (a, UCH - 512, t))
    p("v_lshl_add_u32 %s, v0, 4, %s" % (a, a))
    p("v_add_u32 %s, 0x%x, %s" % (a, UB + 4096, a))
    p("ds_write_b128 %s, %s" % (a, vr(z, 4)))
    p.label(skip)
    p("s_cmp_lg_u32 %s, 1" % sr(sWV))
    p("s_cbranch_scc1 %s" % skip2)
    p("v_bfe_u32 %s, v0, 1, 3" % t)
    p("v_mul_u32_u24 %s, %d, %s" % (a, HCOPY, t))
    p("v_and_b32 %s, 1, v0" % t)
    p("v_lshl_add_u32 %s, %s, 4, %s" % (a, t, a))
    p("v_add_u32 %s, 0x%x, %s" % (a, HB, a))
    p("ds_write_b128 %s, %s" % (a, vr(z, 4)))
    p.label(skip2)


def afrag_preload():
    l = vr(vLANE)
    a, t, t2 = vr(vHA), vr(vT), vr(vHB)
    p("s_lshr_b32 %s, %s, 1" % (sr(sT0), sr(sWV)))
    p("s_mul_i32 %s, %s, %d" % (sr(sT0), sr(sT0), HCH))
    p("s_and_b32 %s, %s, 1" % (sr(sT1), sr(sWV)))
    p("s_lshl_b32 %s, %s, 8" % (sr(sT1), sr(sT1)))
    p("s_add_u32 %s, %s, %s" % (sr(sT0), sr(sT0), sr(sT1)))
    sadd(sT0, sT0, HB + 8)
    p("v_and_b32 %s, 3, %s" % (t, l))
    p("v_mul_u32_u24 %s, %d, %s" % (a, HCOPY, t))
    p("v_and_b32 %s, 12, %s" % (t, l))
    p("v_lshl_add_u32 %s, %s, 1, %s" % (a, t, a))
    p("v_and_b32 %s, 48, %s" % (t, l))
    p("v_add3_u32 %s, %s, %s, %s" % (a, a, t, sr(sT0)))
    for rho in range(4):
        for aa in range(8):
            off = 512 * aa + 64 * rho
            r = aH + 4 * (8 * rho + aa)
            p("ds_read_b64 %s, %s offset:%d" % (ar(r, 2), a, off))
            p("ds_read_b64 %s, %s offset:%d" % (ar(r + 2, 2), a, off + 8))


def handoff_ut():
    F = KF
    E = KF + 4
    FB = KF + 8
    top, fast, got = p.newlabel("h1"), p.newlabel("h1fast"), p.newlabel("h1got")
    slow, slowtop = p.newlabel("h1slow"), p.newlabel("h1slowtop")
    p("s_add_u32 %s, %s, %s" % (sr(sP), sr(sTAG), sr(sXCC)))
    p("s_addc_u32 %s, %s, 0" % (sr(sP + 1), sr(sTAG + 1)))
    sadd(sT0, sCLS, C_FLAGA)
    p("v_and_b32 %s, 0xff, %s" % (vr(E), vr(vL8)))
    p("s_mov_b32 %s, %d" % (sr(sCNT), 0 if FORCE_SLOW else 48))
    p.label(top)
    p("buffer_load_dwordx2 %s, %s, %s, %s offen sc1" % (vr(F, 2), vr(E), sr(sWS, 4), sr(sT0)))
    p("v_cmp_ne_u64 vcc, %s, %s" % (sr(sP, 2), vr(F, 2)))
    if not FORCE_SLOW:
        p("s_cbranch_vccz %s" % fast)
    p("s_sub_u32 %s, %s, 1" % (sr(sCNT), sr(sCNT)))
    p("s_cbranch_scc0 %s" % top)
    p("s_branch %s" % slow)
    p.label(fast)
    p("s_mov_b32 %s, 1" % sr(sMODE))
    sadd(sUSRC, sCLS, C_UTA)
    p.label(got)

    def blk():
        p.label(slow)
        p("s_lshl_b32 %s, %s, 18" % (sr(sUSRC), sr(sX)))
        sadd(sUSRC, sUSRC, UTB)
        ut_store(sUSRC, " sc1")
        p.waitvm()
        p("s_lshl_b32 %s, %s, 10" % (sr(sT1), sr(sX)))
        sadd(sT1, sT1, FLAGB)
        p("s_lshl_b32 %s, %s, 2" % (sr(sT2), sr(sJ)))
        p("s_add_u32 %s, %s, %s" % (sr(sT2), sr(sT2), sr(sWV)))
        p("s_lshl_b32 %s, %s, 3" % (sr(sT2), sr(sT2)))
        p("s_add_u32 %s, %s, %s" % (sr(sT2), sr(sT2), sr(sT1)))
        flag_store(sT2, local=False)
        p("s_mov_b32 %s, %s" % (sr(sCNT), sr(sLIM)))
        p("s_mov_b32 %s, 0" % sr(sMODE))
        p.label(slowtop)
        p("buffer_load_dwordx2 %s, %s, %s, %s offen sc1" % (vr(F, 2), vr(E), sr(sWS, 4), sr(sT0)))
        p("buffer_load_dwordx2 %s, %s, %s, %s offen sc1" % (vr(FB, 2), vr(vL8), sr(sWS, 4), sr(sT1)))
        p("buffer_load_dwordx2 %s, %s, %s, %s offen offset:512 sc1" % (vr(FB + 2, 2), vr(vL8), sr(sWS, 4), sr(sT1)))
        if not FORCE_SLOW:
            p("v_cmp_ne_u64 vcc, %s, %s" % (sr(sP, 2), vr(F, 2)))
            p("s_cbranch_vccz %s" % fast)
        p("v_cmp_ne_u64 vcc, %s, %s" % (sr(sTAG, 2), vr(FB, 2)))
        p("v_cmp_ne_u64 %s, %s, %s" % (sr(sTS, 2), sr(sTAG, 2), vr(FB + 2, 2)))
        p("s_or_b64 vcc, vcc, %s" % sr(sTS, 2))
        p("s_cbranch_vccz %s" % got)
        p("s_sub_u32 %s, %s, 1" % (sr(sCNT), sr(sCNT)))
        p("s_cbranch_scc0 %s" % slowtop)
        p("s_mov_b32 %s, 0" % sr(sLIM))
        p("s_or_b32 %s, %s, 1" % (sr(sERR), sr(sERR)))
        p("s_branch %s" % got)

    tail.append(blk)
    p("s_lshl_b32 %s, %s, 13" % (sr(sT0), sr(sJ)))
    p("s_add_u32 %s, %s, %s" % (sr(sT0), sr(sT0), sr(sUSRC)))
    p("s_lshl_b32 %s, %s, 11" % (sr(sT1), sr(sWV)))
    p("s_add_u32 %s, %s, %s" % (sr(sT0), sr(sT0), sr(sT1)))
    p("s_lshr_b32 %s, %s, 1" % (sr(sT2), sr(sWV)))
    p("s_lshl_b32 %s, %s, 9" % (sr(sT2), sr(sT2)))
    p("s_add_u32 %s, %s, %s" % (sr(sT1), sr(sT1), sr(sT2)))
    p("s_add_u32 m0, %s, %d" % (sr(sT1), UB))
    p("buffer_load_dwordx4 %s, %s, %s offen sc1 lds" % (vr(vL16), sr(sWS, 4), sr(sT0)))
    p("buffer_load_dwordx4 %s, %s, %s offen offset:1024 sc1 lds" % (vr(vL16), sr(sWS, 4), sr(sT0)))


CACC = S0 + 8
CB = S0 + 40
CR = S0 + 72
vCB, vCE, vYw = S0 + 4, S0 + 5, S0 + 6


def conv_addresses():
    l = vr(vLANE)
    t = vr(vT)
    p("s_lshr_b32 %s, %s, 1" % (sr(sT0), sr(sWV)))
    p("s_mul_i32 %s, %s, %d" % (sr(sT0), sr(sT0), UCH))
    p("s_and_b32 %s, %s, 1" % (sr(sT1), sr(sWV)))
    p("s_lshl_b32 %s, %s, 8" % (sr(sT1), sr(sT1)))
    p("s_add_u32 %s, %s, %s" % (sr(sT0), sr(sT0), sr(sT1)))
    sadd(sT0, sT0, UB + 480)
    p("v_and_b32 %s, 15, %s" % (t, l))
    p("v_lshlrev_b32 %s, 5, %s" % (vr(vCB), t))
    p("v_sub_u32 %s, %s, %s" % (vr(vCB), sr(sT0), vr(vCB)))
    p("v_lshlrev_b32 %s, 6, %s" % (vr(vYw), t))
    p("v_and_b32 %s, 48, %s" % (t, l))
    p("v_add_u32 %s, %s, %s" % (vr(vCB), vr(vCB), t))
    p("v_add_u32 %s, %s, %s" % (vr(vYw), vr(vYw), t))


def conv(extra):
    def rd(m, rho):
        p("ds_read_b128 %s, %s offset:%d" % (vr(CB + 4 * m, 4), vr(vCB), 512 * (7 - m) + 64 * rho))

    def mm(a, m, rho, first):
        acc = vr(CACC + 4 * (a + m), 4)
        p("v_mfma_f32_16x16x32_bf16 %s, %s, %s, %s" % (acc, ar(aH + 4 * (8 * rho + a), 4), vr(CB + 4 * m, 4), "0" if first else acc))

    for m in range(8):
        rd(m, 0)
    extra()
    for rho in range(3):
        for m in range(8):
            for a in range(8 - m):
                mm(a, m, rho, rho == 0 and m == 0)
            rd(m, rho + 1)
    p("s_lshl_b32 %s, %s, 5" % (sr(sT0), sr(sX)))
    p("s_add_u32 %s, %s, %s" % (sr(sT0), sr(sT0), sr(sJ)))
    p("s_lshl_b32 %s, %s, 13" % (sr(sT0), sr(sT0)))
    sadd(sT0, sT0, YB)
    labs = [p.newlabel("cv%d" % w) for w in range(4)]
    join = p.newlabel("cvjoin")
    for w in range(1, 4):
        p("s_cmp_eq_u32 %s, %d" % (sr(sWV), w))
        p("s_cbranch_scc1 %s" % labs[w])
    for w in range(4):
        p.label(labs[w])
        keep = (w, 7 - w)
        send = [jt for jt in range(7, -1, -1) if jt not in keep]
        pend = []
        for jt in send + list(keep):
            for a in range(jt + 1):
                mm(a, jt - a, 3, False)
            if pend:
                j2 = pend.pop()
                d = min(j2, 7 - j2)
                slot = (w - d - 1) % 4
                p("ds_write_b128 %s, %s offset:%d" % (vr(vL16), vr(CACC + 4 * j2, 4), EX + (d * 3 + slot) * 2048 + (0 if j2 < 4 else 1024)))
            if jt in send:
                pend.append(jt)
        barrier()
        for slot in range(3):
            for k2 in range(2):
                p("ds_read_b128 %s, %s offset:%d" % (vr(CR + 8 * slot + 4 * k2, 4), vr(vL16), EX + (w * 3 + slot) * 2048 + 1024 * k2))
        partner = w ^ 1
        others = [o for o in range(4) if (o >> 1) != (w >> 1)]
        sl = lambda o: (o - w - 1) % 4
        for k2 in range(2):
            jt = keep[k2]
            own = CACC + 4 * jt
            pr = CR + 8 * sl(partner) + 4 * k2
            o0 = CR + 8 * sl(others[0]) + 4 * k2
            o1 = CR + 8 * sl(others[1]) + 4 * k2
            for e in (0, 2):
                p("v_pk_add_f32 %s, %s, %s" % (vr(own + e, 2), vr(own + e, 2), vr(pr + e, 2)))
                p("v_pk_add_f32 %s, %s, %s" % (vr(o0 + e, 2), vr(o0 + e, 2), vr(o1 + e, 2)))
            lo, hi = (own, o0) if (w >> 1) == 0 else (o0, own)
            for e in range(4):
                p("v_cvt_pk_bf16_f32 %s, %s, %s" % (vr(pr + e), vr(lo + e), vr(hi + e)))
            for e in range(4):
                p("v_min_u32 %s, -2, %s" % (vr(pr + e), vr(pr + e)))
            if jt >= 4:
                sadd(sT0, sT0, 4096)
            p("buffer_store_dwordx4 %s, %s, %s, %s offen offset:%d sc1" % (vr(pr, 4), vr(vYw), sr(sWS, 4), sr(sT0), 1024 * (jt % 4)))
        if w < 3:
            p("s_branch %s" % join)
    p.label(join)


def hello_check():
    F = S0 + 8
    p("s_mov_b32 %s, 0x%x" % (sr(sT0), HELLO))

    def issue():
        for u in range(4):
            p("buffer_load_dwordx2 %s, %s, %s, %s offen offset:%d sc1" % (vr(F + 2 * u, 2), vr(vL8), sr(sWS, 4), sr(sT0), 512 * u))

    def check():
        p("v_cmp_ne_u64 vcc, %s, %s" % (sr(sTAG, 2), vr(F, 2)))
        for u in range(1, 4):
            p("v_cmp_ne_u64 %s, %s, %s" % (sr(sP, 2), sr(sTAG, 2), vr(F + 2 * u, 2)))
            p("s_or_b64 vcc, vcc, %s" % sr(sP, 2))

    poll(issue, check, 1)


def colsum(a0, dst, transposed):
    acc = S0 + 8
    for ks in range(16):
        A, B = vr(vONE, 4), ar(a0 + 4 * ks, 4)
        if transposed:
            A, B = B, A
        p("v_mfma_f32_16x16x32_bf16 %s, %s, %s, %s" % (vr(acc, 4), A, B, "0" if ks == 0 else vr(acc, 4)))
    for e in range(4 if transposed else 1):
        p("v_mov_b32 %s, %s" % (vr(dst + e), vr(acc + e)))


N0 = S0 + 32


def normalise(vR, vNM):
    for e in range(0, 16, 2):
        p("v_pk_fma_f32 %s, %s, %s, %s op_sel_hi:[1,0,0]" % (vr(N0 + e, 2), vr(vX + e, 2), vr(vR, 2), vr(vNM, 2)))


def gate_and_publish(L):
    XP = S0 + 48
    for e in range(0, 16, 2):
        p("v_pk_fma_f32 %s, %s, %s, %s" % (vr(vX + e, 2), vr(N0 + e, 2), vr(vY + e, 2), vr(vX + e, 2)))
    for e in range(8):
        p("v_cvt_pk_bf16_f32 %s, %s, %s" % (vr(XP + e), vr(vX + 2 * e), vr(vX + 2 * e + 1)))
    sadd(sT0, sCLS, C_X + L * 0x40000)
    local_stores(
        [
            "buffer_store_dwordx4 %s, %s, %s, %s offen" % (vr(XP, 4), vr(vXw), sr(sWS, 4), sr(sT0)),
            "buffer_store_dwordx4 %s, %s, %s, %s offen offset:256" % (vr(XP + 4, 4), vr(vXw), sr(sWS, 4), sr(sT0)),
        ],
        "xst",
    )
    stats_compute(S0 + 56, S0 + 58)
    p("s_lshl_b32 %s, %s, 4" % (sr(sT1), sr(sG32L)))
    p("s_add_u32 %s, %s, %s" % (sr(sT1), sr(sT1), sr(sKS)))
    p("s_lshl_b32 %s, %s, 3" % (sr(sT1), sr(sT1)))
    p("s_add_u32 %s, %s, %s" % (sr(sT1), sr(sT1), sr(sCLS)))
    sadd(sT1, sT1, C_FLAGX + L * 0x400)
    p.waitvm("xst")
    flag_store(sT1)
    sadd(sT0, sCLS, st_off(1 + 2 * L))
    local_stores(["buffer_store_dword %s, %s, %s, %s offen" % (vr(S0 + 56), vr(vSTw), sr(sWS, 4), sr(sT0))])


GA = S0 + 8
GK, GV, GQ = S0 + 40, S0 + 56, S0 + 72
GT = S0 + 88


def gemm_kv(L):
    F = GT
    p("s_lshl_b32 %s, %s, 1" % (sr(sT0), sr(sRG)))
    p("s_lshr_b32 %s, %s, 1" % (sr(sT1), sr(sWV)))
    p("s_add_u32 %s, %s, %s" % (sr(sT0), sr(sT0), sr(sT1)))
    p("s_lshl_b32 %s, %s, 7" % (sr(sT0), sr(sT0)))
    p("s_add_u32 %s, %s, %s" % (sr(sT0), sr(sT0), sr(sCLS)))
    sadd(sT0, sT0, C_FLAGX + L * 0x400)
    p("v_and_b32 %s, 0x7f, %s" % (vr(F + 2), vr(vL8)))
    p("s_lshl_b32 %s, %s, 16" % (sr(sT1), sr(sRG)))
    p("s_lshl_b32 %s, %s, 14" % (sr(sT2), sr(sWV)))
    p("s_add_u32 %s, %s, %s" % (sr(sT1), sr(sT1), sr(sT2)))
    p("s_add_u32 %s, %s, %s" % (sr(sT1), sr(sT1), sr(sCLS)))
    sadd(sT1, sT1, C_X + L * 0x40000)
    p("s_add_u32 m0, %s, %d" % (sr(sT2), AB))
    poll(
        lambda: p("buffer_load_dwordx2 %s, %s, %s, %s offen sc1" % (vr(F, 2), vr(F + 2), sr(sWS, 4), sr(sT0))),
        lambda: p("v_cmp_ne_u64 vcc, %s, %s" % (sr(sTAG, 2), vr(F, 2))),
        3,
    )
    stamp("xflag%d" % L)
    for s in range(4):
        for k2 in range(4):
            p("buffer_load_dwordx4 %s, %s, %s offen offset:%d sc1 lds" % (vr(vL16), sr(sWS, 4), sr(sT1), 1024 * k2), "a%d" % s)
        if s < 3:
            p("s_add_u32 m0, m0, 4096")
            sadd(sT1, sT1, 4096)
    p("s_lshl_b32 %s, %s, 1" % (sr(sT0), sr(sRG)))
    p("s_and_b32 %s, %s, 1" % (sr(sT1), sr(sWV)))
    p("s_add_u32 %s, %s, %s" % (sr(sT0), sr(sT0), sr(sT1)))
    p("s_lshl_b32 %s, %s, 12" % (sr(sT0), sr(sT0)))
    p("s_add_u32 %s, %s, %s" % (sr(sT0), sr(sT0), sr(sCLS)))
    sadd(sT3, sT0, st_off(1 + 2 * L))
    p("v_add_u32 %s, 0x%x, %s" % (vr(S0 + 123), AB, vr(vL16)))

    def rd(ks):
        for tt in range(4):
            p("ds_read_b128 %s, %s offset:%d" % (vr(GA + 16 * (ks & 1) + 4 * tt, 4), vr(S0 + 123), tt * 16384 + ks * 1024))

    if L == 1: stamp("g_iss")
    p.waitvm("a0")
    barrier()
    if L == 1: stamp("g_a0")
    if L == 0:
        stage_wo(0, R1, "wo")
    rd(0)
    for ks in range(16):
        if ks < 15:
            if (ks + 1) % 4 == 0:
                if L == 1: stamp("g_pre%d" % ks)
                p.waitvm("a%d" % ((ks + 1) // 4))
                if L == 1: stamp("g_vm%d" % ks)
                if ks + 1 == 12:
                    poll(lambda: stats_issue(GT, sT3), lambda: check_sentinel(range(GT, GT + 16), GT + 16), 4)
                    stats_finish(GT, GT + 16, GT + 17)
                    p("v_cmp_gt_u32 vcc, 0x200, %s" % vr(vL16))
                    p("v_cndmask_b32 %s, %s, %s, vcc" % (vr(GT + 16), vr(GT + 17), vr(GT + 16)))
                    p("ds_write_b32 %s, %s" % (vr(vTBw), vr(GT + 16)))
                    p.waitlg()
                p("s_barrier")
                if L == 1: stamp("g_bar%d" % ks)
            rd(ks + 1)
        for tt in range(4):
            A = vr(GA + 16 * (ks & 1) + 4 * tt, 4)
            for acc, w in ((GK, aWK), (GV, aWV)):
                d = vr(acc + 4 * tt, 4)
                p("v_mfma_f32_16x16x32_bf16 %s, %s, %s, %s" % (d, A, ar(w + 4 * ks, 4), "0" if ks == 0 else d))
    stamp("gemmkv%d" % L)
    for tt in range(4):
        p("ds_read_b128 %s, %s offset:%d" % (vr(GT + 8 * tt, 4), vr(vTB1), 64 * tt))
        p("ds_read_b128 %s, %s offset:%d" % (vr(GT + 8 * tt + 4, 4), vr(vTB1), 256 + 64 * tt))
    PK, PV, T = GA, GA + 8, GA + 16
    for tt in range(4):
        Rr, NM = GT + 8 * tt, GT + 8 * tt + 4
        k0, v0 = GK + 4 * tt, GV + 4 * tt
        for e in range(4):
            p("v_fma_f32 %s, %s, %s, %s" % (vr(T + e), vr(NM + e), vr(vCSK), sr(sEPS6)))
        for e in (0, 2):
            p("v_pk_fma_f32 %s, %s, %s, %s" % (vr(k0 + e, 2), vr(k0 + e, 2), vr(Rr + e, 2), vr(T + e, 2)))
        for e in range(4):
            p("v_mul_f32 %s, %s, %s" % (vr(T + e), sr(sLOG2E), vr(k0 + e)))
        for e in range(4):
            p("v_exp_f32_e64 %s, %s clamp" % (vr(T + e), vr(T + e)))
        for e in range(4):
            p("v_max_f32 %s, %s, %s" % (vr(k0 + e), sr(sEPS6), vr(k0 + e)))
        for e in (0, 2):
            p("v_pk_add_f32 %s, %s, %s" % (vr(k0 + e, 2), vr(k0 + e, 2), vr(T + e, 2)))
        for e in range(4):
            p("v_mul_f32 %s, %s, %s" % (vr(T + 4 + e), vr(NM + e), vr(vCSV)))
        for e in (0, 2):
            p("v_pk_fma_f32 %s, %s, %s, %s" % (vr(v0 + e, 2), vr(v0 + e, 2), vr(Rr + e, 2), vr(T + 4 + e, 2)))
        for e in (0, 2):
            p("v_cvt_pk_bf16_f32 %s, %s, %s" % (vr(PK + 2 * tt + e // 2), vr(k0 + e), vr(k0 + e + 1)))
            p("v_cvt_pk_bf16_f32 %s, %s, %s" % (vr(PV + 2 * tt + e // 2), vr(v0 + e), vr(v0 + e + 1)))
    KV, Z = GK, GK + 4
    p("v_mfma_f32_16x16x32_bf16 %s, %s, %s, 0" % (vr(KV, 4), vr(PK, 4), vr(PV, 4)))
    p("v_mfma_f32_16x16x32_bf16 %s, %s, %s, %s" % (vr(KV, 4), vr(PK + 4, 4), vr(PV + 4, 4), vr(KV, 4)))
    p("v_mfma_f32_16x16x32_bf16 %s, %s, %s, 0" % (vr(Z, 4), vr(PK, 4), vr(vONE, 4)))
    p("v_mfma_f32_16x16x32_bf16 %s, %s, %s, %s" % (vr(Z, 4), vr(PK + 4, 4), vr(vONE, 4), vr(Z, 4)))
    p("s_lshl_b32 %s, %s, 2" % (sr(sT0), sr(sM)))
    p("s_add_u32 %s, %s, %s" % (sr(sT0), sr(sT0), sr(sWV)))
    p("s_lshl_b32 %s, %s, 5" % (sr(sT0), sr(sT0)))
    p("s_lshl_b32 %s, %s, 2" % (sr(sT1), sr(sX)))
    p("s_add_u32 %s, %s, %s" % (sr(sT0), sr(sT0), sr(sT1)))
    p("s_add_u32 %s, %s, %s" % (sr(sT0), sr(sT0), sr(sRG)))
    p("s_lshl_b32 %s, %s, 9" % (sr(sT1), sr(sT0)))
    sadd(sT1, sT1, KVP + L * 0x80000)
    p("s_lshl_b32 %s, %s, 6" % (sr(sT2), sr(sT0)))
    sadd(sT2, sT2, ZP + L * 0x10000)
    p("v_cvt_pk_bf16_f32 %s, %s, %s" % (vr(T), vr(KV), vr(KV + 1)))
    p("v_cvt_pk_bf16_f32 %s, %s, %s" % (vr(T + 1), vr(KV + 2), vr(KV + 3)))
    p("v_min_u32 %s, -2, %s" % (vr(T), vr(T)))
    p("v_min_u32 %s, -2, %s" % (vr(T + 1), vr(T + 1)))
    p("buffer_store_dwordx2 %s, %s, %s, %s offen sc1" % (vr(T, 2), vr(vL8), sr(sWS, 4), sr(sT1)))
    for e in range(4):
        p("v_min_u32 %s, -2, %s" % (vr(Z + e), vr(Z + e)))
    p("s_mov_b32 exec_lo, 0x00010001")
    p("s_mov_b32 exec_hi, 0x00010001")
    p("buffer_store_dwordx4 %s, %s, %s, %s offen sc1" % (vr(Z, 4), vr(vZr), sr(sWS, 4), sr(sT2)))
    p("s_mov_b64 exec, -1")
    stamp("kvpub%d" % L)


def gemm_q(L):
    def rd(ks):
        for tt in range(4):
            p("ds_read_b128 %s, %s offset:%d" % (vr(GA + 16 * (ks & 1) + 4 * tt, 4), vr(S0 + 123), tt * 16384 + ks * 1024))

    p("v_add_u32 %s, 0x%x, %s" % (vr(S0 + 123), AB, vr(vL16)))
    for tt in range(4):
        p("ds_read_b32 %s, %s offset:%d" % (vr(GT + 2 * tt), vr(vTB2), 64 * tt))
        p("ds_read_b32 %s, %s offset:%d" % (vr(GT + 2 * tt + 1), vr(vTB2), 256 + 64 * tt))
    rd(0)
    for ks in range(16):
        if ks < 15:
            rd(ks + 1)
        for tt in range(4):
            B = vr(GA + 16 * (ks & 1) + 4 * tt, 4)
            d = vr(GQ + 4 * tt, 4)
            p("v_mfma_f32_16x16x32_bf16 %s, %s, %s, %s" % (d, ar(aWQ + 4 * ks, 4), B, "0" if ks == 0 else d))
    T = GA
    PQ = GA + 8
    sadd(sT0, sCLS, C_PQ + L * 0x40000)
    sadd(sT1, sT0, 32768)
    lines = []
    for tt in range(4):
        Rr, NM = GT + 2 * tt, GT + 2 * tt + 1
        q0 = GQ + 4 * tt
        for e in range(4):
            p("v_fma_f32 %s, %s, %s, %s" % (vr(T + e), vr(NM), vr(vCSQ + e), sr(sEPS6)))
        for e in range(4):
            p("v_fma_f32 %s, %s, %s, %s" % (vr(q0 + e), vr(q0 + e), vr(Rr), vr(T + e)))
        for e in range(4):
            p("v_mul_f32 %s, %s, %s" % (vr(T + e), sr(sLOG2E), vr(q0 + e)))
        for e in range(4):
            p("v_exp_f32_e64 %s, %s clamp" % (vr(T + e), vr(T + e)))
        for e in range(4):
            p("v_max_f32 %s, %s, %s" % (vr(q0 + e), sr(sEPS6), vr(q0 + e)))
        for e in (0, 2):
            p("v_pk_add_f32 %s, %s, %s" % (vr(q0 + e, 2), vr(q0 + e, 2), vr(T + e, 2)))
        for e in (0, 2):
            p("v_cvt_pk_bf16_f32 %s, %s, %s" % (vr(PQ + 2 * tt + e // 2), vr(q0 + e), vr(q0 + e + 1)))
        lines.append(
            "buffer_store_dwordx2 %s, %s, %s, %s offen offset:%d" % (vr(PQ + 2 * tt, 2), vr(vPQw), sr(sWS, 4), sr(sT0 if tt < 2 else sT1), 256 * (tt & 1))
        )
    local_stores(lines, "pqst")
    p("s_lshl_b32 %s, %s, 5" % (sr(sT0), sr(sRG)))
    p("s_lshl_b32 %s, %s, 2" % (sr(sT1), sr(sM)))
    p("s_add_u32 %s, %s, %s" % (sr(sT0), sr(sT0), sr(sT1)))
    p("s_add_u32 %s, %s, %s" % (sr(sT0), sr(sT0), sr(sWV)))
    p("s_lshl_b32 %s, %s, 3" % (sr(sT0), sr(sT0)))
    p("s_add_u32 %s, %s, %s" % (sr(sT0), sr(sT0), sr(sCLS)))
    sadd(sT0, sT0, C_FLAGPQ + L * 0x400)
    p.waitvm("pqst")
    flag_store(sT0)


OPQ = S0 + 8
OST = S0 + 40
OD = S0 + 72
OF = S0 + 104


def head_off(u):
    return (u & 3) * 1024 + (u >> 2) * 16384


def reduce_state(L):
    P = OST
    ZL = OST + 16
    D = OST + 24
    RC = OD
    T = OD + 12
    p("s_lshl_b32 %s, %s, 5" % (sr(sT0), sr(sJ)))
    p("s_lshl_b32 %s, %s, 6" % (sr(sT2), sr(sT0)))
    sadd(sT2, sT2, ZP + L * 0x10000)
    p("s_lshl_b32 %s, %s, 3" % (sr(sT1), sr(sWV)))
    p("s_add_u32 %s, %s, %s" % (sr(sT0), sr(sT0), sr(sT1)))
    p("s_lshl_b32 %s, %s, 9" % (sr(sT0), sr(sT0)))
    sadd(sT0, sT0, KVP + L * 0x80000)

    def issue():
        for u in range(8):
            p("buffer_load_dwordx2 %s, %s, %s, %s offen offset:%d sc1" % (vr(P + 2 * u, 2), vr(vL8), sr(sWS, 4), sr(sT0), 512 * u))

    poll(issue, lambda: check_sentinel(range(P, P + 16), T), 5)
    stamp("kvgot%d" % L)
    for u in range(4):
        p("v_mfma_f32_16x16x32_bf16 %s, %s, %s, %s" % (vr(D, 4), vr(vSEL, 4), vr(P + 4 * u, 4), "0" if u == 0 else vr(D, 4)))
    p("s_lshl_b32 %s, %s, 10" % (sr(sT1), sr(sWV)))
    sadd(sT1, sT1, RS)
    p("v_add_u32 %s, %s, %s" % (vr(T), sr(sT1), vr(vL16)))
    p("s_lshl_b32 %s, %s, 10" % (sr(sT3), sr(sJ)))
    p("s_add_u32 %s, %s, %s" % (sr(sT3), sr(sT3), sr(sCLS)))
    sadd(sT3, sT3, C_STATE + L * 0x8000)
    p("ds_write_b128 %s, %s" % (vr(T), vr(D, 4)))
    barrier()
    w1, done = p.newlabel("red1"), p.newlabel("reddone")
    p("s_cmp_eq_u32 %s, 1" % sr(sWV))
    p("s_cbranch_scc1 %s" % w1)
    p("s_cmp_lg_u32 %s, 0" % sr(sWV))
    p("s_cbranch_scc1 %s" % done)
    for u in range(3):
        p("ds_read_b128 %s, %s offset:%d" % (vr(RC + 4 * u, 4), vr(T), 1024 * (u + 1)))
    for e in (0, 2):
        p("v_pk_add_f32 %s, %s, %s" % (vr(D + e, 2), vr(D + e, 2), vr(RC + e, 2)))
        p("v_pk_add_f32 %s, %s, %s" % (vr(RC + 4 + e, 2), vr(RC + 4 + e, 2), vr(RC + 8 + e, 2)))
    for e in (0, 2):
        p("v_pk_add_f32 %s, %s, %s" % (vr(D + e, 2), vr(D + e, 2), vr(RC + 4 + e, 2)))
    p("v_cvt_pk_bf16_f32 %s, %s, %s" % (vr(D), vr(D), vr(D + 1)))
    p("v_cvt_pk_bf16_f32 %s, %s, %s" % (vr(D + 1), vr(D + 2), vr(D + 3)))
    p("v_min_u32 %s, -2, %s" % (vr(D), vr(D)))
    p("v_min_u32 %s, -2, %s" % (vr(D + 1), vr(D + 1)))
    local_stores(["buffer_store_dwordx2 %s, %s, %s, %s offen" % (vr(D, 2), vr(vSTATEw), sr(sWS, 4), sr(sT3))])
    p("s_branch %s" % done)
    p.label(w1)

    def issue_z():
        for u in range(2):
            p("buffer_load_dwordx4 %s, %s, %s, %s offen offset:%d sc1" % (vr(ZL + 4 * u, 4), vr(vZr), sr(sWS, 4), sr(sT2), 1024 * u))

    poll(issue_z, lambda: check_sentinel(range(ZL, ZL + 8), T), 6)
    for e in (0, 2):
        p("v_pk_add_f32 %s, %s, %s" % (vr(ZL + e, 2), vr(ZL + e, 2), vr(ZL + 4 + e, 2)))
    for sh in (8, 4, 2, 1):
        for e in range(4):
            p("v_add_f32_dpp %s, %s, %s row_ror:%d row_mask:0xf bank_mask:0xf" % (vr(ZL + e), vr(ZL + e), vr(ZL + e), sh))
    p("v_cvt_pk_bf16_f32 %s, %s, %s" % (vr(ZL), vr(ZL), vr(ZL + 1)))
    p("v_cvt_pk_bf16_f32 %s, %s, %s" % (vr(ZL + 1), vr(ZL + 2), vr(ZL + 3)))
    p("v_min_u32 %s, -2, %s" % (vr(ZL), vr(ZL)))
    p("v_min_u32 %s, -2, %s" % (vr(ZL + 1), vr(ZL + 1)))
    local_stores(["buffer_store_dwordx2 %s, %s, %s, %s offen offset:256" % (vr(ZL, 2), vr(vSTATEw), sr(sWS, 4), sr(sT3))])
    p.label(done)


def load_pq(L):
    F = OD
    p("s_lshl_b32 %s, %s, 8" % (sr(sT0), sr(sRG)))
    p("s_add_u32 %s, %s, %s" % (sr(sT0), sr(sT0), sr(sCLS)))
    sadd(sT0, sT0, C_FLAGPQ + L * 0x400)
    p("v_and_b32 %s, 0xff, %s" % (vr(F + 2), vr(vL8)))
    poll(
        lambda: p("buffer_load_dwordx2 %s, %s, %s, %s offen sc1" % (vr(F, 2), vr(F + 2), sr(sWS, 4), sr(sT0))),
        lambda: p("v_cmp_ne_u64 vcc, %s, %s" % (sr(sTAG, 2), vr(F, 2))),
        7,
    )
    p("s_lshl_b32 %s, %s, 15" % (sr(sT0), sr(sG32L)))
    p("s_lshl_b32 %s, %s, 12" % (sr(sT1), sr(sWV)))
    p("s_add_u32 %s, %s, %s" % (sr(sT0), sr(sT0), sr(sT1)))
    p("s_add_u32 %s, %s, %s" % (sr(sT0), sr(sT0), sr(sCLS)))
    sadd(sT0, sT0, C_PQ + L * 0x40000)
    sadd(sT1, sT0, 16384)
    for u in range(8):
        p("buffer_load_dwordx4 %s, %s, %s, %s offen offset:%d sc1" % (vr(OPQ + 4 * u, 4), vr(vL16), sr(sWS, 4), sr(sT0 if u < 4 else sT1), 1024 * (u & 3)))


def attn_out(L):
    T = OF + 12
    p("s_lshl_b32 %s, %s, 12" % (sr(sT2), sr(sWV)))
    p("s_add_u32 %s, %s, %s" % (sr(sT0), sr(sT2), sr(sCLS)))
    sadd(sT0, sT0, C_STATE + L * 0x8000)
    sadd(sT1, sT0, 16384)
    sadd(sT2, sT2, OB)
    p("v_add_u32 %s, %s, %s" % (vr(S0 + 122), sr(sT2), vr(vL16)))
    p("v_add_u32 %s, 0x%x, %s" % (vr(S0 + 123), OB, vr(vL16)))

    def issue():
        for u in range(8):
            p("buffer_load_dwordx4 %s, %s, %s, %s offen offset:%d sc1" % (vr(OST + 4 * u, 4), vr(vL16), sr(sWS, 4), sr(sT0 if u < 4 else sT1), 1024 * (u & 3)))

    poll(issue, lambda: check_sentinel([OST + 2 * n for n in range(16)], T), 8)
    stamp("stgot%d" % L)

    def mm(u):
        p("v_mfma_f32_32x32x16_bf16 %s, %s, %s, 0" % (vr(OD + 16 * (u & 1), 16), vr(OST + 4 * u, 4), vr(OPQ + 4 * u, 4)))

    def fin(u):
        d = OD + 16 * (u & 1)
        of = OF + 4 * (u & 1)
        p("v_add_f32 %s, %s, %s" % (vr(d + 8), sr(sEPS6), vr(d + 8)))
        p("v_rcp_f32 %s, %s" % (vr(d + 8), vr(d + 8)))
        for e in range(0, 8, 2):
            p("v_pk_mul_f32 %s, %s, %s op_sel_hi:[1,0]" % (vr(d + e, 2), vr(d + e, 2), vr(d + 8, 2)))
        for e in range(4):
            p("v_cvt_pk_bf16_f32 %s, %s, %s" % (vr(of + e), vr(d + 2 * e), vr(d + 2 * e + 1)))
        p("ds_write_b128 %s, %s offset:%d" % (vr(S0 + 122), vr(of, 4), head_off(u)))

    def wreg(h):
        return ar(aWOA + 4 * h, 4) if h < 16 else vr(vWOB + 4 * (h - 16), 4)

    def breg(h):
        return (OST + 4 * (h % 4)) if (h // 4) % 2 == 0 else (OPQ + 4 * (h % 4))

    def rdb(h):
        p("ds_read_b128 %s, %s offset:%d" % (vr(breg(h), 4), vr(S0 + 123), 1024 * h))

    def wm(h):
        p("v_mfma_f32_32x32x16_bf16 %s, %s, %s, %s" % (vr(vX, 16), wreg(h), vr(breg(h), 4), vr(vX, 16)))

    mm(0)
    for u in range(4):
        mm(u + 1)
        fin(u)
    barrier()
    for h in range(8):
        rdb(h)
    for u in range(4, 8):
        if u < 7:
            mm(u + 1)
        for h in range(4 * (u - 4), 4 * (u - 4) + 4):
            wm(h)
            if h + 8 < 16:
                rdb(h + 8)
        fin(u)
    barrier()
    for h in range(16, 24):
        rdb(h)
    for h in range(16, 32):
        wm(h)
        if h + 8 < 32:
            rdb(h + 8)
    stamp("wo%d" % L)


def stats_hop():
    stats_compute(S0 + 8, S0 + 10)
    sadd(sT0, sCLS, st_off(2))
    local_stores(["buffer_store_dword %s, %s, %s, %s offen" % (vr(S0 + 8), vr(vSTw), sr(sWS, 4), sr(sT0))])
    p("s_lshl_b32 %s, %s, 12" % (sr(sT1), sr(sG32L)))
    p("s_add_u32 %s, %s, %s" % (sr(sT1), sr(sT1), sr(sT0)))
    B = S0 + 12
    poll(lambda: stats_issue(B, sT1), lambda: check_sentinel(range(B, B + 16), S0 + 28), 9)
    stats_finish(B, S0 + 28, S0 + 30)
    normalise(S0 + 28, S0 + 30)
    stamp("stats2")


def main():
    prologue()
    p0_issue()
    dmaw_address()
    addresses()
    lds_zero()
    ut_address()
    stamp("issued")
    if PROFILE or SPIN == "kvgot":
        p("s_waitcnt vmcnt(5)")
        stamp("kvgot")
    p0_compute()
    sadd(sT0, sCLS, C_UTA)
    ut_store(sT0, "")
    stamp("p0")
    p("s_add_u32 %s, %s, 16" % (sr(sTAG), sr(sTAG)))
    p("s_addc_u32 %s, %s, 0" % (sr(sTAG + 1), sr(sTAG + 1)))
    p("v_mov_b32 %s, %s" % (vr(vTAG), sr(sTAG)))
    p("v_mov_b32 %s, %s" % (vr(vTAG + 1), sr(sTAG + 1)))
    h_copies()
    for e in range(8):
        unpack(vX + 2 * e, X0 + e)
    stats_compute(VF, KF)
    p.waitvm()
    barrier()
    skip = p.newlabel("fa")
    p("s_cmp_lg_u32 %s, 0" % sr(sWV))
    p("s_cbranch_scc1 %s" % skip)
    p("s_add_u32 %s, %s, %s" % (sr(sP), sr(sTAG), sr(sXCC)))
    p("s_addc_u32 %s, %s, 0" % (sr(sP + 1), sr(sTAG + 1)))
    p("v_mov_b32 %s, %s" % (vr(KF), sr(sP)))
    p("v_mov_b32 %s, %s" % (vr(KF + 1), sr(sP + 1)))
    p("s_lshl_b32 %s, %s, 3" % (sr(sT0), sr(sJ)))
    p("s_add_u32 %s, %s, %s" % (sr(sT0), sr(sT0), sr(sCLS)))
    sadd(sT0, sT0, C_FLAGA)
    p("s_mov_b64 exec, 1")
    p("buffer_store_dwordx2 %s, off, %s, %s" % (vr(KF, 2), sr(sWS, 4), sr(sT0)))
    p("s_mov_b64 exec, -1")
    p.label(skip)
    stamp("flagA")
    clears()
    stage_w(1, R1, "wk")
    stamp("i_wk")
    sadd(sT0, sCLS, st_off(0))
    p("buffer_store_dword %s, %s, %s, %s offen sc1" % (vr(VF), vr(vSTw), sr(sWS, 4), sr(sT0)))
    if SKEW:
        p("v_mov_b32 %s, s74" % vr(KF + 20))
        p("s_lshl_b32 %s, s2, 2" % sr(sT0))
        sadd(sT0, sT0, PROF)
        p("buffer_store_dword %s, off, %s, %s sc1" % (vr(KF + 20), sr(sWS, 4), sr(sT0)))
    afrag_preload()
    p.waitvm("wk")
    barrier()
    unstage_w(R1, aWK)
    handoff_ut()
    stamp("utflag")
    conv_addresses()
    p.waitvm()
    barrier()
    skip = p.newlabel("hello")
    p("s_cmp_lg_u32 %s, 1" % sr(sWV))
    p("s_cbranch_scc1 %s" % skip)
    p("s_lshl_b32 %s, s2, 3" % sr(sT0))
    sadd(sT0, sT0, HELLO)
    flag_store(sT0, local=False)
    p.label(skip)
    stamp("convstart")
    conv(lambda: stage_w(2, R2, "wv"))
    stamp("convdone")
    p.waitvm("wv")
    barrier()
    stage_w(0, R1, "wq")
    unstage_prep(R2, vTrW)
    unstage_w(R2, aWV)
    hello_check()
    stamp("hello")
    p("s_lshl_b32 %s, %s, 12" % (sr(sT1), sr(sG32L)))
    p("s_add_u32 %s, %s, %s" % (sr(sT1), sr(sT1), sr(sCLS)))
    sadd(sT1, sT1, st_off(0))
    stats_issue(S0 + 12, sT1)
    colsum(aWK, vCSK, False)
    colsum(aWV, vCSV, False)
    stats_finish(S0 + 12, S0 + 28, S0 + 30)
    normalise(S0 + 28, S0 + 30)
    YR = S0 + 8
    stamp("ypoll")

    def issue_y():
        p("s_mov_b32 %s, 0x%x" % (sr(sT0), YB))
        for u in range(8):
            p("buffer_load_dword %s, %s, %s, %s offen sc1" % (vr(YR + u), vr(vYa), sr(sWS, 4), sr(sT0)))
            if u < 7:
                sadd(sT0, sT0, 8192)

    poll(issue_y, lambda: check_sentinel(range(YR, YR + 8), S0 + 16), 2)
    stamp("ygot")
    for u in range(8):
        unpack(vY + 2 * u, YR + u)
    for L in range(2):
        gate_and_publish(L)
        stamp("xpub%d" % L)
        if L == 0:
            barrier()
            unstage_w(R1, aWQ)
            colsum(aWQ, vCSQ, True)
        else:
            barrier()
        gemm_kv(L)
        if L == 0:
            p.waitvm("wo")
            barrier()
            unstage_wo(R1, "a", aWOA)
            barrier()
            stage_wo(1, R1, "wo")
        gemm_q(L)
        if L == 0:
            p.waitvm("wo")
            barrier()
            unstage_wo(R1, "v", vWOB)
        stamp("qdone%d" % L)
        load_pq(L)
        reduce_state(L)
        stamp("stpub%d" % L)
        attn_out(L)
        if L == 0:
            stats_hop()
    XP = S0 + 8
    for e in range(8):
        p("v_cvt_pk_bf16_f32 %s, %s, %s" % (vr(XP + e), vr(vX + 2 * e), vr(vX + 2 * e + 1)))
    p("buffer_store_dwordx4 %s, %s, %s, 0 offen" % (vr(XP, 4), vr(vXrow), sr(sOUT, 4)))
    p("buffer_store_dwordx4 %s, %s, %s, 0 offen offset:16" % (vr(XP + 4, 4), vr(vXrow), sr(sOUT, 4)))
    skip = p.newlabel("epoch")
    p("s_or_b32 %s, s2, %s" % (sr(sT0), sr(sWV)))
    p("s_cmp_lg_u32 %s, 0" % sr(sT0))
    p("s_cbranch_scc1 %s" % skip)
    p("s_mov_b32 %s, %d" % (sr(sT0), EPOCH))
    flag_store(sT0, local=False)
    p.label(skip)
    if PROFILE:
        p.waitvm()
        stamp("end")
        p("v_writelane_b32 %s, %s, 63" % (vr(vPROF), sr(sERR)))
        p("v_writelane_b32 %s, %s, 62" % (vr(vPROF), sr(sMODE)))
        p("v_writelane_b32 %s, %s, 61" % (vr(vPROF), sr(sXCC)))
        p("s_lshl_b32 %s, s2, 10" % sr(sT0))
        sadd(sT0, sT0, PROF)
        p("v_lshlrev_b32 %s, 2, v0" % vr(S0))
        p("buffer_store_dword %s, %s, %s, %s offen" % (vr(vPROF), vr(S0), sr(sWS, 4), sr(sT0)))
        sadd(sT0, sT0, 0x40000)
        p("buffer_store_dword %s, %s, %s, %s offen" % (vr(vPROF + 1), vr(S0), sr(sWS, 4), sr(sT0)))
    if SPIN:
        if SPIN == "end":
            p.waitvm()
            stamp("end")
        if "--wbl2" in sys.argv:
            p.waitvm()
            p("buffer_wbl2 sc1")
            p("s_waitcnt vmcnt(0)")
        if SPINWG:
            p("s_cmp_lg_u32 s2, %d" % SPINWG[0])
            p("s_cbranch_scc1 L_exit")
        if SKEW:
            p("s_mov_b32 %s, 0x%x" % (sr(sT0), PROF + 4 * SKEW[0]))
            p("buffer_load_dword %s, off, %s, %s sc1" % (vr(S0), sr(sWS, 4), sr(sT0)))
            p("v_readfirstlane_b32 s74, %s" % vr(S0))
        p.label("L_spin")
        p("s_memrealtime s[76:77]")
        p("s_waitcnt lgkmcnt(0)")
        p("s_sub_u32 s76, s76, s74")
        p("s_cmp_lt_u32 s76, 4000")
        p("s_cbranch_scc1 L_spin")
    p("s_endpgm")
    i = 0
    while i < len(tail):
        tail[i]()
        i += 1
    p.label("L_exit")
    p("s_endpgm")


main()

HEAD = open("cdna_kernels/%s.s.ref" % NAME).read().split("; Override launch geometry")[0]
body = p.text()
src = (
    HEAD
    + "; One persistent launch, one workgroup per CU; generated by a script (phases hand data over through d_ws).\n"
    + "; @launch grid=(256,1,1) block=(256,1,1) lds=%d\n" % LDS_BYTES
    + """.amdgcn_target "amdgcn-amd-amdhsa--gfx950"
.text
.globl {n}_kernel
.p2align 8
.type {n}_kernel,@function
{n}_kernel:
""".format(n=NAME)
    + body
    + """.section .rodata,"a"
.p2align 6
.amdhsa_kernel {n}_kernel
  .amdhsa_next_free_vgpr 512
  .amdhsa_next_free_sgpr 102
  .amdhsa_accum_offset 256
  .amdhsa_group_segment_fixed_size 0
  .amdhsa_kernarg_size 96
  .amdhsa_user_sgpr_count 2
  .amdhsa_user_sgpr_kernarg_segment_ptr 1
  .amdhsa_system_sgpr_workgroup_id_x 1
  .amdhsa_float_denorm_mode_32 3
.end_amdhsa_kernel
""".format(n=NAME)
)
LIST = [a.split("=")[1] for a in sys.argv if a.startswith("--list=")]
if LIST:
    main_l = "; @launch kernel=%s_kernel grid=(256,1,1) block=(256,1,1) lds=%d\n" % (NAME, LDS_BYTES)
    triv = "; @launch kernel=triv_kernel grid=(256,1,1) block=(64,1,1) lds=0\n"
    lines = "".join(main_l if c == "m" else triv for c in LIST[0])
    src = src.replace("; @launch grid=(256,1,1) block=(256,1,1) lds=%d\n" % LDS_BYTES, lines)
    src = src.replace(""".section .rodata,"a"
""", """.globl triv_kernel
.p2align 8
.type triv_kernel,@function
triv_kernel:
    s_endpgm
.section .rodata,"a"
.p2align 6
.amdhsa_kernel triv_kernel
  .amdhsa_next_free_vgpr 8
  .amdhsa_next_free_sgpr 16
  .amdhsa_accum_offset 8
  .amdhsa_group_segment_fixed_size 0
  .amdhsa_kernarg_size 96
  .amdhsa_user_sgpr_count 2
  .amdhsa_user_sgpr_kernarg_segment_ptr 1
  .amdhsa_system_sgpr_workgroup_id_x 1
.end_amdhsa_kernel
""")
open(OUT, "w").write(src)
if PROFILE:
    open(OUT + ".stamps", "w").write("\n".join(stamps))
print("wrote", OUT, "instructions:", sum(1 for l in body.split("\n") if l.startswith("    ") and not l.strip().startswith(";")))
```

```python
import re

TRANS = ("v_exp_f32", "v_log_f32", "v_rcp_f32", "v_rsq_f32", "v_sqrt_f32", "v_sin_f32", "v_cos_f32")
RMW_VALU = ("v_fmac_f32", "v_dot2c_f32_bf16", "v_writelane_b32")
_reg_re = re.compile(r"^(-|abs\()?([vas])(\d+)\)?$")
_rng_re = re.compile(r"^(-|abs\()?([vas])\[(\d+):(\d+)\]\)?$")


def regs_of(tok):
    tok = tok.strip()
    m = _reg_re.match(tok)
    if m:
        return {(m.group(2), int(m.group(3)))}
    m = _rng_re.match(tok)
    if m:
        return {(m.group(2), i) for i in range(int(m.group(3)), int(m.group(4)) + 1)}
    if tok == "vcc":
        return {("s", "vcc")}
    if tok == "exec":
        return {("s", "exec")}
    if tok == "m0":
        return {("s", "m0")}
    return set()


def base_op(op):
    for suf in ("_e32", "_e64", "_dpp", "_sdwa"):
        if op.endswith(suf):
            return op[: -len(suf)]
    return op


class Ins:
    def __init__(self, text, tag=None):
        self.text = text
        self.tag = tag
        self.label = None
        self.pseudo = None
        self.defs = set()
        self.uses = set()
        self.kind = "other"
        self.op = ""
        self.mf = None
        self.target = None
        self.store_data = set()
        self.size = None
        if text.endswith(":"):
            self.label = text[:-1]
            self.kind = "label"
            return
        if text.startswith("@"):
            self.pseudo = text[1:].split()
            self.kind = "pseudo"
            return
        if text.startswith(";") or text.startswith("."):
            self.kind = "comment"
            return
        self.parse()

    def parse(self):
        t = self.text.split(";")[0].strip()
        sp = t.split(None, 1)
        self.op = op = sp[0]
        rest = sp[1] if len(sp) > 1 else ""
        parts = [p.strip() for p in re.split(r",(?![^\[(]*[\])])", rest)] if rest else []
        mods = ""
        if parts:
            last = parts[-1].split(None, 1)
            parts[-1] = last[0]
            mods = last[1] if len(last) > 1 else ""
        self.mods = mods
        self.parts = parts
        R = [regs_of(p) for p in parts]
        b = base_op(op)
        self.b = b
        U = lambda idx: set().union(*[R[i] for i in idx]) if idx else set()
        n = len(parts)
        if op.startswith("v_mfma"):
            self.kind = "mfma"
            self.defs = R[0]
            self.uses = U(range(1, n))
            passes = 8 if "32x32x16" in op or "32x32x8" in op else 4
            self.mf = dict(D=R[0], A=R[1], B=R[2], C=R[3], passes=passes)
        elif op.startswith("v_"):
            self.kind = "valu"
            if b.startswith("v_cmp"):
                self.defs = R[0]
                self.uses = U(range(1, n))
            elif b in ("v_add_co_u32", "v_sub_co_u32", "v_addc_co_u32"):
                self.defs = R[0] | R[1]
                self.uses = U(range(2, n))
            elif b.startswith("v_permlane") and b.endswith("swap_b32"):
                self.defs = R[0] | R[1]
                self.uses = R[0] | R[1]
            elif b == "v_nop":
                pass
            else:
                self.defs = R[0]
                self.uses = U(range(1, n))
                if b in RMW_VALU or "_dpp" in op or "row_" in mods or "quad_perm" in mods:
                    self.uses |= R[0]
            self.is_dpp = "_dpp" in op or "row_" in mods or "quad_perm" in mods
            self.is_trans = b in TRANS
            self.is_dot = b.startswith("v_dot")
            self.is_opsel = "_sdwa" in op and "dst_sel:DWORD" not in mods
        elif op.startswith("ds_"):
            self.kind = "ds"
            if op.startswith("ds_read") or op.startswith("ds_bpermute") or op.startswith("ds_swizzle"):
                self.defs = R[0]
                self.uses = U(range(1, n))
            else:
                self.uses = U(range(n))
        elif op.startswith("buffer_") or op.startswith("global_"):
            self.kind = "vmem"
            self.is_dma = bool(re.search(r"\blds\b", mods)) or "load_lds" in op
            if op in ("buffer_wbl2", "buffer_inv"):
                pass
            elif self.is_dma:
                self.uses = U(range(n)) | {("s", "m0")}
            elif "load" in op:
                self.defs = R[0]
                self.uses = U(range(1, n))
            elif "atomic" in op:
                self.uses = U(range(n))
                if "sc0" in mods:
                    self.defs = R[0]
            else:
                self.uses = U(range(n))
                if op.endswith("x3") or op.endswith("x4"):
                    self.store_data = R[0] if op.startswith("buffer_") else R[1]
        elif op.startswith("s_load") or op in ("s_memtime", "s_memrealtime"):
            self.kind = "smem"
            self.defs = R[0]
            self.uses = U(range(1, n))
        elif op == "s_waitcnt":
            self.kind = "wait"
            s = rest
            m = re.search(r"vmcnt\((\d+)\)", s)
            self.vm = int(m.group(1)) if m else None
            m = re.search(r"lgkmcnt\((\d+)\)", s)
            self.lg = int(m.group(1)) if m else None
        elif op == "s_nop":
            self.kind = "nop"
            self.n = int(parts[0]) + 1
        elif op in ("s_branch",) or op.startswith("s_cbranch"):
            self.kind = "branch"
            self.target = parts[0]
            if "vcc" in op:
                self.uses = {("s", "vcc")}
        elif op == "s_endpgm":
            self.kind = "end"
        elif op.startswith("s_"):
            self.kind = "salu"
            if op.startswith("s_cmp") or op.startswith("s_bitcmp") or op in ("s_barrier", "s_setprio", "s_sleep"):
                self.uses = U(range(n))
            else:
                self.defs = R[0]
                self.uses = U(range(1, n))
                if "saveexec" in op:
                    self.defs |= {("s", "exec")}
        else:
            raise ValueError("unknown instruction: " + self.text)


class State:
    def __init__(self):
        self.vm = {}
        self.lg = {}
        self.smem = False
        self.hz = {}

    def copy(self):
        s = State()
        s.vm = dict(self.vm)
        s.lg = dict(self.lg)
        s.smem = self.smem
        s.hz = dict(self.hz)
        return s

    def merge(self, o):
        changed = False
        for mine, other in ((self.vm, o.vm), (self.lg, o.lg)):
            for k, a in other.items():
                if k not in mine or a < mine[k]:
                    mine[k] = a
                    changed = True
        if o.smem and not self.smem:
            self.smem = True
            changed = True
        for k, age in o.hz.items():
            if k not in self.hz or age < self.hz[k]:
                self.hz[k] = age
                changed = True
        return changed


MAXHZ = 24


def need_states(st, ins):
    need = 0
    vdefs = ins.defs
    vuses = ins.uses
    for (typ, regs, extra), age in st.hz.items():
        req = 0
        if typ == "valu_v":
            if ins.kind == "mfma" and regs & vuses:
                req = 2
            elif ins.kind == "valu":
                if (ins.b.startswith("v_permlane") or ins.is_dpp) and regs & vuses:
                    req = 2
                elif ins.b in ("v_readfirstlane_b32", "v_readlane_b32") and regs & vuses:
                    req = 1
        elif typ == "trans":
            if ins.kind in ("valu",) and not ins.is_trans and regs & vuses:
                req = 1
        elif typ == "opsel":
            if ins.kind == "valu" and regs & (vuses | vdefs):
                req = 1
        elif typ == "dot":
            if ins.kind in ("valu", "mfma", "vmem", "ds") and regs & (vuses | vdefs):
                req = 3
                if ins.kind == "valu" and ins.b == extra:
                    srcab = set()
                    for p in ins.parts[1:3]:
                        srcab |= regs_of(p)
                    req = 3 if regs & srcab else 0
        elif typ == "valu_s":
            if ins.kind == "vmem" and regs & vuses:
                req = 5
            elif ins.kind == "valu" and regs & vuses:
                req = 4 if ins.b in ("v_readlane_b32", "v_writelane_b32") else 2
            elif ins.kind == "mfma" and ("s", "exec") in regs:
                req = 4
            elif ins.kind in ("salu", "branch", "smem") and regs & vuses:
                req = 1
        elif typ == "m0":
            if ins.kind == "vmem" and ins.is_dma:
                req = 1
        elif typ == "store":
            if regs & vdefs:
                req = 2
        elif typ == "mfma_d":
            p = extra
            far = {2: 5, 4: 8, 8: 12, 16: 20}[p]
            if ins.kind == "mfma":
                if regs & (ins.mf["A"] | ins.mf["B"]):
                    req = far
                elif regs & ins.mf["C"]:
                    if regs == ins.mf["C"] and ins.mf["passes"] == p:
                        req = 0
                    else:
                        req = far - 2
                elif regs & ins.mf["D"]:
                    req = far - 2
            elif ins.kind in ("valu", "vmem", "ds") and regs & (vuses | vdefs):
                req = far
        elif typ == "mfma_c":
            p = extra
            if ins.kind == "valu" and regs & vdefs:
                req = {2: 1, 4: 3, 8: 7, 16: 15}[p]
        need = max(need, req - age)
    return need


def advance(st, n):
    st.hz = {k: a + n for k, a in st.hz.items() if a + n < MAXHZ}


def record(st, ins):
    advance(st, ins.n if ins.kind == "nop" else 1)
    k = ins.kind
    if k == "valu":
        vd = frozenset(r for r in ins.defs if r[0] in "va")
        sd = frozenset(r for r in ins.defs if r[0] == "s")
        if vd:
            st.hz[("valu_v", vd, None)] = 0
            if ins.is_trans:
                st.hz[("trans", vd, None)] = 0
            if ins.is_dot:
                st.hz[("dot", vd, ins.b)] = 0
            if ins.is_opsel:
                st.hz[("opsel", vd, None)] = 0
        if sd:
            st.hz[("valu_s", sd, None)] = 0
    elif k == "mfma":
        st.hz[("mfma_d", frozenset(ins.mf["D"]), ins.mf["passes"])] = 0
        if ins.mf["C"]:
            st.hz[("mfma_c", frozenset(ins.mf["C"]), ins.mf["passes"])] = 0
    elif k == "salu":
        if ("s", "m0") in ins.defs:
            st.hz[("m0", frozenset({("s", "m0")}), None)] = 0
    elif k == "vmem":
        if ins.store_data:
            st.hz[("store", frozenset(ins.store_data), None)] = 0
    if k == "vmem":
        st.vm = {key: a + 1 for key, a in st.vm.items()}
        for r in ins.defs:
            st.vm[r] = 0
        if ins.tag:
            st.vm[("tag", ins.tag)] = 0
        st.vm[("any", 0)] = 0
    elif k == "ds":
        st.lg = {key: a + 1 for key, a in st.lg.items()}
        for r in ins.defs:
            st.lg[r] = 0
        if ins.tag:
            st.lg[("tag", ins.tag)] = 0
        st.lg[("any", 0)] = 0
    elif k == "smem":
        st.smem = True
        st.lg = {key: a + 1 for key, a in st.lg.items()}
        for r in ins.defs:
            st.lg[r] = 0
    elif k == "wait":
        apply_wait(st, ins.vm, ins.lg)


def apply_wait(st, vm, lg):
    if vm is not None:
        st.vm = {k: a for k, a in st.vm.items() if a < vm}
    if lg is not None:
        if lg == 0:
            st.lg = {}
            st.smem = False
        elif not st.smem:
            st.lg = {k: a for k, a in st.lg.items() if a < lg}


def needed_wait(st, ins):
    vm = lg = None
    if ins.kind == "pseudo":
        what, tag = ins.pseudo[0], ins.pseudo[1] if len(ins.pseudo) > 1 else None
        if what == "waitvm":
            a = st.vm.get(("tag", tag)) if tag else st.vm.get(("any", 0))
            if a is not None:
                vm = a
        elif what == "waitlg":
            a = st.lg.get(("tag", tag)) if tag else (0 if st.lg else None)
            if a is not None:
                lg = a
        elif what == "waitall":
            if st.vm:
                vm = 0
            if st.lg:
                lg = 0
    else:
        for r in ins.uses:
            if r in st.vm:
                vm = st.vm[r] if vm is None else min(vm, st.vm[r])
            if r in st.lg:
                lg = st.lg[r] if lg is None else min(lg, st.lg[r])
        for r in ins.defs:
            if r in st.vm and ins.kind != "vmem":
                vm = st.vm[r] if vm is None else min(vm, st.vm[r])
            if r in st.lg and not (ins.kind == "ds" and not st.smem):
                lg = st.lg[r] if lg is None else min(lg, st.lg[r])
    if lg is not None and st.smem:
        lg = 0
    if vm is not None:
        vm = min(vm, 63)
    if lg is not None:
        lg = min(lg, 15)
    return vm, lg


class Prog:
    def __init__(self):
        self.ins = []
        self.uid = 0

    def __call__(self, text, tag=None):
        for line in text.split("\n"):
            line = line.strip()
            if line:
                self.ins.append(Ins(line, tag))

    def cap(self, fn, *a):
        saved, self.ins = self.ins, []
        fn(*a)
        got, self.ins = self.ins, saved
        return got

    def put(self, lst):
        self.ins.extend(lst)

    def weave(self, primary, filler, per_gap=2, start=0):
        filler = list(filler)
        n = 0
        credit = 0.0
        for ins in primary:
            self.ins.append(ins)
            if ins.kind == "mfma":
                n += 1
                if n > start:
                    credit += per_gap
                    while filler:
                        f = filler[0]
                        grp = f if isinstance(f, list) else [f]
                        cost = sum(1 for g in grp if g.kind not in ("pseudo", "comment", "label"))
                        if cost > credit and not (credit >= per_gap and cost > per_gap and credit > 0):
                            break
                        self.ins.extend(grp)
                        credit -= cost
                        filler.pop(0)
                    credit = min(credit, per_gap)
            elif ins.kind not in ("pseudo", "comment", "label"):
                credit -= 1
        out = []
        for f in filler:
            out.extend(f if isinstance(f, list) else [f])
        return out

    def label(self, name):
        self.ins.append(Ins(name + ":"))

    def newlabel(self, stem):
        self.uid += 1
        return "L_%s_%d" % (stem, self.uid)

    def comment(self, text):
        self.ins.append(Ins("; " + text))

    def waitvm(self, tag=None):
        self.ins.append(Ins("@waitvm " + (tag or "")))

    def waitlg(self, tag=None):
        self.ins.append(Ins("@waitlg " + (tag or "")))

    def waitall(self):
        self.ins.append(Ins("@waitall"))

    def resolve(self):
        seen = set()
        for ins in self.ins:
            if ins.tag:
                seen.add(ins.tag)
            if ins.kind == "pseudo" and len(ins.pseudo) > 1:
                assert ins.pseudo[1] in seen, "wait for a tag that was not issued yet: " + ins.text
                if ins.pseudo[1].startswith("a") and ins.pseudo[1][1:].isdigit():
                    seen.discard(ins.pseudo[1])
        instates = {}
        for _ in range(50):
            out = []
            changed = False
            st = State()
            live = True
            for ins in self.ins:
                if ins.kind == "label":
                    inc = instates.get(ins.label)
                    if live:
                        if inc is not None:
                            st.merge(inc)
                    else:
                        st = inc.copy() if inc is not None else State()
                    live = True
                    out.append(ins)
                    continue
                if ins.kind == "comment":
                    out.append(ins)
                    continue
                vm, lg = needed_wait(st, ins)
                if vm is not None or lg is not None:
                    txt = "s_waitcnt" + ("" if vm is None else " vmcnt(%d)" % vm) + ("" if lg is None else " lgkmcnt(%d)" % lg)
                    w = Ins(txt)
                    out.append(w)
                    record(st, w)
                if ins.kind == "pseudo":
                    continue
                n = need_states(st, ins)
                if n > 0:
                    w = Ins("s_nop %d" % (n - 1))
                    out.append(w)
                    record(st, w)
                out.append(ins)
                record(st, ins)
                if ins.kind == "branch":
                    t = instates.get(ins.target)
                    if t is None:
                        instates[ins.target] = st.copy()
                        changed = True
                    elif t.merge(st):
                        changed = True
                    if ins.op == "s_branch":
                        live = False
                elif ins.kind == "end":
                    live = False
            if not changed:
                return out
        raise RuntimeError("no fixpoint")

    def text(self):
        lines = []
        for i in self.resolve():
            lines.append(i.text if i.kind in ("label",) else "    " + i.text)
        return "\n".join(lines) + "\n"


def vr(base, n=1, f="v"):
    return "%s%d" % (f, base) if n == 1 else "%s[%d:%d]" % (f, base, base + n - 1)


def ar(base, n=1):
    return vr(base, n, "a")


def sr(base, n=1):
    return vr(base, n, "s")
```

```python
import sys
from asmlib import Prog, Ins, vr, ar, sr

NAME = "interleave_layers__ssm_conv_h3__linear_attn_block__prompt"
PROFILE = "--prof" in sys.argv
FORCE_SLOW = "--slow" in sys.argv
SPIN = [a.split("=")[1] for a in sys.argv if a.startswith("--spin=")]
SPIN = SPIN[0] if SPIN else None
SKEW = [int(a.split("=")[1]) for a in sys.argv if a.startswith("--skew=")]
SPINWG = [int(a.split("=")[1]) for a in sys.argv if a.startswith("--spinwg=")]
OUT = [a for a in sys.argv[1:] if not a.startswith("--")]
OUT = OUT[0] if OUT else "cdna_kernels/%s.s" % NAME

EPOCH = 0
HELLO = 0x1000
FLAGB = 0x2000
KVP = 0x80000
ZP = KVP + 0x80000
KVL = 0x90000
YB = 0x200000
CLS = 0x600000
CLS_SHIFT = 19
C_A = 0
C_STATE = 0x40000
C_ST = 0x50000
C_FLAGX = 0x70000
C_FLAGPQ = 0x70800
C_FLAGA = 0x71000
C_HELLO = 0x71100
PROF = 0x1800000
WS_BYTES = 0x2000000


def opt(name, default):
    v = [a.split("=")[1] for a in sys.argv if a.startswith("--%s=" % name)]
    return int(v[0]) if v else default


FINE = "--fine" in sys.argv
WSOFF = opt("wsoff", 0) << 20
CLR0 = opt("clr0", 0)
NSA = opt("nsa", 4)
NSB = opt("nsb", 4)
NWC = opt("nwc", 16)
DSTEP = opt("dstep", 6)


def st_off(n):
    return C_ST + ((n + 3) % 4) * 0x8000


R1, R2, R3 = 0, 65536, 131072
HB = R2
HCOPY, HCH = 4160, 16640
UB = R3
UCH = 4608
TB = R3 + 9216
RS = R3 + 9728
EX = R3 + 8192
AB = R1
OB = R2
LDS_BYTES = 163840

sQ, sK, sV, sH, sW, sWO, sWS, sOUT, sSH = 4, 8, 12, 16, 20, 24, 28, 32, 36
sD = 40
sTAG = 42
sX, sJ, sWV, sXCC, sMODE, sLIM, sCNT = 44, 45, 46, 47, 48, 49, 50
sCLS = 51
sT0, sT1, sT2, sT3 = 52, 53, 54, 55
sP = 56
sC4096, sMASK = 58, 59
sDV = 60
sG32L, sKS, sRG, sM = 61, 62, 63, 64
sEPS6, sLOG2E, sEPS5, sINV512 = 65, 66, 67, 68
sTS = 70
sERR = 72
sWV14 = 73
sL2E2 = 84
sDM = 86
sG32 = 87
sQW, sQO, sQL = 88, 92, 96

vL16, vL8, vXrow, vYa, vSTw, vSTr, vXw, vPQw, vSTATEw = 1, 2, 3, 4, 5, 6, 7, 8, 9
vTrW, vTrO, vDmaW, vDmaO, vTB1, vTB2, vZr, vTBw = 10, 11, 12, 13, 14, 15, 16, 17
vDmaW2, vSTr2, vHi = 188, 189, 190
vTAG = 18
vSEL, vONE = 20, 24
vCSK, vCSV, vCSQ = 28, 29, 30
vX, vY = 34, 50
vPROF = 66
S0 = 68
vWOB = 192
aWK, aWV, aWQ, aWOA = 0, 64, 128, 192
aH = 128

p = Prog()
tail = []
stamps = []


def stamp(name):
    if SPIN == name:
        p("s_memrealtime s[74:75]")
        p("s_waitcnt lgkmcnt(0)")
    if not PROFILE:
        return
    n = len(stamps)
    stamps.append(name)
    p("s_memrealtime %s" % sr(sTS, 2))
    if "--clk" in sys.argv:
        p("s_memtime s[78:79]")
    p("s_waitcnt lgkmcnt(0)")
    p("v_writelane_b32 %s, %s, %d" % (vr(vPROF), sr(sTS), n))
    if "--clk" in sys.argv:
        p("v_writelane_b32 %s, s78, %d" % (vr(vPROF + 1), n))


def srd(base, nbytes):
    p("s_mov_b32 %s, %d" % (sr(base + 2), nbytes))
    p("s_mov_b32 %s, 0x20000" % sr(base + 3))


def sadd(dst, src, imm):
    p("s_add_u32 %s, %s, 0x%x" % (sr(dst), sr(src), imm))


def local_stores(lines, tag=None):
    slow, join = p.newlabel("slowst"), p.newlabel("joinst")
    p("s_cmp_eq_u32 %s, 0" % sr(sMODE))
    p("s_cbranch_scc1 %s" % slow)
    for l in lines:
        p(l, tag)
    p.label(join)

    def blk():
        p.label(slow)
        for l in lines:
            p(l + " sc1", tag)
        p("s_branch %s" % join)

    tail.append(blk)


def poll(issue, check, code):
    top, done = p.newlabel("poll"), p.newlabel("polldone")
    p("s_mov_b32 %s, %s" % (sr(sCNT), sr(sLIM)))
    p.label(top)
    issue()
    check()
    p("s_cbranch_vccz %s" % done)
    p("s_sub_u32 %s, %s, 1" % (sr(sCNT), sr(sCNT)))
    p("s_cbranch_scc0 %s" % top)
    p("s_mov_b32 %s, 0" % sr(sLIM))
    p("s_or_b32 %s, %s, %d" % (sr(sERR), sr(sERR), 1 << code))
    p.label(done)


def poll_late(issue, check, code):
    out, join, top = p.newlabel("retry"), p.newlabel("retryjoin"), p.newlabel("retrytop")
    check()
    p("s_cbranch_vccnz %s" % out)
    p.label(join)

    def blk():
        p.label(out)
        p("s_mov_b32 %s, %s" % (sr(sCNT), sr(sLIM)))
        p.label(top)
        issue()
        check()
        p("s_cbranch_vccz %s" % join)
        p("s_sub_u32 %s, %s, 1" % (sr(sCNT), sr(sCNT)))
        p("s_cbranch_scc0 %s" % top)
        p("s_mov_b32 %s, 0" % sr(sLIM))
        p("s_or_b32 %s, %s, %d" % (sr(sERR), sr(sERR), 1 << code))
        p("s_branch %s" % join)

    tail.append(blk)


def sched(primary, at):
    n = 0
    for ins in primary:
        p.put([ins])
        if ins.kind == "mfma":
            p.put(at.pop(n, []))
            n += 1
    for k in sorted(at):
        p.put(at[k])


def place(at, groups, start, step):
    k = start
    for g in groups:
        at.setdefault(int(k), []).extend(g if isinstance(g, list) else [g])
        k += step
    return k


def check_sentinel(regs, tmp):
    regs = list(regs)
    if len(regs) == 1:
        p("v_cmp_eq_u32 vcc, -1, %s" % vr(regs[0]))
        return
    first = True
    i = 0
    while i < len(regs):
        if first:
            if len(regs) >= 3:
                p("v_max3_u32 %s, %s, %s, %s" % (vr(tmp), vr(regs[0]), vr(regs[1]), vr(regs[2])))
                i = 3
            else:
                p("v_max_u32 %s, %s, %s" % (vr(tmp), vr(regs[0]), vr(regs[1])))
                i = 2
            first = False
        elif i + 1 < len(regs):
            p("v_max3_u32 %s, %s, %s, %s" % (vr(tmp), vr(tmp), vr(regs[i]), vr(regs[i + 1])))
            i += 2
        else:
            p("v_max_u32 %s, %s, %s" % (vr(tmp), vr(tmp), vr(regs[i])))
            i += 1
    p("v_cmp_eq_u32 vcc, -1, %s" % vr(tmp))


def unpack(dst, src):
    p("v_lshlrev_b32 %s, 16, %s" % (vr(dst), vr(src)))
    p("v_and_b32 %s, %s, %s" % (vr(dst + 1), sr(sMASK), vr(src)))


def flag_store(soff_sgpr, local=True, tagreg=vTAG):
    p("s_mov_b64 exec, 1")
    line = "buffer_store_dwordx2 %s, off, %s, %s" % (vr(tagreg, 2), sr(sWS, 4), sr(soff_sgpr))
    if local:
        local_stores([line])
    else:
        p(line + " sc1")
    p("s_mov_b64 exec, -1")


def barrier():
    p.waitlg()
    p("s_barrier")


def dma_groups(sq, step, const, va, srd_, region, tag):
    out = []
    for n in range(16):

        def one():
            c, r = n >> 2, n & 3
            if r == 0:
                p("s_add_u32 m0, %s, %d" % (sr(sQL + c), region))
            p("s_add_u32 %s, %s, %d" % (sr(sDM), sr(sq + c), const + r * (step - 1024)))
            p("buffer_load_dwordx4 %s, %s, %s offen offset:%d lds" % (vr(va(n)), sr(srd_, 4), sr(sDM), r * 1024), tag)

        out.append(p.cap(one))
    return out


def stage_w(part, region, tag):
    return dma_groups(sQW, 8 * 3072, part * 1024, lambda n: vDmaW if n % 2 == 0 else vDmaW2, sW, region, tag)


def stage_wo(half, region, tag):
    return dma_groups(sQO, 4096, half * 262144, lambda n: vDmaO, sWO, region, tag)


def remap_m0(groups, region, n0):
    groups = list(groups)
    if groups and n0 % 4:
        groups[0] = p.cap(lambda: p("s_add_u32 m0, %s, %d" % (sr(sQL + (n0 >> 2)), region))) + groups[0]
    return groups


def quarter_tables():
    for c in range(4):
        if "--norot" in sys.argv:
            p("s_mov_b32 %s, %d" % (sr(sT0), c))
        else:
            p("s_add_u32 %s, %s, %d" % (sr(sT0), sr(sRG), c))
            p("s_and_b32 %s, %s, 3" % (sr(sT0), sr(sT0)))
        p("s_mul_i32 %s, %s, %d" % (sr(sQW + c), sr(sT0), 32 * 3072))
        p("s_lshl_b32 %s, %s, 14" % (sr(sQO + c), sr(sT0)))
        p("s_lshl_b32 %s, %s, 12" % (sr(sT0), sr(sT0)))
        p("s_add_u32 %s, %s, %s" % (sr(sQL + c), sr(sT0), sr(sWV14)))


def unstage(region, va, f, r0, step2):
    def body():
        base = va
        if region:
            p("v_add_u32 %s, 0x%x, %s" % (vr(vHi), region, vr(va)))
            base = vHi
        for n in range(16):
            for h in range(2):
                p("ds_read_b64_tr_b16 %s, %s offset:%d" % (vr(r0 + 4 * n + 2 * h, 2, f), vr(base), n * 4096 + h * step2))

    return p.cap(body)


def unstage_w(region, a0):
    return unstage(region, vTrW, "a", a0, 512)


def unstage_wo(region, f, r0):
    return unstage(region, vTrO, f, r0, 2048)


def mix(a, b, na, nb):
    out = []
    a, b = list(a), list(b)
    while a or b:
        for _ in range(na):
            if a:
                x = a.pop(0)
                out.extend(x if isinstance(x, list) else [x])
        for _ in range(nb):
            if b:
                x = b.pop(0)
                out.extend(x if isinstance(x, list) else [x])
    return out


def stats_compute(a, b):
    t = b
    p("v_pk_mul_f32 %s, %s, %s" % (vr(t + 2, 2), vr(vX, 2), vr(vX, 2)))
    p("v_pk_add_f32 %s, %s, %s" % (vr(t, 2), vr(vX, 2), vr(vX + 2, 2)))
    for e in range(2, 16, 2):
        p("v_pk_fma_f32 %s, %s, %s, %s" % (vr(t + 2, 2), vr(vX + e, 2), vr(vX + e, 2), vr(t + 2, 2)))
        if e >= 4:
            p("v_pk_add_f32 %s, %s, %s" % (vr(t, 2), vr(t, 2), vr(vX + e, 2)))
    p("v_add_f32 %s, %s, %s" % (vr(t), vr(t), vr(t + 1)))
    p("v_add_f32 %s, %s, %s" % (vr(t + 2), vr(t + 2), vr(t + 3)))
    p("v_permlane32_swap_b32 %s, %s" % (vr(t), vr(t + 2)))
    p("v_add_f32 %s, %s, %s" % (vr(a), vr(t), vr(t + 2)))
    p("v_min_u32 %s, -2, %s" % (vr(a), vr(a)))


def stats_issue(buf, soff):
    for u in range(4):
        p("buffer_load_dwordx4 %s, %s, %s, %s offen offset:%d sc1" % (vr(buf + 4 * u, 4), vr(vSTr), sr(sWS, 4), sr(soff), 512 * u))


def stats_finish(buf, vR, vNM):
    for u in (0, 8):
        p("v_pk_add_f32 %s, %s, %s" % (vr(buf + u, 2), vr(buf + u, 2), vr(buf + u + 2, 2)))
        p("v_pk_add_f32 %s, %s, %s" % (vr(buf + u + 4, 2), vr(buf + u + 4, 2), vr(buf + u + 6, 2)))
    p("v_pk_add_f32 %s, %s, %s" % (vr(buf, 2), vr(buf, 2), vr(buf + 4, 2)))
    p("v_pk_add_f32 %s, %s, %s" % (vr(buf + 8, 2), vr(buf + 8, 2), vr(buf + 12, 2)))
    p("v_pk_add_f32 %s, %s, %s" % (vr(buf, 2), vr(buf, 2), vr(buf + 8, 2)))
    p("v_permlane32_swap_b32 %s, %s" % (vr(buf), vr(buf + 1)))
    p("v_add_f32 %s, %s, %s" % (vr(buf), vr(buf), vr(buf + 1)))
    p("v_mul_f32 %s, %s, %s" % (vr(buf), sr(sINV512), vr(buf)))
    p("v_mov_b32 %s, %s" % (vr(buf + 1), vr(buf)))
    p("v_permlane32_swap_b32 %s, %s" % (vr(buf), vr(buf + 1)))
    p("v_fma_f32 %s, -%s, %s, %s" % (vr(buf + 1), vr(buf), vr(buf), vr(buf + 1)))
    p("v_max_f32 %s, 0, %s" % (vr(buf + 1), vr(buf + 1)))
    p("v_add_f32 %s, %s, %s" % (vr(buf + 1), sr(sEPS5), vr(buf + 1)))
    p("v_rsq_f32 %s, %s" % (vr(vR), vr(buf + 1)))
    p("v_mul_f32 %s, -%s, %s" % (vr(vNM), vr(buf), vr(vR)))


def prologue():
    p("s_cmp_ge_u32 s2, 256")
    p("s_cbranch_scc1 L_exit")
    kern = NAME + "_kernel"
    if SPIN == "entry":
        p("s_memrealtime s[74:75]")
    if PROFILE:
        p("s_memrealtime s[80:81]")
        p("s_memtime s[82:83]")
    for base, off in ((sK, 8), (sV, 16), (sWS, 88), (sSH, 24), (sH, 32), (sQ, 0), (sD, 40), (sW, 56), (sWO, 64), (sOUT, 72)):
        p("s_load_dwordx2 %s, s[0:1], %d" % (sr(base, 2), off))
    p("s_getpc_b64 %s" % sr(sP, 2))
    p("s_and_b32 %s, %s, 0xffffff00" % (sr(sP), sr(sP)))
    p("s_lshr_b32 %s, s2, 3" % sr(sJ))
    p("s_lshl_b32 %s, %s, 10" % (sr(sT0), sr(sJ)))
    p("v_lshl_add_u32 %s, v0, 7, %s" % (vr(S0), sr(sT0)))
    p("v_min_u32 %s, L_exit-%s, %s" % (vr(S0), kern, vr(S0)))
    p("v_cmp_gt_u32 vcc, 8, v0")
    p("s_and_saveexec_b64 %s, vcc" % sr(sTS, 2))
    p("s_cbranch_execz L_nopf")
    p("global_load_dword %s, %s, %s" % (vr(S0 + 1), vr(S0), sr(sP, 2)))
    p.label("L_nopf")
    p("s_mov_b64 exec, -1")
    if PROFILE:
        p("v_mov_b32 %s, 0" % vr(vPROF))
        p("v_mov_b32 %s, 0" % vr(vPROF + 1))
    p("s_and_b32 %s, s2, 7" % sr(sX))
    p("v_lshrrev_b32 %s, 6, v0" % vr(S0 + 2))
    p("v_and_b32 %s, 63, v0" % vr(vLANE))
    p("v_readfirstlane_b32 %s, %s" % (sr(sWV), vr(S0 + 2)))
    srd(sK, 2097152)
    srd(sV, 2097152)
    srd(sSH, 4096)
    p("s_mov_b32 %s, 4096" % sr(sC4096))


def prologue2():
    srd(sWS, WS_BYTES)
    srd(sH, 2097152)
    srd(sQ, 2097152)
    srd(sW, 1572864)
    p("s_lshl_b32 %s, %s, %d" % (sr(sCLS), sr(sX), CLS_SHIFT))
    sadd(sCLS, sCLS, CLS)
    p("s_lshr_b32 %s, %s, 2" % (sr(sG32L), sr(sJ)))
    p("s_and_b32 %s, %s, 3" % (sr(sKS), sr(sJ)))
    p("s_lshl_b32 %s, %s, 2" % (sr(sKS), sr(sKS)))
    p("s_add_u32 %s, %s, %s" % (sr(sKS), sr(sKS), sr(sWV)))


def prologue3():
    srd(sWO, 524288)
    srd(sOUT, 2097152)
    p("s_mov_b32 %s, 0xffff0000" % sr(sMASK))
    p("s_getreg_b32 %s, hwreg(HW_REG_XCC_ID, 0, 4)" % sr(sXCC))
    p("s_mov_b32 %s, 200000" % sr(sLIM))
    p("s_mov_b32 %s, 0" % sr(sERR))
    p("s_mov_b32 %s, 0x358637bd" % sr(sEPS6))
    p("s_mov_b32 %s, 0x3fb8aa3b" % sr(sL2E2))
    p("s_mov_b32 %s, 0x3fb8aa3b" % sr(sL2E2 + 1))
    p("s_mov_b32 %s, 0x3727c5ac" % sr(sEPS5))
    p("s_mov_b32 %s, 0x3b000000" % sr(sINV512))
    p("s_lshr_b32 %s, %s, 3" % (sr(sRG), sr(sJ)))
    p("s_and_b32 %s, %s, 7" % (sr(sM), sr(sJ)))
    p("s_lshl_b32 %s, %s, 14" % (sr(sWV14), sr(sWV)))
    p("s_lshl_b32 %s, %s, 3" % (sr(sG32), sr(sX)))
    p("s_add_u32 %s, %s, %s" % (sr(sG32), sr(sG32), sr(sG32L)))


vLANE = S0 + 3
vKA, vKB, vUT, vT = S0 + 4, S0 + 5, S0 + 6, S0 + 7
KK = S0 + 8
VV = S0 + 20
SH = S0 + 28
HE = S0 + 32
X0 = S0 + 44
KF = S0 + 52
WF = S0 + 74
UF = S0 + 82
UP = S0 + 98
VF = S0 + 106
vST0 = S0 + 119
vDUM = 191
FF = S0 + 112
vHA, vHB, vCL = S0 + 116, S0 + 117, S0 + 118
NPB = opt("npb", 3)


def p0_pair_chunk(vp, vc):
    nb = 5 - NPB
    p("v_and_b32 %s, %d, v0" % (vp, (1 << NPB) - 1))
    if nb:
        p("v_bfe_u32 %s, v0, 6, %d" % (vc, nb))
        p("v_lshl_add_u32 %s, %s, %d, %s" % (vp, vc, NPB, vp))
    if NPB == 5:
        p("v_lshrrev_b32 %s, 5, v0" % vc)
        return
    p("v_bfe_u32 %s, v0, %d, %d" % (vc, NPB, 6 - NPB))
    if nb < 2:
        p("v_lshrrev_b32 %s, %d, v0" % (vr(VF), 6 + nb))
        p("v_lshl_add_u32 %s, %s, %d, %s" % (vc, vr(VF), 6 - NPB, vc))


def p0_issue():
    l = vr(vLANE)
    t = vr(vT)
    p("s_lshl_b32 %s, %s, 7" % (sr(sT0), sr(sX)))
    p("s_lshl_b32 %s, %s, 16" % (sr(sT1), sr(sJ)))
    p("s_add_u32 %s, %s, %s" % (sr(sT1), sr(sT1), sr(sT0)))
    p0_pair_chunk(t, vr(vKA))
    p("v_lshlrev_b32 %s, 13, %s" % (vr(vKA), vr(vKA)))
    p("v_lshl_add_u32 %s, %s, 2, %s" % (vr(vKB), t, vr(vKA)))
    p("v_add_u32 %s, %s, %s" % (vr(vKB), sr(sT1), vr(vKB)))
    p("v_add_u32 %s, 0xfffff400, %s" % (vr(vKA), vr(vKB)))
    p("v_lshlrev_b32 %s, 4, %s" % (vr(vUT), t))
    p("s_lshl_b32 %s, %s, 2" % (sr(sT2), sr(sT0)))
    p.waitlg()
    if PROFILE:
        stamps.append("entry")
        p("v_writelane_b32 %s, s80, 0" % vr(vPROF))
        p("v_writelane_b32 %s, s82, 0" % vr(vPROF + 1))
    stamp("kernarg")
    p("buffer_load_dwordx4 %s, %s, %s, %s offen" % (vr(SH, 4), vr(vUT), sr(sSH, 4), sr(sT2)))
    for r in range(3):
        p("buffer_load_dword %s, %s, %s, 0 offen offset:%d" % (vr(KK + r), vr(vKA), sr(sK, 4), 1024 * r))
    for r in range(8):
        so = "0" if r < 4 else sr(sC4096)
        p("buffer_load_dword %s, %s, %s, %s offen offset:%d" % (vr(KK + 3 + r), vr(vKB), sr(sK, 4), so, 1024 * (r % 4)))
    for r in range(8):
        so = "0" if r < 4 else sr(sC4096)
        p("buffer_load_dword %s, %s, %s, %s offen offset:%d" % (vr(VV + r), vr(vKB), sr(sV, 4), so, 1024 * (r % 4)), "kv")
    if WSOFF:
        p("s_add_u32 %s, %s, 0x%x" % (sr(sWS), sr(sWS), WSOFF))
        p("s_addc_u32 %s, %s, 0" % (sr(sWS + 1), sr(sWS + 1)))
    p("s_load_dwordx2 %s, %s, %d" % (sr(sTAG, 2), sr(sWS, 2), EPOCH))
    prologue2()
    p("s_lshl_b32 %s, %s, 5" % (sr(sT0), sr(sX)))
    p("s_add_u32 %s, %s, %s" % (sr(sT0), sr(sT0), sr(sJ)))
    p("s_lshl_b32 %s, %s, 2" % (sr(sT1), sr(sT0)))
    p("s_add_u32 %s, %s, %s" % (sr(sD), sr(sD), sr(sT1)))
    p("s_addc_u32 %s, %s, 0" % (sr(sD + 1), sr(sD + 1)))
    p("s_load_dword %s, %s, 0" % (sr(sDV), sr(sD, 2)))
    p("s_lshl_b32 %s, %s, 13" % (sr(sT0), sr(sT0)))
    p("v_lshlrev_b32 %s, 5, v0" % vr(vHA))
    p("v_add_u32 %s, %s, %s" % (vr(vHA), sr(sT0), vr(vHA)))
    p("v_add_u32 %s, -8, %s" % (vr(vHB), vr(vHA)))
    p("buffer_load_dwordx2 %s, %s, %s, 0 offen" % (vr(HE, 2), vr(vHB), sr(sH, 4)))
    p("buffer_load_dwordx4 %s, %s, %s, 0 offen" % (vr(HE + 2, 4), vr(vHA), sr(sH, 4)))
    p("buffer_load_dwordx4 %s, %s, %s, 0 offen offset:16" % (vr(HE + 6, 4), vr(vHA), sr(sH, 4)))
    p("v_lshlrev_b32 %s, 3, %s" % (vr(vL8), l))
    if opt("t0", 1):
        p("s_lshl_b32 %s, %s, 7" % (sr(sT0), sr(sWV)))
        p("s_lshl_b32 %s, %s, 10" % (sr(sT1), sr(sJ)))
        sadd(sT1, sT1, st_off(0))
        p("v_mov_b32 %s, 0x%x" % (t, C_FLAGA))
        p("v_writelane_b32 %s, %s, 1" % (t, sr(sT1)))
        sadd(sT1, sT1, 512)
        p("v_writelane_b32 %s, %s, 2" % (t, sr(sT1)))
        p("s_add_u32 %s, %s, %s" % (sr(sT0), sr(sT0), sr(sCLS)))
        p("s_mov_b64 exec, 7")
        p("buffer_load_dword %s, %s, %s, %s offen sc1" % (vr(vDUM), t, sr(sWS, 4), sr(sT0)))
        p("s_mov_b64 exec, -1")
    p("s_lshl_b32 %s, %s, 18" % (sr(sT0), sr(sX)))
    p("s_lshl_b32 %s, %s, 15" % (sr(sT1), sr(sG32L)))
    p("s_add_u32 %s, %s, %s" % (sr(sT0), sr(sT0), sr(sT1)))
    p("s_lshl_b32 %s, %s, 6" % (sr(sT1), sr(sKS)))
    p("s_add_u32 %s, %s, %s" % (sr(sT0), sr(sT0), sr(sT1)))
    p("v_and_b32 %s, 31, %s" % (t, l))
    p("v_lshlrev_b32 %s, 10, %s" % (vr(vXrow), t))
    p("v_and_b32 %s, 32, %s" % (t, l))
    p("v_add3_u32 %s, %s, %s, %s" % (vr(vXrow), vr(vXrow), t, sr(sT0)))
    p("buffer_load_dwordx4 %s, %s, %s, 0 offen" % (vr(X0, 4), vr(vXrow), sr(sQ, 4)))
    p("buffer_load_dwordx4 %s, %s, %s, 0 offen offset:16" % (vr(X0 + 4, 4), vr(vXrow), sr(sQ, 4)))
    if "--touch" in sys.argv:
        p("v_lshrrev_b32 %s, 4, v0" % t)
        p("v_mul_u32_u24 %s, 0xc00, %s" % (t, t))
        p("v_and_b32 %s, 15, v0" % vr(VF))
        p("v_lshl_add_u32 %s, %s, 7, %s" % (t, vr(VF), t))
        p("s_mul_i32 %s, %s, %d" % (sr(sT0), sr(sJ), 16 * 3072))
        p("buffer_load_dword %s, %s, %s, %s offen offset:1024" % (vr(vDUM), t, sr(sW, 4), sr(sT0)))
    prologue3()


def touch_w2():
    t, t2 = vr(vCL), vr(vCY)
    lo, done = p.newlabel("tw"), p.newlabel("tw")
    p("s_cmp_lt_u32 %s, 2" % sr(sWV))
    p("s_cbranch_scc1 %s" % lo)
    p("v_and_b32 %s, 127, v0" % t)
    p("v_lshlrev_b32 %s, 7, %s" % (t, t))
    p("s_lshl_b32 %s, %s, 14" % (sr(sDM), sr(sJ)))
    p("buffer_load_dword %s, %s, %s, %s offen" % (vr(vDUM), t, sr(sWO, 4), sr(sDM)))
    p("s_branch %s" % done)
    p.label(lo)
    p("v_lshrrev_b32 %s, 3, v0" % t)
    p("v_mul_u32_u24 %s, 0xc00, %s" % (t, t))
    p("v_and_b32 %s, 7, v0" % t2)
    p("v_lshl_add_u32 %s, %s, 7, %s" % (t, t2, t))
    p("s_mul_i32 %s, %s, %d" % (sr(sDM), sr(sJ), 16 * 3072))
    p("buffer_load_dword %s, %s, %s, %s offen" % (vr(vDUM), t, sr(sW, 4), sr(sDM)))
    p.label(done)


def clear_setup():
    for r in range(4):
        p("v_mov_b32 %s, -1" % vr(FF + r))
    p("v_lshlrev_b32 %s, 4, v0" % vr(vCL))


def clear_partials(L):
    skip = p.newlabel("clr")
    p("s_cmp_gt_u32 %s, 2" % sr(sWV))
    p("s_cbranch_scc1 %s" % skip)
    p("s_mul_i32 %s, s2, 2304" % sr(sT0))
    sadd(sT0, sT0, KVP + L * KVL)
    p("v_cmp_gt_u32 vcc, 0x90, v0")
    p("s_mov_b64 exec, vcc")
    p("buffer_store_dwordx4 %s, %s, %s, %s offen sc1" % (vr(FF, 4), vr(vCL), sr(sWS, 4), sr(sT0)), "clr")
    p("s_mov_b64 exec, -1")
    p.label(skip)


def clear_groups():
    line = lambda va, so: "buffer_store_dwordx4 %s, %s, %s, %s offen" % (vr(FF, 4), vr(va), sr(sWS, 4), sr(so))

    def g3():
        p("s_mul_i32 %s, %s, 5120" % (sr(sT1), sr(sJ)))
        p("s_add_u32 %s, %s, %s" % (sr(sT1), sr(sT1), sr(sCLS)))
        sadd(sT1, sT1, C_STATE)
        local_stores([line(vCL, sT1)], "clr")

    def g4():
        skip = p.newlabel("clr")
        p("s_cmp_lg_u32 %s, 0" % sr(sWV))
        p("s_cbranch_scc1 %s" % skip)
        sadd(sT1, sT1, 4096)
        local_stores([line(vL16, sT1)], "clr")
        p.label(skip)

    return [p.cap(g) for g in (g3, g4)]


def addresses():
    l = vr(vLANE)
    t, t2, t3 = vr(vT), vr(VF), vr(VF + 1)
    a, b = vr(VF + 2), vr(VF + 3)
    p("v_lshlrev_b32 %s, 4, %s" % (vr(vL16), l))
    p("s_mul_i32 %s, %s, %d" % (sr(sT0), sr(sWV), 128 * 3072))
    p("s_lshl_b32 %s, %s, 7" % (sr(sT1), sr(sM)))
    p("s_add_u32 %s, %s, %s" % (sr(sT0), sr(sT0), sr(sT1)))
    p("v_lshrrev_b32 %s, 3, %s" % (a, l))
    p("v_and_b32 %s, 2, %s" % (b, a))
    p("v_mul_u32_u24 %s, 0xc00, %s" % (a, a))
    p("v_xor_b32 %s, %s, %s" % (b, l, b))
    p("v_and_b32 %s, 7, %s" % (b, b))
    p("v_lshl_add_u32 %s, %s, 4, %s" % (a, b, a))
    p("v_add_u32 %s, %s, %s" % (vr(vDmaW), sr(sT0), a))
    p("v_xor_b32 %s, 64, %s" % (vr(vDmaW2), vr(vDmaW)))
    p("s_lshl_b32 %s, %s, 16" % (sr(sT0), sr(sG32)))
    p("s_lshl_b32 %s, %s, 12" % (sr(sT1), sr(sKS)))
    p("s_add_u32 %s, %s, %s" % (sr(sT0), sr(sT0), sr(sT1)))
    p("v_and_b32 %s, 31, %s" % (t, l))
    p("v_lshrrev_b32 %s, 5, %s" % (t2, l))
    p("v_lshlrev_b32 %s, 11, %s" % (t3, t2))
    p("v_bfe_u32 %s, %s, 1, 1" % (a, t))
    p("v_lshl_add_u32 %s, %s, 7, %s" % (t3, a, t3))
    p("v_lshrrev_b32 %s, 2, %s" % (a, t))
    p("v_lshl_add_u32 %s, %s, 4, %s" % (t3, a, t3))
    p("v_and_b32 %s, 1, %s" % (a, t))
    p("v_lshl_add_u32 %s, %s, 3, %s" % (vr(vYa), a, t3))
    p("v_add_u32 %s, %s, %s" % (vr(vYa), sr(sT0), vr(vYa)))
    p("s_lshl_b32 %s, %s, 12" % (sr(sT2), sr(sG32L)))
    p("s_lshr_b32 %s, %s, 1" % (sr(sT1), sr(sKS)))
    p("s_lshl_b32 %s, %s, 9" % (sr(sT1), sr(sT1)))
    p("s_add_u32 %s, %s, %s" % (sr(sT0), sr(sT2), sr(sT1)))
    p("s_and_b32 %s, %s, 1" % (sr(sT1), sr(sKS)))
    p("s_lshl_b32 %s, %s, 3" % (sr(sT1), sr(sT1)))
    p("s_add_u32 %s, %s, %s" % (sr(sT0), sr(sT0), sr(sT1)))
    p("v_lshlrev_b32 %s, 2, %s" % (t3, t2))
    p("v_lshl_add_u32 %s, %s, 4, %s" % (vr(vSTw), t, t3))
    p("v_add_u32 %s, %s, %s" % (vr(vSTw), sr(sT0), vr(vSTw)))
    p("v_lshlrev_b32 %s, 11, %s" % (t3, t2))
    p("v_lshl_add_u32 %s, %s, 4, %s" % (vr(vSTr), t, t3))
    p("v_add_u32 %s, %s, %s" % (vr(vSTr), sr(sT2), vr(vSTr)))
    p("s_lshl_b32 %s, %s, 15" % (sr(sT0), sr(sG32L)))
    p("s_lshl_b32 %s, %s, 10" % (sr(sT1), sr(sKS)))
    p("s_add_u32 %s, %s, %s" % (sr(sT0), sr(sT0), sr(sT1)))
    p("v_lshrrev_b32 %s, 4, %s" % (t3, t))
    p("v_lshlrev_b32 %s, 14, %s" % (vr(vXw), t3))
    p("v_lshl_add_u32 %s, %s, 9, %s" % (vr(vXw), t2, vr(vXw)))
    p("v_and_b32 %s, 15, %s" % (t, l))
    p("v_lshl_add_u32 %s, %s, 4, %s" % (vr(vXw), t, vr(vXw)))
    p("v_add_u32 %s, %s, %s" % (vr(vXw), sr(sT0), vr(vXw)))
    p("v_lshrrev_b32 %s, 4, %s" % (t2, l))
    p("s_lshl_b32 %s, %s, 13" % (sr(sT0), sr(sRG)))
    p("s_lshr_b32 %s, %s, 1" % (sr(sT1), sr(sWV)))
    p("s_lshl_b32 %s, %s, 12" % (sr(sT1), sr(sT1)))
    p("s_add_u32 %s, %s, %s" % (sr(sT0), sr(sT0), sr(sT1)))
    p("s_and_b32 %s, %s, 1" % (sr(sT1), sr(sWV)))
    p("s_lshl_b32 %s, %s, 8" % (sr(sT1), sr(sT1)))
    p("s_add_u32 %s, %s, %s" % (sr(sT0), sr(sT0), sr(sT1)))
    p("v_lshlrev_b32 %s, 10, %s" % (t3, t2))
    p("v_lshl_add_u32 %s, %s, 4, %s" % (vr(vSTr2), t, t3))
    p("v_add_u32 %s, %s, %s" % (vr(vSTr2), sr(sT0), vr(vSTr2)))
    p("s_lshl_b32 %s, %s, 6" % (sr(sT0), sr(sWV)))
    sadd(sT0, sT0, TB)
    p("v_and_b32 %s, 1, %s" % (t3, t2))
    p("v_lshlrev_b32 %s, 8, %s" % (t3, t3))
    p("v_lshl_add_u32 %s, %s, 2, %s" % (vr(vTBw), t, t3))
    p("v_add_u32 %s, %s, %s" % (vr(vTBw), sr(sT0), vr(vTBw)))
    p("v_lshrrev_b32 %s, 1, %s" % (t3, t2))
    p("v_lshlrev_b32 %s, 9, %s" % (vr(vSTATEw), t3))
    p("v_lshl_add_u32 %s, %s, 4, %s" % (vr(vSTATEw), t, vr(vSTATEw)))
    p("v_and_b32 %s, 1, %s" % (t3, t2))
    p("v_lshl_add_u32 %s, %s, 3, %s" % (vr(vSTATEw), t3, vr(vSTATEw)))
    p("s_lshl_b32 %s, %s, 19" % (sr(sT0), sr(sX)))
    p("s_lshl_b32 %s, %s, 17" % (sr(sT1), sr(sRG)))
    p("s_add_u32 %s, %s, %s" % (sr(sT0), sr(sT0), sr(sT1)))
    p("s_lshl_b32 %s, %s, 2" % (sr(sT1), sr(sM)))
    p("s_add_u32 %s, %s, %s" % (sr(sT1), sr(sT1), sr(sWV)))
    p("s_lshl_b32 %s, %s, 10" % (sr(sT1), sr(sT1)))
    p("s_add_u32 %s, %s, %s" % (sr(sT0), sr(sT0), sr(sT1)))
    p("v_add_u32 %s, %s, %s" % (vr(vPQw), sr(sT0), vr(vSTATEw)))
    p("v_lshlrev_b32 %s, 4, %s" % (vr(vTB1), t2))
    p("v_add_u32 %s, 0x%x, %s" % (vr(vTB1), TB, vr(vTB1)))
    p("v_lshlrev_b32 %s, 2, %s" % (vr(vTB2), t))
    p("v_add_u32 %s, 0x%x, %s" % (vr(vTB2), TB, vr(vTB2)))
    p("v_lshlrev_b32 %s, 4, %s" % (t3, t2))
    p("v_lshl_add_u32 %s, %s, 6, %s" % (vr(vZr), t, t3))
    p("v_and_b32 %s, 1, %s" % (a, t))
    p("v_lshlrev_b32 %s, 4, %s" % (a, a))
    p("v_mov_b32 %s, 0x3f80" % b)
    p("v_lshlrev_b32 %s, %s, %s" % (a, a, b))
    p("v_lshrrev_b32 %s, 1, %s" % (b, t))
    p("v_lshlrev_b32 %s, 1, %s" % (t3, t2))
    p("v_cmp_eq_u32 vcc, %s, %s" % (b, t3))
    p("v_add_u32 %s, 1, %s" % (t3, t3))
    p("v_mov_b32 %s, 0x3f803f80" % vr(vONE))
    p("v_cndmask_b32 %s, 0, %s, vcc" % (vr(vSEL), a))
    p("v_cmp_eq_u32 vcc, %s, %s" % (b, t3))
    for r in range(1, 4):
        p("v_mov_b32 %s, %s" % (vr(vONE + r), vr(vONE)))
    p("v_cndmask_b32 %s, 0, %s, vcc" % (vr(vSEL + 1), a))
    p("v_mov_b32 %s, %s" % (vr(vSEL + 2), vr(vSEL)))
    p("v_mov_b32 %s, %s" % (vr(vSEL + 3), vr(vSEL + 1)))
    p("v_lshrrev_b32 %s, 2, %s" % (a, t))
    p("v_lshl_add_u32 %s, %s, 3, %s" % (a, t2, a))
    p("v_bfe_u32 %s, %s, 1, 1" % (b, a))
    p("v_and_b32 %s, 1, %s" % (t3, t2))
    p("v_lshl_add_u32 %s, %s, 1, %s" % (b, t3, b))
    p("v_xor_b32 %s, %s, %s" % (b, sr(sWV), b))
    p("v_lshlrev_b32 %s, 7, %s" % (a, a))
    p("v_lshl_add_u32 %s, %s, 5, %s" % (a, b, a))
    p("v_and_b32 %s, 3, %s" % (b, t))
    p("v_lshl_add_u32 %s, %s, 3, %s" % (vr(vTrW), b, a))
    p("v_lshrrev_b32 %s, 2, %s" % (a, t))
    p("v_xor_b32 %s, %s, %s" % (b, sr(sWV), a))
    p("v_lshlrev_b32 %s, 6, %s" % (b, b))
    p("v_lshl_add_u32 %s, %s, 8, %s" % (b, a, b))
    p("v_lshrrev_b32 %s, 1, %s" % (a, t2))
    p("v_lshl_add_u32 %s, %s, 10, %s" % (b, a, b))
    p("v_and_b32 %s, 1, %s" % (a, t2))
    p("v_lshl_add_u32 %s, %s, 4, %s" % (b, a, b))
    p("v_and_b32 %s, 1, %s" % (a, t))
    p("v_lshl_add_u32 %s, %s, 5, %s" % (b, a, b))
    p("v_bfe_u32 %s, %s, 1, 1" % (a, t))
    p("v_lshl_add_u32 %s, %s, 3, %s" % (vr(vTrO), a, b))
    p("s_lshl_b32 %s, %s, 16" % (sr(sT0), sr(sWV)))
    p("s_and_b32 %s, %s, 3" % (sr(sT1), sr(sJ)))
    p("s_lshl_b32 %s, %s, 8" % (sr(sT1), sr(sT1)))
    p("s_add_u32 %s, %s, %s" % (sr(sT0), sr(sT0), sr(sT1)))
    p("v_lshlrev_b32 %s, 2, %s" % (a, t2))
    p("v_xor_b32 %s, %s, %s" % (a, t, a))
    p("v_lshlrev_b32 %s, 4, %s" % (a, a))
    p("v_lshl_add_u32 %s, %s, 10, %s" % (a, t2, a))
    p("v_add_u32 %s, %s, %s" % (vr(vDmaO), sr(sT0), a))


def p0_compute():
    for d in range(4):
        src0 = SH + (d >> 1)
        src1 = SH + 2 + (d >> 1)
        if d & 1:
            p("v_and_b32 %s, %s, %s" % (vr(WF + 2 * d), sr(sMASK), vr(src0)))
            p("v_and_b32 %s, %s, %s" % (vr(WF + 2 * d + 1), sr(sMASK), vr(src1)))
        else:
            p("v_lshlrev_b32 %s, 16, %s" % (vr(WF + 2 * d), vr(src0)))
            p("v_lshlrev_b32 %s, 16, %s" % (vr(WF + 2 * d + 1), vr(src1)))
    for r in range(11):
        unpack(KF + 2 * r, KK + r)
    for t in range(8):
        p("v_pk_mul_f32 %s, %s, %s" % (vr(UF + 2 * t, 2), vr(KF + 2 * t, 2), vr(WF + 6, 2)))
    for d in (2, 1, 0):
        for t in range(8):
            p("v_pk_fma_f32 %s, %s, %s, %s" % (vr(UF + 2 * t, 2), vr(KF + 2 * (t + 3 - d), 2), vr(WF + 2 * d, 2), vr(UF + 2 * t, 2)))
    for t in range(8):
        unpack(KF + 2 * t, VV + t)
    for t in range(8):
        p("v_pk_mul_f32 %s, %s, %s" % (vr(UF + 2 * t, 2), vr(UF + 2 * t, 2), vr(KF + 2 * t, 2)))
    for c in range(2):
        for n in range(4):
            p("v_cvt_pk_bf16_f32 %s, %s, %s" % (vr(UP + 4 * c + n), vr(UF + 2 * (7 - 2 * n) + c), vr(UF + 2 * (6 - 2 * n) + c)))
        p("buffer_store_dwordx4 %s, %s, %s, %s offen sc1" % (vr(UP + 4 * c, 4), vr(vUT), sr(sWS, 4), sr(sCLS if c == 0 else sT3)), "ut")


def ut_address():
    t = vr(vT)
    p("s_lshl_b32 %s, %s, 7" % (sr(sT1), sr(sJ)))
    p("s_sub_u32 %s, 4080, %s" % (sr(sT0), sr(sT1)))
    p0_pair_chunk(vr(vUT), t)
    p("v_lshlrev_b32 %s, 13, %s" % (vr(vUT), vr(vUT)))
    p("v_lshlrev_b32 %s, 4, %s" % (t, t))
    p("v_sub_u32 %s, %s, %s" % (vr(vUT), vr(vUT), t))
    p("v_add_u32 %s, %s, %s" % (vr(vUT), sr(sT0), vr(vUT)))
    sadd(sT3, sCLS, 4096)


def h_copies():
    A, B = KF, KF + 8
    C = KF + 16
    t = vr(vT)
    wa = vr(vHA)
    p("v_and_b32 %s, 127, v0" % t)
    p("s_lshr_b32 %s, %s, 1" % (sr(sT0), sr(sWV)))
    p("s_lshl_b32 %s, %s, 16" % (sr(sT1), sr(sDV)))
    p("s_and_b32 %s, %s, %s" % (sr(sT2), sr(sDV), sr(sMASK)))
    p("s_cmp_eq_u32 %s, 0" % sr(sT0))
    p("s_cselect_b32 %s, %s, %s" % (sr(sT1), sr(sT1), sr(sT2)))
    p("v_cmp_eq_u32 vcc, 0, %s" % t)
    p("v_lshlrev_b32 %s, 16, %s" % (vr(C), vr(HE + 2)))
    p("v_add_f32 %s, %s, %s" % (vr(C), sr(sT1), vr(C)))
    p("v_cvt_pk_bf16_f32 %s, %s, %s" % (vr(C), vr(C), vr(C)))
    p("v_bfi_b32 %s, %s, %s, %s" % (vr(C), sr(sMASK), vr(HE + 2), vr(C)))
    p("v_cndmask_b32 %s, %s, %s, vcc" % (vr(HE + 2), vr(HE + 2), vr(C)))
    p("v_cndmask_b32_e64 %s, %s, 0, vcc" % (vr(HE), vr(HE)))
    p("v_cndmask_b32_e64 %s, %s, 0, vcc" % (vr(HE + 1), vr(HE + 1)))
    p("s_mul_i32 %s, %s, %d" % (sr(sT0), sr(sT0), HCH))
    sadd(sT0, sT0, HB + 32)
    p("v_lshlrev_b32 %s, 5, %s" % (wa, t))
    p("v_add_u32 %s, %s, %s" % (wa, sr(sT0), wa))
    p("ds_write_b128 %s, %s offset:%d" % (wa, vr(HE + 2, 4), 3 * HCOPY))
    p("ds_write_b128 %s, %s offset:%d" % (wa, vr(HE + 6, 4), 3 * HCOPY + 16))
    for n in range(8):
        p("v_alignbit_b32 %s, %s, %s, 16" % (vr(A + n), vr(HE + n + 1), vr(HE + n)))
    p("ds_write_b128 %s, %s offset:%d" % (wa, vr(A, 4), 0))
    p("ds_write_b128 %s, %s offset:%d" % (wa, vr(A + 4, 4), 16))
    for n in range(8):
        p("v_alignbit_b32 %s, %s, %s, 16" % (vr(B + n), vr(HE + n + 2), vr(HE + n + 1)))
    p("ds_write_b128 %s, %s offset:%d" % (wa, vr(B, 4), 2 * HCOPY))
    p("ds_write_b128 %s, %s offset:%d" % (wa, vr(B + 4, 4), 2 * HCOPY + 16))
    for n in range(8):
        p("v_mov_b32 %s, %s" % (vr(UF + n), vr(HE + n + 1)))
    p("ds_write_b128 %s, %s offset:%d" % (wa, vr(UF, 4), HCOPY))
    p("ds_write_b128 %s, %s offset:%d" % (wa, vr(UF + 4, 4), HCOPY + 16))


def lds_zero():
    z = KF
    t, a = vr(vT), vr(vHB)
    for r in range(4):
        p("v_mov_b32 %s, 0" % vr(z + r))
    skip = p.newlabel("zero")
    skip2 = p.newlabel("zero")
    p("s_cmp_lg_u32 %s, 0" % sr(sWV))
    p("s_cbranch_scc1 %s" % skip)
    p("v_lshrrev_b32 %s, 5, v0" % t)
    p("v_mul_u32_u24 %s, %d, %s" % (a, UCH - 512, t))
    p("v_lshl_add_u32 %s, v0, 4, %s" % (a, a))
    p("v_add_u32 %s, 0x%x, %s" % (a, UB + 4096, a))
    p("ds_write_b128 %s, %s" % (a, vr(z, 4)))
    p.label(skip)
    p("s_cmp_lg_u32 %s, 1" % sr(sWV))
    p("s_cbranch_scc1 %s" % skip2)
    p("v_bfe_u32 %s, v0, 1, 3" % t)
    p("v_mul_u32_u24 %s, %d, %s" % (a, HCOPY, t))
    p("v_and_b32 %s, 1, v0" % t)
    p("v_lshl_add_u32 %s, %s, 4, %s" % (a, t, a))
    p("v_add_u32 %s, 0x%x, %s" % (a, HB, a))
    p("ds_write_b128 %s, %s" % (a, vr(z, 4)))
    p.label(skip2)


def afrag_preload():
    l = vr(vLANE)
    a, t = vr(vHA), vr(vT)
    p("s_lshr_b32 %s, %s, 1" % (sr(sT0), sr(sWV)))
    p("s_mul_i32 %s, %s, %d" % (sr(sT0), sr(sT0), HCH))
    p("s_and_b32 %s, %s, 1" % (sr(sT1), sr(sWV)))
    p("s_lshl_b32 %s, %s, 8" % (sr(sT1), sr(sT1)))
    p("s_add_u32 %s, %s, %s" % (sr(sT0), sr(sT0), sr(sT1)))
    sadd(sT0, sT0, HB + 8)
    p("v_and_b32 %s, 3, %s" % (t, l))
    p("v_mul_u32_u24 %s, %d, %s" % (a, HCOPY, t))
    p("v_and_b32 %s, 12, %s" % (t, l))
    p("v_lshl_add_u32 %s, %s, 1, %s" % (a, t, a))
    p("v_and_b32 %s, 48, %s" % (t, l))
    p("v_add3_u32 %s, %s, %s, %s" % (a, a, t, sr(sT0)))
    for rho in range(4):
        for aa in range(8):
            off = 512 * aa + 64 * rho
            r = aH + 4 * (8 * rho + aa)
            p("ds_read_b64 %s, %s offset:%d" % (ar(r, 2), a, off))
            p("ds_read_b64 %s, %s offset:%d" % (ar(r + 2, 2), a, off + 8))


def handoff_ut():
    F = KF
    E = KF + 4
    FB = KF + 8
    top, fast, got = p.newlabel("h1"), p.newlabel("h1fast"), p.newlabel("h1got")
    slow, slowtop = p.newlabel("h1slow"), p.newlabel("h1slowtop")
    sadd(sT0, sCLS, C_FLAGA)
    p("v_and_b32 %s, 0xff, %s" % (vr(E), vr(vL8)))
    p("s_lshl_b32 %s, %s, 13" % (sr(sT3), sr(sJ)))
    p("s_add_u32 %s, %s, %s" % (sr(sT3), sr(sT3), sr(sCLS)))
    p("s_lshl_b32 %s, %s, 11" % (sr(sT1), sr(sWV)))
    p("s_add_u32 %s, %s, %s" % (sr(sT3), sr(sT3), sr(sT1)))
    p("s_lshr_b32 %s, %s, 1" % (sr(sT2), sr(sWV)))
    p("s_lshl_b32 %s, %s, 9" % (sr(sT2), sr(sT2)))
    p("s_add_u32 %s, %s, %s" % (sr(sT1), sr(sT1), sr(sT2)))
    p("s_add_u32 m0, %s, %d" % (sr(sT1), UB))
    p("s_mov_b32 %s, %d" % (sr(sCNT), 0 if FORCE_SLOW else 48))
    p("s_mov_b32 %s, 1" % sr(sMODE))
    p.label(top)
    p("buffer_load_dwordx2 %s, %s, %s, %s offen sc1" % (vr(F, 2), vr(E), sr(sWS, 4), sr(sT0)))
    p("v_cmp_ne_u64 vcc, %s, %s" % (sr(sP, 2), vr(F, 2)))
    if not FORCE_SLOW:
        p("s_cbranch_vccz %s" % got)
    p("s_sub_u32 %s, %s, 1" % (sr(sCNT), sr(sCNT)))
    p("s_cbranch_scc0 %s" % top)
    p("s_branch %s" % slow)
    p.label(got)

    def blk():
        p.label(slow)
        p("s_lshl_b32 %s, %s, 8" % (sr(sT1), sr(sX)))
        sadd(sT1, sT1, FLAGB)
        p("s_lshl_b32 %s, %s, 3" % (sr(sT2), sr(sJ)))
        p("s_add_u32 %s, %s, %s" % (sr(sT2), sr(sT2), sr(sT1)))
        flag_store(sT2, local=False)
        p("s_mov_b32 %s, %s" % (sr(sCNT), sr(sLIM)))
        p.label(slowtop)
        p("buffer_load_dwordx2 %s, %s, %s, %s offen sc1" % (vr(F, 2), vr(E), sr(sWS, 4), sr(sT0)))
        p("buffer_load_dwordx2 %s, %s, %s, %s offen sc1" % (vr(FB, 2), vr(E), sr(sWS, 4), sr(sT1)))
        p("s_mov_b32 %s, 1" % sr(sMODE))
        if not FORCE_SLOW:
            p("v_cmp_ne_u64 vcc, %s, %s" % (sr(sP, 2), vr(F, 2)))
            p("s_cbranch_vccz %s" % got)
        p("s_mov_b32 %s, 0" % sr(sMODE))
        p("v_cmp_ne_u64 vcc, %s, %s" % (sr(sTAG, 2), vr(FB, 2)))
        p("s_cbranch_vccz %s" % got)
        p("s_sub_u32 %s, %s, 1" % (sr(sCNT), sr(sCNT)))
        p("s_cbranch_scc0 %s" % slowtop)
        p("s_mov_b32 %s, 0" % sr(sLIM))
        p("s_or_b32 %s, %s, 1" % (sr(sERR), sr(sERR)))
        p("s_branch %s" % got)

    tail.append(blk)
    p("buffer_load_dwordx4 %s, %s, %s offen sc1 lds" % (vr(vL16), sr(sWS, 4), sr(sT3)))
    p("buffer_load_dwordx4 %s, %s, %s offen offset:1024 sc1 lds" % (vr(vL16), sr(sWS, 4), sr(sT3)))


CACC = S0 + 8
CB = S0 + 40
CR = S0 + 72
CY = S0 + 96
vCB, vCE, vYw = S0 + 4, S0 + 5, S0 + 6


def conv_addresses():
    l = vr(vLANE)
    t = vr(vT)
    p("s_lshr_b32 %s, %s, 1" % (sr(sT0), sr(sWV)))
    p("s_mul_i32 %s, %s, %d" % (sr(sT0), sr(sT0), UCH))
    p("s_and_b32 %s, %s, 1" % (sr(sT1), sr(sWV)))
    p("s_lshl_b32 %s, %s, 8" % (sr(sT1), sr(sT1)))
    p("s_add_u32 %s, %s, %s" % (sr(sT0), sr(sT0), sr(sT1)))
    sadd(sT0, sT0, UB + 480)
    p("v_and_b32 %s, 15, %s" % (t, l))
    p("v_lshlrev_b32 %s, 5, %s" % (vr(vCB), t))
    p("v_sub_u32 %s, %s, %s" % (vr(vCB), sr(sT0), vr(vCB)))
    p("v_lshrrev_b32 %s, 1, %s" % (vr(vYw), t))
    p("v_lshlrev_b32 %s, 16, %s" % (vr(vYw), vr(vYw)))
    p("v_and_b32 %s, 1, %s" % (t, l))
    p("v_lshl_add_u32 %s, %s, 6, %s" % (vr(vYw), t, vr(vYw)))
    p("v_and_b32 %s, 48, %s" % (t, l))
    p("v_add_u32 %s, %s, %s" % (vr(vCB), vr(vCB), t))
    p("v_add_u32 %s, %s, %s" % (vr(vYw), t, vr(vYw)))
    p("s_lshl_b32 %s, %s, 5" % (sr(sT0), sr(sX)))
    p("s_add_u32 %s, %s, %s" % (sr(sT0), sr(sT0), sr(sJ)))
    p("s_lshl_b32 %s, %s, 8" % (sr(sT0), sr(sT0)))
    p("v_add_u32 %s, %s, %s" % (vr(vYw), sr(sT0), vr(vYw)))
    for e in range(8):
        p("v_mov_b32 %s, %s" % (vr(CY + 2 * e + 1), vr(vTAG)))
    p("v_add_u32 %s, 0x%x, %s" % (vr(vCE), EX, vr(vL16)))


def conv():
    def rd(m, rho):
        p("ds_read_b128 %s, %s offset:%d" % (vr(CB + 4 * m, 4), vr(vCB), 512 * (7 - m) + 64 * rho), "b01" if rho == 3 and m == 1 else None)

    def mm(a, m, rho, first):
        acc = vr(CACC + 4 * (a + m), 4)
        p("v_mfma_f32_16x16x32_bf16 %s, %s, %s, %s" % (acc, ar(aH + 4 * (8 * rho + a), 4), vr(CB + 4 * m, 4), "0" if first else acc))

    for m in range(8):
        rd(m, 0)

    def main3():
        for rho in range(3):
            for m in range(8):
                for a in range(8 - m):
                    mm(a, m, rho, rho == 0 and m == 0)
                rd(m, rho + 1)

    def st0():
        sadd(sT0, sCLS, st_off(0))
        local_stores(["buffer_store_dword %s, %s, %s, %s offen" % (vr(vST0), vr(vSTw), sr(sWS, 4), sr(sT0))])

    at = {}
    pre = [p.cap(st0)] + clear_groups()
    if CLR0 == 2:
        pre.append(p.cap(clear_partials, 0))
    if "--clrpre" in sys.argv:
        for g in pre:
            p.put(g)
        p("s_waitcnt vmcnt(0)")
        stamp("c_pre")
        pre = []
    k = place(at, pre, 0, opt("cstep", 5))
    n0 = NSA + NSB
    allw = remap_m0(WKV[n0 : n0 + NWC], R1 if n0 < 16 else R2, n0 % 16)
    nfit = max(0, min(len(allw), (108 - int(k)) // DSTEP))
    place(at, allw[:nfit], k, DSTEP)
    rest = allw[nfit:]
    sched(p.cap(main3), at)
    if FINE: stamp("c_main")
    p.waitvm("clr")
    p.waitlg("b01")
    p("s_barrier")
    if FINE: stamp("c_bar")
    labs = [p.newlabel("cv%d" % w) for w in range(4)]
    join = p.newlabel("cvjoin")
    for w in range(1, 4):
        p("s_cmp_eq_u32 %s, %d" % (sr(sWV), w))
        p("s_cbranch_scc1 %s" % labs[w])
    for w in range(4):
        p.label(labs[w])
        keep = (w, 7 - w)
        send = [jt for jt in range(7, -1, -1) if jt not in keep]

        def last():
            pend = []
            for jt in send + list(keep):
                for a in range(jt + 1):
                    mm(a, jt - a, 3, False)
                if pend:
                    j2 = pend.pop()
                    d = min(j2, 7 - j2)
                    slot = (w - d - 1) % 4
                    p("ds_write_b128 %s, %s offset:%d" % (vr(vCE), vr(CACC + 4 * j2, 4), (d * 3 + slot) * 2048 + (0 if j2 < 4 else 1024)))
                if jt in send:
                    pend.append(jt)

        def hello():
            p("s_lshl_b32 %s, %s, 3" % (sr(sT0), sr(sJ)))
            p("s_add_u32 %s, %s, %s" % (sr(sT0), sr(sT0), sr(sCLS)))
            sadd(sT0, sT0, C_HELLO)
            flag_store(sT0)

        at = {}
        if w == 1:
            place(at, [p.cap(hello)], 0, 1)
        place(at, [[Ins(x.text, x.tag) for x in g] for g in rest], 2, DSTEP)
        sched(p.cap(last), at)
        if FINE:
            if w: stamps.pop(); stamps.pop()
            stamp("c_last")
        barrier()
        if FINE: stamp("c_bar2")
        for slot in range(3):
            for k2 in range(2):
                p("ds_read_b128 %s, %s offset:%d" % (vr(CR + 8 * slot + 4 * k2, 4), vr(vCE), (w * 3 + slot) * 2048 + 1024 * k2))
        partner = w ^ 1
        others = [o for o in range(4) if (o >> 1) != (w >> 1)]
        sl = lambda o: (o - w - 1) % 4
        for k2 in range(2):
            jt = keep[k2]
            own = CACC + 4 * jt
            pr = CR + 8 * sl(partner) + 4 * k2
            o0 = CR + 8 * sl(others[0]) + 4 * k2
            o1 = CR + 8 * sl(others[1]) + 4 * k2
            p("s_mov_b32 %s, 0x%x" % (sr(sT0), YB + jt * 524288))
            for e in (0, 2):
                p("v_pk_add_f32 %s, %s, %s" % (vr(own + e, 2), vr(own + e, 2), vr(pr + e, 2)))
                p("v_pk_add_f32 %s, %s, %s" % (vr(o0 + e, 2), vr(o0 + e, 2), vr(o1 + e, 2)))
            lo, hi = (own, o0) if (w >> 1) == 0 else (o0, own)
            for e in range(4):
                p("v_cvt_pk_bf16_f32 %s, %s, %s" % (vr(CY + 8 * k2 + 2 * e), vr(lo + e), vr(hi + e)))
                if e & 1:
                    p("buffer_store_dwordx4 %s, %s, %s, %s offen offset:%d sc1" % (vr(CY + 8 * k2 + 2 * e - 2, 4), vr(vYw), sr(sWS, 4), sr(sT0), 64 * (e - 1)))
        if w < 3:
            p("s_branch %s" % join)
    p.label(join)
    return WKV[n0 + NWC :]


def colsum(a0, acc, transposed):
    def body():
        for ks in range(16):
            A, B = vr(vONE, 4), ar(a0 + 4 * ks, 4)
            if transposed:
                A, B = B, A
            p("v_mfma_f32_16x16x32_bf16 %s, %s, %s, %s" % (vr(acc, 4), A, B, "0" if ks == 0 else vr(acc, 4)))

    return p.cap(body)


N0 = S0 + 32
YR = S0 + 88


def normalise(vR, vNM):
    for e in range(0, 16, 2):
        p("v_pk_fma_f32 %s, %s, %s, %s op_sel_hi:[1,0,0]" % (vr(N0 + e, 2), vr(vX + e, 2), vr(vR, 2), vr(vNM, 2)))


def y_shadow(wvrest):
    F = S0 + 72

    def hello_issue():
        p("buffer_load_dwordx2 %s, %s, %s, %s offen sc1" % (vr(F, 2), vr(F + 2), sr(sWS, 4), sr(sT3)))

    def hello_check():
        p("v_cmp_ne_u64 vcc, %s, %s" % (sr(sTAG, 2), vr(F, 2)))

    p("v_and_b32 %s, 0xff, %s" % (vr(F + 2), vr(vL8)))
    sadd(sT3, sCLS, C_HELLO)
    hello_issue()
    nk = max(0, len(wvrest) - 16)
    for g in wvrest[:nk]:
        p.put(g)
    p.waitvm("wk")
    p("s_barrier")
    p.put(mix(wvrest[nk:], unstage_w(R1, aWK), 1, 4))
    t, t1 = vr(F + 8), vr(F + 9)
    p("s_mul_i32 %s, %s, 5120" % (sr(sT1), sr(sJ)))
    sadd(sT1, sT1, C_STATE)
    p("s_lshl_b32 %s, %s, 7" % (sr(sT2), sr(sJ)))
    sadd(sT2, sT2, C_FLAGX)
    p("v_lshl_add_u32 %s, %s, 4, %s" % (t, vr(vL8), sr(sT1)))
    p("v_mov_b32 %s, %s" % (t1, sr(sT2)))
    p("v_cmp_gt_u32 vcc, 0x140, %s" % vr(vL8))
    p("v_cndmask_b32 %s, %s, %s, vcc" % (t, t1, t))
    poll_late(hello_issue, hello_check, 1)
    stamp("hello")
    SB = S0 + 12
    sadd(sT1, sCLS, st_off(0))
    stats_issue(SB, sT1)

    def touch():
        skip = p.newlabel("touch")
        p("s_cmp_lg_u32 %s, 3" % sr(sWV))
        p("s_cbranch_scc1 %s" % skip)
        p("buffer_load_dword %s, %s, %s, %s offen sc1" % (vr(vDUM), t, sr(sWS, 4), sr(sCLS)))
        p.label(skip)

    if opt("ytouch", 0) == 0:
        touch()

    def issue_y():
        p("s_mov_b32 %s, 0x%x" % (sr(sT0), YB))
        for u in range(8):
            p("buffer_load_dwordx2 %s, %s, %s, %s offen offset:%d sc1" % (vr(YR + 2 * u, 2), vr(vYa), sr(sWS, 4), sr(sT0), 256 * u))

    def check_y():
        T = S0 + 12
        for u in range(4):
            p("v_bitop3_b32 %s, %s, %s, %s bitop3:0x7e" % (vr(T + u), vr(YR + 4 * u + 1), vr(YR + 4 * u + 3), vr(vTAG)))
        p("v_or3_b32 %s, %s, %s, %s" % (vr(T), vr(T), vr(T + 1), vr(T + 2)))
        p("v_or_b32 %s, %s, %s" % (vr(T), vr(T), vr(T + 3)))
        p("v_cmp_ne_u32 vcc, 0, %s" % vr(T))

    if opt("ysleep", 0):
        stats_finish(SB, S0 + 28, S0 + 30)
        normalise(S0 + 28, S0 + 30)
        if FINE: stamp("ystat")
        p("s_sleep %d" % opt("ysleep", 0))
        issue_y()
    else:
        issue_y()
        stats_finish(SB, S0 + 28, S0 + 30)
        normalise(S0 + 28, S0 + 30)
    stamp("ypoll")
    poll_late(issue_y, check_y, 2)
    clear_partials(1)
    if opt("ytouch", 0) == 1:
        touch()
    stamp("ygot")
    for u in range(8):
        unpack(vY + 2 * u, YR + 2 * u)


def gate_and_publish(L):
    XP = S0 + 48
    for h in range(2):
        for e in range(8 * h, 8 * h + 8, 2):
            p("v_pk_fma_f32 %s, %s, %s, %s" % (vr(vX + e, 2), vr(N0 + e, 2), vr(vY + e, 2), vr(vX + e, 2)))
    for e in range(8):
        p("v_cvt_pk_bf16_f32 %s, %s, %s" % (vr(XP + e), vr(vX + 2 * e), vr(vX + 2 * e + 1)))
    local_stores(
        [
            "buffer_store_dwordx4 %s, %s, %s, %s offen" % (vr(XP, 4), vr(vXw), sr(sWS, 4), sr(sCLS)),
            "buffer_store_dwordx4 %s, %s, %s, %s offen offset:256" % (vr(XP + 4, 4), vr(vXw), sr(sWS, 4), sr(sCLS)),
        ],
        "xst",
    )
    stats_compute(S0 + 56, S0 + 58)
    p("s_lshl_b32 %s, %s, 4" % (sr(sT1), sr(sG32L)))
    p("s_add_u32 %s, %s, %s" % (sr(sT1), sr(sT1), sr(sKS)))
    p("s_lshl_b32 %s, %s, 3" % (sr(sT1), sr(sT1)))
    p("s_add_u32 %s, %s, %s" % (sr(sT1), sr(sT1), sr(sCLS)))
    sadd(sT1, sT1, C_FLAGX + L * 0x400)
    sadd(sT0, sCLS, st_off(1 + 2 * L))
    p.waitvm("xst")
    flag_store(sT1)
    local_stores(["buffer_store_dword %s, %s, %s, %s offen" % (vr(S0 + 56), vr(vSTw), sr(sWS, 4), sr(sT0))])


GA = S0 + 8
GK, GV = S0 + 40, S0 + 56
GR, GNM, GC = S0 + 72, S0 + 88, S0 + 104
STAGES = [0, 2, 4, 6, 9, 13, 16]


def a_read(ks):
    for tt in range(4):
        p("ds_read_b128 %s, %s offset:%d" % (vr(GA + 16 * (ks & 1) + 4 * tt, 4), vr(vL16), AB + tt * 16384 + ks * 1024))


def a_read1(ks, tt):
    p("ds_read_b128 %s, %s offset:%d" % (vr(GA + 16 * (ks & 1) + 4 * tt, 4), vr(vL16), AB + tt * 16384 + ks * 1024), "ra%d" % tt)


def gemm_kv(L):
    F = GR
    p("s_lshl_b32 %s, %s, 1" % (sr(sT0), sr(sRG)))
    p("s_lshr_b32 %s, %s, 1" % (sr(sT1), sr(sWV)))
    p("s_add_u32 %s, %s, %s" % (sr(sT0), sr(sT0), sr(sT1)))
    p("s_lshl_b32 %s, %s, 7" % (sr(sT0), sr(sT0)))
    p("s_add_u32 %s, %s, %s" % (sr(sT0), sr(sT0), sr(sCLS)))
    sadd(sT0, sT0, C_FLAGX + L * 0x400)
    p("v_and_b32 %s, 0x7f, %s" % (vr(F + 2), vr(vL8)))
    p("s_lshl_b32 %s, %s, 16" % (sr(sT1), sr(sRG)))
    p("s_add_u32 %s, %s, %s" % (sr(sT1), sr(sT1), sr(sWV14)))
    p("s_add_u32 %s, %s, %s" % (sr(sT1), sr(sT1), sr(sCLS)))
    p("s_add_u32 m0, %s, %d" % (sr(sWV14), AB))
    sadd(sT3, sCLS, st_off(1 + 2 * L))
    fl_issue = lambda: p("buffer_load_dwordx2 %s, %s, %s, %s offen sc1" % (vr(F, 2), vr(F + 2), sr(sWS, 4), sr(sT0)))
    fl_check = lambda: p("v_cmp_ne_u64 vcc, %s, %s" % (sr(sTAG, 2), vr(F, 2)))
    if L == 0:
        fl_issue()
        p.put(unstage_w(R2, aWV))
        poll_late(fl_issue, fl_check, 3)
    else:
        poll(fl_issue, fl_check, 3)
    stamp("xflag%d" % L)

    def dma(ks):
        if ks and ks % 4 == 0:
            p("s_add_u32 m0, m0, 4096")
            sadd(sT1, sT1, 4096)
        p("buffer_load_dwordx4 %s, %s, %s offen offset:%d sc1 lds" % (vr(vL16), sr(sWS, 4), sr(sT1), 1024 * (ks % 4)), "a%d" % ks)

    D = [p.cap(dma, ks) for ks in range(16)]
    for ks in range(4):
        p.put(D[ks])
    if L == 0:
        p.put(colsum(aWK, GK, False))
        p.put(colsum(aWV, GV, False))
        p("v_mov_b32 %s, %s" % (vr(vCSK), vr(GK)))
        p("v_mov_b32 %s, %s" % (vr(vCSV), vr(GV)))
    SB = GC

    def st_issue():
        for u in range(2):
            p("buffer_load_dwordx4 %s, %s, %s, %s offen offset:%d sc1" % (vr(SB + 4 * u, 4), vr(vSTr2), sr(sWS, 4), sr(sT3), 512 * u))

    def st_fin():
        p("v_pk_add_f32 %s, %s, %s" % (vr(SB, 2), vr(SB, 2), vr(SB + 2, 2)))
        p("v_pk_add_f32 %s, %s, %s" % (vr(SB + 4, 2), vr(SB + 4, 2), vr(SB + 6, 2)))
        p("v_pk_add_f32 %s, %s, %s" % (vr(SB, 2), vr(SB, 2), vr(SB + 4, 2)))
        p("v_permlane16_swap_b32 %s, %s" % (vr(SB), vr(SB + 1)))
        p("v_add_f32 %s, %s, %s" % (vr(SB), vr(SB), vr(SB + 1)))
        p("v_mov_b32 %s, %s" % (vr(SB + 1), vr(SB)))
        p("v_permlane32_swap_b32 %s, %s" % (vr(SB), vr(SB + 1)))
        p("v_add_f32 %s, %s, %s" % (vr(SB), vr(SB), vr(SB + 1)))
        p("v_mul_f32 %s, %s, %s" % (vr(SB), sr(sINV512), vr(SB)))
        p("v_mov_b32 %s, %s" % (vr(SB + 1), vr(SB)))
        p("v_permlane16_swap_b32 %s, %s" % (vr(SB), vr(SB + 1)))
        p("v_fma_f32 %s, -%s, %s, %s" % (vr(SB + 1), vr(SB), vr(SB), vr(SB + 1)))
        p("v_max_f32 %s, 0, %s" % (vr(SB + 1), vr(SB + 1)))
        p("v_add_f32 %s, %s, %s" % (vr(SB + 1), sr(sEPS5), vr(SB + 1)))
        p("v_rsq_f32 %s, %s" % (vr(SB + 2), vr(SB + 1)))
        p("v_and_b32 %s, 0x100, %s" % (vr(SB + 4), vr(vL16)))
        p("v_cmp_eq_u32 vcc, 0, %s" % vr(SB + 4))
        p("v_mul_f32 %s, -%s, %s" % (vr(SB + 3), vr(SB), vr(SB + 2)))
        p("v_cndmask_b32 %s, %s, %s, vcc" % (vr(SB + 2), vr(SB + 3), vr(SB + 2)))
        p("ds_write_b32 %s, %s" % (vr(vTBw), vr(SB + 2)), "tb")

    def tables():
        for tt in range(4):
            p("ds_read_b128 %s, %s offset:%d" % (vr(GNM + 4 * tt, 4), vr(vTB1), 256 + 64 * tt))
        for tt in range(4):
            p("ds_read_b128 %s, %s offset:%d" % (vr(GR + 4 * tt, 4), vr(vTB1), 64 * tt))

    def consts():
        for e in range(16):
            p("v_fma_f32 %s, %s, %s, %s" % (vr(GC + e), vr(GNM + e), vr(vCSK), sr(sEPS6)))
        for e in range(0, 16, 2):
            p("v_pk_mul_f32 %s, %s, %s op_sel:[1,0] op_sel_hi:[1,1]" % (vr(GNM + e, 2), vr(vCSK, 2), vr(GNM + e, 2)))

    def body():
        p.waitvm("a1")
        barrier()
        if FINE: stamp("g_a%d" % L)
        for tt in range(4):
            a_read1(0, tt)
        for ks in range(16):
            if ks + 1 in STAGES[:-1]:
                p.waitvm("a%d" % (STAGES[STAGES.index(ks + 1) + 1] - 1))
                if ks + 1 == 13:
                    p.waitlg("tb")
                p("s_barrier")
            for tt in range(4):
                if tt in (0, 2):
                    p.waitlg("ra%d" % (tt + 1))
                A = vr(GA + 16 * (ks & 1) + 4 * tt, 4)
                for acc, w in ((GK, aWK), (GV, aWV)):
                    d = vr(acc + 4 * tt, 4)
                    p("v_mfma_f32_16x16x32_bf16 %s, %s, %s, %s" % (d, A, ar(w + 4 * ks, 4), "0" if ks == 0 else d))
                    if acc == GK and ks < 15:
                        a_read1(ks + 1, tt)

    at = {}
    GS = opt("gs", 6)
    k = place(at, D[4:10], 1, 4)
    k = place(at, [[x] for x in p.cap(st_issue)], k, 4)
    k = place(at, D[10:], k, GS)
    chk = p.cap(poll_late, st_issue, lambda: check_sentinel(range(SB, SB + 8), SB + 8), 4)
    place(at, chk[:4], 57, 2)
    place(at, [chk[4:]], 65, 2)
    place(at, p.cap(st_fin), 67, 1.3)
    place(at, p.cap(tables), 97, 1)
    place(at, p.cap(consts), 107, 0.85)
    wq = []
    if L == 0:
        wq = stage_w(0, R2, "wq")
        n = (128 - int(k)) // 8
        place(at, wq[:n], k + 2, 8)
        wq = wq[n:]
    sched(p.cap(body), at)
    stamp("gemmkv%d" % L)
    PK, PV, T = GA, GA + 8, GA + 16

    def epi(tt):
        Rr, CV, CK = GR + 4 * tt, GNM + 4 * tt, GC + 4 * tt
        k0, v0 = GK + 4 * tt, GV + 4 * tt
        for e in (0, 2):
            p("v_pk_fma_f32 %s, %s, %s, %s" % (vr(k0 + e, 2), vr(k0 + e, 2), vr(Rr + e, 2), vr(CK + e, 2)))
        for e in (0, 2):
            p("v_pk_mul_f32 %s, %s, %s" % (vr(T + e, 2), vr(k0 + e, 2), sr(sL2E2, 2)))
        for e in (0, 2):
            p("v_pk_fma_f32 %s, %s, %s, %s" % (vr(v0 + e, 2), vr(v0 + e, 2), vr(Rr + e, 2), vr(CV + e, 2)))
        for e in range(4):
            p("v_exp_f32_e64 %s, %s clamp" % (vr(T + e), vr(T + e)))
        for e in range(4):
            p("v_max_f32 %s, %s, %s" % (vr(k0 + e), sr(sEPS6), vr(k0 + e)))
        for e in (0, 2):
            p("v_pk_add_f32 %s, %s, %s" % (vr(k0 + e, 2), vr(k0 + e, 2), vr(T + e, 2)))
        for e in (0, 2):
            p("v_cvt_pk_bf16_f32 %s, %s, %s" % (vr(PV + 2 * tt + e // 2), vr(v0 + e), vr(v0 + e + 1)))
        for e in (0, 2):
            p("v_cvt_pk_bf16_f32 %s, %s, %s" % (vr(PK + 2 * tt + e // 2), vr(k0 + e), vr(k0 + e + 1)))

    KV, Z = GR, GR + 4
    p("s_lshl_b32 %s, %s, 2" % (sr(sT0), sr(sM)))
    p("s_add_u32 %s, %s, %s" % (sr(sT0), sr(sT0), sr(sWV)))
    p("s_lshl_b32 %s, %s, 5" % (sr(sT0), sr(sT0)))
    p("s_lshl_b32 %s, %s, 2" % (sr(sT1), sr(sX)))
    p("s_add_u32 %s, %s, %s" % (sr(sT0), sr(sT0), sr(sT1)))
    p("s_add_u32 %s, %s, %s" % (sr(sT0), sr(sT0), sr(sRG)))
    p("s_lshl_b32 %s, %s, 9" % (sr(sT1), sr(sT0)))
    sadd(sT1, sT1, KVP + L * KVL)
    p("s_lshl_b32 %s, %s, 6" % (sr(sT2), sr(sT0)))
    sadd(sT2, sT2, ZP + L * KVL)
    for tt in range(4):
        epi(tt)
        if wq:
            p.put(wq.pop(0))
        if tt == 1:
            p("v_mfma_f32_16x16x32_bf16 %s, %s, %s, 0" % (vr(KV, 4), vr(PK, 4), vr(PV, 4)))
            p("v_mfma_f32_16x16x32_bf16 %s, %s, %s, 0" % (vr(Z, 4), vr(PK, 4), vr(vONE, 4)))
    p("v_mfma_f32_16x16x32_bf16 %s, %s, %s, %s" % (vr(KV, 4), vr(PK + 4, 4), vr(PV + 4, 4), vr(KV, 4)))
    p("v_mfma_f32_16x16x32_bf16 %s, %s, %s, %s" % (vr(Z, 4), vr(PK + 4, 4), vr(vONE, 4), vr(Z, 4)))
    p("v_cvt_pk_bf16_f32 %s, %s, %s" % (vr(T), vr(KV), vr(KV + 1)))
    p("v_cvt_pk_bf16_f32 %s, %s, %s" % (vr(T + 1), vr(KV + 2), vr(KV + 3)))
    p("v_min_u32 %s, -2, %s" % (vr(T), vr(T)))
    p("v_min_u32 %s, -2, %s" % (vr(T + 1), vr(T + 1)))
    p("buffer_store_dwordx2 %s, %s, %s, %s offen sc1" % (vr(T, 2), vr(vL8), sr(sWS, 4), sr(sT1)))
    for e in range(4):
        p("v_min_u32 %s, -2, %s" % (vr(Z + e), vr(Z + e)))
    p("s_mov_b32 exec_lo, 0x00010001")
    p("s_mov_b32 exec_hi, 0x00010001")
    p("buffer_store_dwordx4 %s, %s, %s, %s offen sc1" % (vr(Z, 4), vr(vZr), sr(sWS, 4), sr(sT2)))
    p("s_mov_b64 exec, -1")
    stamp("kvpub%d" % L)
    for g in wq:
        p.put(g)


GQ = GK
GT = GV


def gemm_q(L):
    at = {}
    if L == 0:
        p.waitvm("wq")
        p("s_barrier")
        p.put(unstage_w(R2, aWQ))
        p.put(colsum(aWQ, GR, True))
        barrier()
        place(at, stage_wo(0, R2, "woa"), 0, 4)
    for tt in range(4):
        p("ds_read_b32 %s, %s offset:%d" % (vr(GT + 2 * tt), vr(vTB2), 64 * tt))
        p("ds_read_b32 %s, %s offset:%d" % (vr(GT + 2 * tt + 1), vr(vTB2), 256 + 64 * tt))
    for tt in range(4):
        a_read1(0, tt)
    if L == 0:
        for e in range(4):
            p("v_mov_b32 %s, %s" % (vr(vCSQ + e), vr(GR + e)))

    def body():
        for ks in range(16):
            for tt in range(4):
                if tt in (0, 2):
                    p.waitlg("ra%d" % (tt + 1))
                B = vr(GA + 16 * (ks & 1) + 4 * tt, 4)
                d = vr(GQ + 4 * tt, 4)
                p("v_mfma_f32_16x16x32_bf16 %s, %s, %s, %s" % (d, ar(aWQ + 4 * ks, 4), B, "0" if ks == 0 else d))
                if ks < 15:
                    a_read1(ks + 1, tt)

    sched(p.cap(body), at)
    T = GA
    PQ = GA + 8
    p("s_mov_b32 %s, 0x%x" % (sr(sT0), YB))
    p("s_mov_b32 %s, 0x%x" % (sr(sT1), YB + 65536))
    lines = []
    for tt in range(4):
        Rr, NM = GT + 2 * tt, GT + 2 * tt + 1
        q0 = GQ + 4 * tt
        for e in range(4):
            p("v_fma_f32 %s, %s, %s, %s" % (vr(T + e), vr(NM), vr(vCSQ + e), sr(sEPS6)))
        for e in (0, 2):
            p("v_pk_fma_f32 %s, %s, %s, %s op_sel_hi:[1,0,1]" % (vr(q0 + e, 2), vr(q0 + e, 2), vr(Rr, 2), vr(T + e, 2)))
        for e in (0, 2):
            p("v_pk_mul_f32 %s, %s, %s" % (vr(T + e, 2), vr(q0 + e, 2), sr(sL2E2, 2)))
        for e in range(4):
            p("v_exp_f32_e64 %s, %s clamp" % (vr(T + e), vr(T + e)))
        for e in range(4):
            p("v_max_f32 %s, %s, %s" % (vr(q0 + e), sr(sEPS6), vr(q0 + e)))
        for e in (0, 2):
            p("v_pk_add_f32 %s, %s, %s" % (vr(q0 + e, 2), vr(q0 + e, 2), vr(T + e, 2)))
        for e in (0, 2):
            p("v_cvt_pk_bf16_f32 %s, %s, %s" % (vr(PQ + 2 * tt + e // 2), vr(q0 + e), vr(q0 + e + 1)))
        lines.append(
            "buffer_store_dwordx2 %s, %s, %s, %s offen offset:%d" % (vr(PQ + 2 * tt, 2), vr(vPQw), sr(sWS, 4), sr(sT0 if tt < 2 else sT1), 256 * (tt & 1))
        )
    local_stores(lines, "pqst")
    p("s_lshl_b32 %s, %s, 5" % (sr(sT0), sr(sRG)))
    p("s_lshl_b32 %s, %s, 2" % (sr(sT1), sr(sM)))
    p("s_add_u32 %s, %s, %s" % (sr(sT0), sr(sT0), sr(sT1)))
    p("s_add_u32 %s, %s, %s" % (sr(sT0), sr(sT0), sr(sWV)))
    p("s_lshl_b32 %s, %s, 3" % (sr(sT0), sr(sT0)))
    p("s_add_u32 %s, %s, %s" % (sr(sT0), sr(sT0), sr(sCLS)))
    sadd(sT0, sT0, C_FLAGPQ + L * 0x400)

    def flag():
        p.waitvm("pqst")
        flag_store(sT0)

    if L == 0:
        p.waitvm("woa")
        p("s_barrier")
        wob = stage_wo(1, R1, "wob")
        un = unstage_wo(R2, "a", aWOA)
        p.put(mix(wob[:5], un[:11], 1, 2))
        flag()
        p.put(mix(wob[5:], un[11:], 1, 2))
    else:
        flag()


OPQ = S0 + 8
OST = S0 + 40
OD = S0 + 72
OF = S0 + 104
vOW, vOR, OT = S0 + 112, S0 + 113, S0 + 114


def head_off(u):
    return (u & 3) * 1024 + (u >> 2) * 16384


def reduce_state(L):
    P = OST
    ZL = OST + 16
    D = OST + 24
    RC = OD
    T = OD + 12
    p("s_lshl_b32 %s, %s, 5" % (sr(sT0), sr(sJ)))
    p("s_lshl_b32 %s, %s, 6" % (sr(sT2), sr(sT0)))
    sadd(sT2, sT2, ZP + L * KVL)
    p("s_lshl_b32 %s, %s, 3" % (sr(sT1), sr(sWV)))
    p("s_add_u32 %s, %s, %s" % (sr(sT0), sr(sT0), sr(sT1)))
    p("s_lshl_b32 %s, %s, 9" % (sr(sT0), sr(sT0)))
    sadd(sT0, sT0, KVP + L * KVL)
    p("s_lshl_b32 %s, %s, 10" % (sr(sT1), sr(sWV)))
    sadd(sT1, sT1, RS)
    p("v_add_u32 %s, %s, %s" % (vr(T + 1), sr(sT1), vr(vL16)))
    p("s_lshl_b32 %s, %s, 10" % (sr(sT3), sr(sJ)))
    p("s_add_u32 %s, %s, %s" % (sr(sT3), sr(sT3), sr(sCLS)))
    sadd(sT3, sT3, C_STATE + L * 0x8000)

    def issue():
        for u in range(8):
            p("buffer_load_dwordx2 %s, %s, %s, %s offen offset:%d sc1" % (vr(P + 2 * u, 2), vr(vL8), sr(sWS, 4), sr(sT0), 512 * u))

    def issue_z():
        for u in range(2):
            p("buffer_load_dwordx4 %s, %s, %s, %s offen offset:%d sc1" % (vr(ZL + 4 * u, 4), vr(vZr), sr(sWS, 4), sr(sT2), 1024 * u))

    def partial():
        for u in range(4):
            p("v_mfma_f32_16x16x32_bf16 %s, %s, %s, %s" % (vr(D, 4), vr(vSEL, 4), vr(P + 4 * u, 4), "0" if u == 0 else vr(D, 4)))

    w1, w0, done = p.newlabel("red1"), p.newlabel("red0"), p.newlabel("reddone")
    p("s_cmp_eq_u32 %s, 1" % sr(sWV))
    p("s_cbranch_scc1 %s" % w1)
    poll(issue, lambda: check_sentinel(range(P, P + 16), T), 5)
    stamp("kvgot%d" % L)
    pq_flags_issue(L)
    partial()
    p("s_cmp_eq_u32 %s, 0" % sr(sWV))
    p("s_cbranch_scc1 %s" % w0)
    p("ds_write_b128 %s, %s" % (vr(T + 1), vr(D, 4)))
    barrier()
    p("s_branch %s" % done)
    p.label(w1)
    poll(lambda: (issue(), issue_z()), lambda: check_sentinel(range(P, P + 24), T), 6)
    if PROFILE:
        stamps.pop()
        stamp("kvgot%d" % L)
    pq_flags_issue(L)
    partial()
    for e in (0, 2):
        p("v_pk_add_f32 %s, %s, %s" % (vr(ZL + e, 2), vr(ZL + e, 2), vr(ZL + 4 + e, 2)))
    for e in range(4):
        p("v_add_f32_dpp %s, %s, %s row_ror:8 row_mask:0xf bank_mask:0xf" % (vr(ZL + e), vr(ZL + e), vr(ZL + e)))
    p("ds_write_b128 %s, %s" % (vr(T + 1), vr(D, 4)))
    barrier()
    for sh in (4, 2, 1):
        for e in range(4):
            p("v_add_f32_dpp %s, %s, %s row_ror:%d row_mask:0xf bank_mask:0xf" % (vr(ZL + e), vr(ZL + e), vr(ZL + e), sh))
    p("v_cvt_pk_bf16_f32 %s, %s, %s" % (vr(ZL), vr(ZL), vr(ZL + 1)))
    p("v_cvt_pk_bf16_f32 %s, %s, %s" % (vr(ZL + 1), vr(ZL + 2), vr(ZL + 3)))
    p("v_min_u32 %s, -2, %s" % (vr(ZL), vr(ZL)))
    p("v_min_u32 %s, -2, %s" % (vr(ZL + 1), vr(ZL + 1)))
    local_stores(["buffer_store_dwordx2 %s, %s, %s, %s offen offset:256" % (vr(ZL, 2), vr(vSTATEw), sr(sWS, 4), sr(sT3))])
    p("s_branch %s" % done)
    p.label(w0)
    barrier()
    for u in range(3):
        p("ds_read_b128 %s, %s offset:%d" % (vr(RC + 4 * u, 4), vr(T + 1), 1024 * (u + 1)))
    for e in (0, 2):
        p("v_pk_add_f32 %s, %s, %s" % (vr(D + e, 2), vr(D + e, 2), vr(RC + e, 2)))
    for e in (0, 2):
        p("v_pk_add_f32 %s, %s, %s" % (vr(RC + 4 + e, 2), vr(RC + 4 + e, 2), vr(RC + 8 + e, 2)))
    for e in (0, 2):
        p("v_pk_add_f32 %s, %s, %s" % (vr(D + e, 2), vr(D + e, 2), vr(RC + 4 + e, 2)))
    p("v_cvt_pk_bf16_f32 %s, %s, %s" % (vr(D), vr(D), vr(D + 1)))
    p("v_cvt_pk_bf16_f32 %s, %s, %s" % (vr(D + 1), vr(D + 2), vr(D + 3)))
    p("v_min_u32 %s, -2, %s" % (vr(D), vr(D)))
    p("v_min_u32 %s, -2, %s" % (vr(D + 1), vr(D + 1)))
    local_stores(["buffer_store_dwordx2 %s, %s, %s, %s offen" % (vr(D, 2), vr(vSTATEw), sr(sWS, 4), sr(sT3))])
    p.label(done)


def pq_flags_issue(L):
    F = OF
    p("s_lshl_b32 %s, %s, 8" % (sr(sDM), sr(sRG)))
    p("s_add_u32 %s, %s, %s" % (sr(sDM), sr(sDM), sr(sCLS)))
    sadd(sDM, sDM, C_FLAGPQ + L * 0x400)
    p("v_and_b32 %s, 0xff, %s" % (vr(F + 2), vr(vL8)))
    p("buffer_load_dwordx2 %s, %s, %s, %s offen sc1" % (vr(F, 2), vr(F + 2), sr(sWS, 4), sr(sDM)))


def load_pq(L):
    F = OF
    poll_late(
        lambda: p("buffer_load_dwordx2 %s, %s, %s, %s offen sc1" % (vr(F, 2), vr(F + 2), sr(sWS, 4), sr(sDM))),
        lambda: p("v_cmp_ne_u64 vcc, %s, %s" % (sr(sTAG, 2), vr(F, 2))),
        7,
    )
    p("s_lshl_b32 %s, %s, 16" % (sr(sT0), sr(sG32)))
    p("s_lshl_b32 %s, %s, 12" % (sr(sT1), sr(sWV)))
    p("s_add_u32 %s, %s, %s" % (sr(sT0), sr(sT0), sr(sT1)))
    sadd(sT0, sT0, YB)
    sadd(sT1, sT0, 16384)
    for u in range(8):
        p("buffer_load_dwordx4 %s, %s, %s, %s offen offset:%d sc1" % (vr(OPQ + 4 * u, 4), vr(vL16), sr(sWS, 4), sr(sT0 if u < 4 else sT1), 1024 * (u & 3)))


def attn_out(L):
    p("s_lshl_b32 %s, %s, 12" % (sr(sT2), sr(sWV)))
    p("s_add_u32 %s, %s, %s" % (sr(sT0), sr(sT2), sr(sCLS)))
    sadd(sT0, sT0, C_STATE + L * 0x8000)
    sadd(sT1, sT0, 16384)
    sadd(sT2, sT2, OB)
    p("v_add_u32 %s, %s, %s" % (vr(vOW), sr(sT2), vr(vL16)))
    p("v_add_u32 %s, 0x%x, %s" % (vr(vOR), OB, vr(vL16)))

    def issue():
        for u in range(8):
            p("buffer_load_dwordx4 %s, %s, %s, %s offen offset:%d sc1" % (vr(OST + 4 * u, 4), vr(vL16), sr(sWS, 4), sr(sT0 if u < 4 else sT1), 1024 * (u & 3)))

    poll(issue, lambda: check_sentinel([OST + 2 * n for n in range(16)], OT), 8)
    stamp("stgot%d" % L)

    def mm(u):
        p("v_mfma_f32_32x32x16_bf16 %s, %s, %s, 0" % (vr(OD + 16 * (u & 1), 16), vr(OST + 4 * u, 4), vr(OPQ + 4 * u, 4)))

    def fin(u):
        d = OD + 16 * (u & 1)
        of = OF + 4 * (u & 1)
        p("v_add_f32 %s, %s, %s" % (vr(d + 8), sr(sEPS6), vr(d + 8)))
        p("v_rcp_f32 %s, %s" % (vr(d + 8), vr(d + 8)))
        for e in range(0, 8, 2):
            p("v_pk_mul_f32 %s, %s, %s op_sel_hi:[1,0]" % (vr(d + e, 2), vr(d + e, 2), vr(d + 8, 2)))
        for e in range(4):
            p("v_cvt_pk_bf16_f32 %s, %s, %s" % (vr(of + e), vr(d + 2 * e), vr(d + 2 * e + 1)))
        p("ds_write_b128 %s, %s offset:%d" % (vr(vOW), vr(of, 4), head_off(u)), "ow")

    def wreg(h):
        return ar(aWOA + 4 * h, 4) if h < 16 else vr(vWOB + 4 * (h - 16), 4)

    def breg(h):
        return (OST + 4 * (h % 4)) if (h // 4) % 2 == 0 else (OPQ + 4 * (h % 4))

    def rdb(h):
        p("ds_read_b128 %s, %s offset:%d" % (vr(breg(h), 4), vr(vOR), 1024 * h))

    def wm(h):
        p("v_mfma_f32_32x32x16_bf16 %s, %s, %s, %s" % (vr(vX, 16), wreg(h), vr(breg(h), 4), vr(vX, 16)))

    mm(0)
    mm(1)
    for u in range(4):
        fin(u)
        mm(u + 2)
    if FINE: stamp("o_a%d" % L)
    barrier()
    if FINE: stamp("o_b%d" % L)
    for h in range(8):
        rdb(h)
    fin(4)
    mm(6)

    def first():
        for h in range(8):
            wm(h)
            rdb(h + 8)
            if h == 2:
                mm(7)

    at = {}
    place(at, p.cap(fin, 5), 0, 0.25)
    place(at, p.cap(fin, 6), 4, 0.25)
    place(at, p.cap(fin, 7), 7, 0.17)
    sched(p.cap(first), at)
    wm(8)
    if FINE: stamp("o_c%d" % L)
    p.waitlg("ow")
    p("s_barrier")
    if FINE: stamp("o_d%d" % L)
    for h in range(9, 32):
        rdb(h + 7) if h + 7 < 32 else None
        wm(h)
    stamp("wo%d" % L)


def stats_hop():
    stats_compute(S0 + 8, S0 + 10)
    sadd(sT0, sCLS, st_off(2))
    local_stores(["buffer_store_dword %s, %s, %s, %s offen" % (vr(S0 + 8), vr(vSTw), sr(sWS, 4), sr(sT0))])
    B = S0 + 12
    poll(lambda: stats_issue(B, sT0), lambda: check_sentinel(range(B, B + 16), S0 + 28), 9)
    stats_finish(B, S0 + 28, S0 + 30)
    normalise(S0 + 28, S0 + 30)
    stamp("stats2")


def main():
    prologue()
    p0_issue()
    quarter_tables()
    addresses()
    lds_zero()
    ut_address()
    clear_setup()
    if CLR0 == 0:
        clear_partials(0)
    stamp("issued")
    if PROFILE or SPIN == "kvgot":
        p.waitvm("kv")
        stamp("kvgot")
    global WKV
    WKV = stage_w(1, R1, "wk") + stage_w(2, R2, "wv")
    p0_compute()
    for g in WKV[:NSA]:
        p.put(g)
    stamp("p0")
    p("s_add_u32 %s, %s, 16" % (sr(sTAG), sr(sTAG)))
    p("s_addc_u32 %s, %s, 0" % (sr(sTAG + 1), sr(sTAG + 1)))
    p("v_mov_b32 %s, %s" % (vr(vTAG), sr(sTAG)))
    p("v_mov_b32 %s, %s" % (vr(vTAG + 1), sr(sTAG + 1)))
    p("s_add_u32 %s, %s, %s" % (sr(sP), sr(sTAG), sr(sXCC)))
    p("s_addc_u32 %s, %s, 0" % (sr(sP + 1), sr(sTAG + 1)))
    h_copies()
    if FINE: stamp("hcop")
    p("v_mov_b32 %s, %s" % (vr(VF), sr(sP)))
    p("v_mov_b32 %s, %s" % (vr(VF + 1), sr(sP + 1)))
    p("s_lshl_b32 %s, %s, 3" % (sr(sT0), sr(sJ)))
    p("s_add_u32 %s, %s, %s" % (sr(sT0), sr(sT0), sr(sCLS)))
    sadd(sT0, sT0, C_FLAGA)
    p.waitvm("ut")
    barrier()
    skip = p.newlabel("fa")
    p("s_cmp_lg_u32 %s, 0" % sr(sWV))
    p("s_cbranch_scc1 %s" % skip)
    p("s_mov_b64 exec, 1")
    p("buffer_store_dwordx2 %s, off, %s, %s" % (vr(VF, 2), sr(sWS, 4), sr(sT0)))
    p("s_mov_b64 exec, -1")
    p.label(skip)
    stamp("flagA")
    if CLR0 == 1:
        clear_partials(0)
    for g in WKV[NSA : NSA + NSB]:
        p.put(g)
    afrag_preload()
    handoff_ut()
    stamp("utflag")
    for e in range(8):
        unpack(vX + 2 * e, X0 + e)
    stats_compute(vST0, KF)
    conv_addresses()
    p.waitvm()
    barrier()
    stamp("convstart")
    wvrest = conv()
    stamp("convdone")
    y_shadow(wvrest)
    for L in range(2):
        gate_and_publish(L)
        stamp("xpub%d" % L)
        barrier()
        gemm_kv(L)
        gemm_q(L)
        stamp("qdone%d" % L)
        reduce_state(L)
        stamp("stpub%d" % L)
        load_pq(L)
        if L == 0:
            p.put(unstage_wo(R1, "v", vWOB))
        attn_out(L)
        if L == 0:
            stats_hop()
    XP = S0 + 8
    for e in range(8):
        p("v_cvt_pk_bf16_f32 %s, %s, %s" % (vr(XP + e), vr(vX + 2 * e), vr(vX + 2 * e + 1)))
        if e == 3:
            p("buffer_store_dwordx4 %s, %s, %s, 0 offen" % (vr(XP, 4), vr(vXrow), sr(sOUT, 4)))
    p("buffer_store_dwordx4 %s, %s, %s, 0 offen offset:16" % (vr(XP + 4, 4), vr(vXrow), sr(sOUT, 4)))
    skip = p.newlabel("epoch")
    p("s_or_b32 %s, s2, %s" % (sr(sT0), sr(sWV)))
    p("s_cmp_lg_u32 %s, 0" % sr(sT0))
    p("s_cbranch_scc1 %s" % skip)
    p("s_mov_b32 %s, %d" % (sr(sT0), EPOCH))
    flag_store(sT0, local=False)
    p.label(skip)
    if PROFILE:
        p.waitvm()
        stamp("end")
        p("v_writelane_b32 %s, %s, 63" % (vr(vPROF), sr(sERR)))
        p("v_writelane_b32 %s, %s, 62" % (vr(vPROF), sr(sMODE)))
        p("v_writelane_b32 %s, %s, 61" % (vr(vPROF), sr(sXCC)))
        p("s_lshl_b32 %s, s2, 10" % sr(sT0))
        sadd(sT0, sT0, PROF)
        p("v_lshlrev_b32 %s, 2, v0" % vr(S0))
        p("buffer_store_dword %s, %s, %s, %s offen" % (vr(vPROF), vr(S0), sr(sWS, 4), sr(sT0)))
        sadd(sT0, sT0, 0x40000)
        p("buffer_store_dword %s, %s, %s, %s offen" % (vr(vPROF + 1), vr(S0), sr(sWS, 4), sr(sT0)))
    if SPIN:
        if SPIN == "end":
            p.waitvm()
            stamp("end")
        p.label("L_spin")
        p("s_memrealtime s[76:77]")
        p("s_waitcnt lgkmcnt(0)")
        p("s_sub_u32 s76, s76, s74")
        p("s_cmp_lt_u32 s76, 4000")
        p("s_cbranch_scc1 L_spin")
    p("s_endpgm")
    i = 0
    while i < len(tail):
        tail[i]()
        i += 1
    p.label("L_exit")
    p("s_endpgm")


main()

HEAD = open("cdna_kernels/%s.s.ref" % NAME).read().split("; Override launch geometry")[0]
body = p.text()
src = (
    HEAD
    + "; One persistent launch, one workgroup per CU; generated by a script (phases hand data over through d_ws).\n"
    + "; @launch grid=(256,1,1) block=(256,1,1) lds=%d\n" % LDS_BYTES
    + """.amdgcn_target "amdgcn-amd-amdhsa--gfx950"
.text
.globl {n}_kernel
.p2align 8
.type {n}_kernel,@function
{n}_kernel:
""".format(n=NAME)
    + body
    + """.section .rodata,"a"
.p2align 6
.amdhsa_kernel {n}_kernel
  .amdhsa_next_free_vgpr 512
  .amdhsa_next_free_sgpr 102
  .amdhsa_accum_offset 256
  .amdhsa_group_segment_fixed_size 0
  .amdhsa_kernarg_size 96
  .amdhsa_user_sgpr_count 2
  .amdhsa_user_sgpr_kernarg_segment_ptr 1
  .amdhsa_system_sgpr_workgroup_id_x 1
  .amdhsa_float_denorm_mode_32 3
.end_amdhsa_kernel
""".format(n=NAME)
)
LIST = [a.split("=")[1] for a in sys.argv if a.startswith("--list=")]
if LIST:
    main_l = "; @launch kernel=%s_kernel grid=(256,1,1) block=(256,1,1) lds=%d\n" % (NAME, LDS_BYTES)
    triv = "; @launch kernel=triv_kernel grid=(256,1,1) block=(64,1,1) lds=0\n"
    lines = "".join(main_l if c == "m" else triv for c in LIST[0])
    src = src.replace("; @launch grid=(256,1,1) block=(256,1,1) lds=%d\n" % LDS_BYTES, lines)
    src = src.replace(""".section .rodata,"a"
""", """.globl triv_kernel
.p2align 8
.type triv_kernel,@function
triv_kernel:
    s_endpgm
.section .rodata,"a"
.p2align 6
.amdhsa_kernel triv_kernel
  .amdhsa_next_free_vgpr 8
  .amdhsa_next_free_sgpr 16
  .amdhsa_accum_offset 8
  .amdhsa_group_segment_fixed_size 0
  .amdhsa_kernarg_size 96
  .amdhsa_user_sgpr_count 2
  .amdhsa_user_sgpr_kernarg_segment_ptr 1
  .amdhsa_system_sgpr_workgroup_id_x 1
.end_amdhsa_kernel
""")
open(OUT, "w").write(src)
if PROFILE:
    open(OUT + ".stamps", "w").write("\n".join(stamps))
print("wrote", OUT, "instructions:", sum(1 for l in body.split("\n") if l.startswith("    ") and not l.strip().startswith(";")))
```

```python
import sys
from asmlib import Prog, Ins, vr, ar, sr

NAME = "interleave_layers__ssm_conv_h3__linear_attn_block__prompt"
PROFILE = "--prof" in sys.argv
FORCE_SLOW = "--slow" in sys.argv
SPIN = [a.split("=")[1] for a in sys.argv if a.startswith("--spin=")]
SPIN = SPIN[0] if SPIN else None
SKEW = [int(a.split("=")[1]) for a in sys.argv if a.startswith("--skew=")]
SPINWG = [int(a.split("=")[1]) for a in sys.argv if a.startswith("--spinwg=")]
OUT = [a for a in sys.argv[1:] if not a.startswith("--")]
OUT = OUT[0] if OUT else "cdna_kernels/%s.s" % NAME

EPOCH = 0
HELLO = 0x1000
FLAGB = 0x2000
KVP = 0x80000
ZP = 0x180000
YB = 0x200000
CLS = 0x600000
CLS_SHIFT = 19
C_A = 0
C_STATE = 0x40000
C_ST = 0x50000
C_FLAGX = 0x70000
C_FLAGPQ = 0x70800
C_FLAGA = 0x71000
C_HELLO = 0x71100
PROF = 0x1800000
WS_BYTES = 0x2000000


def opt(name, default):
    v = [a.split("=")[1] for a in sys.argv if a.startswith("--%s=" % name)]
    return int(v[0]) if v else default


FINE = "--fine" in sys.argv
WSOFF = opt("wsoff", 0) << 20
CLR0 = opt("clr0", 2)
NS0 = opt("ns0", 4)
NSC = opt("nsc", 4)
NSA = opt("nsa", 4)
NSB = opt("nsb", 4)
NWC = opt("nwc", 12)
DSTEP = opt("dstep", 5)


def st_off(n):
    return C_ST + ((n + 3) % 4) * 0x8000


R1, R2, R3 = 0, 65536, 131072
HB = R2
HCOPY, HCH = 4160, 16640
UB = R3
UCH = 4608
TB = R3 + 9216
RS = R3 + 9728
EX = R3
AB = R2
UX = R2 + 40960
OB = R3
LDS_BYTES = 163840

sQ, sK, sV, sH, sW, sWO, sWS, sOUT, sSH = 4, 8, 12, 16, 20, 24, 28, 32, 36
sD = 40
sTAG = 42
sX, sJ, sWV, sXCC, sMODE, sLIM, sCNT = 44, 45, 46, 47, 48, 49, 50
sCLS = 51
sT0, sT1, sT2, sT3 = 52, 53, 54, 55
sP = 56
sC4096, sMASK = 58, 59
sDV = 60
sG32L, sKS, sRG, sM = 61, 62, 63, 64
sEPS6, sLOG2E, sEPS5, sINV512 = 65, 66, 67, 68
sTS = 70
sERR = 72
sWV14 = 73
sL2E2 = 84
sDM = 86
sG32 = 87
sQW, sQO, sQL = 88, 92, 96
sEPS2 = 100
sFXw, sFXr, sASRC, sKVw, sZw, sKVr, sZr, sSTw = 4, 5, 6, 7, 8, 9, 10, 11
sSTr, sPQr, sFPw, sFPr, sSTo, sST2 = 12, 14, 16, 17, 18, 19
sYB0, sYB1, sLM = 36, 37, 38
sTGY = 69

vL16, vL8, vXrow, vYa, vSTw, vSTr, vXw, vPQw, vSTATEw = 1, 2, 3, 4, 5, 6, 7, 8, 9
vTrW, vTrO, vDmaW, vDmaO, vTB1, vTB2, vZr, vTBw = 10, 11, 12, 13, 14, 15, 16, 17
vAB = 0
vDmaW2, vSTr2, vHi = 188, 189, 190
vTAG = 18
vSEL, vONE = 20, 24
vCSK, vCSV, vCSQ = 28, 29, 30
vX, vY = 34, 50
vPROF = 66
S0 = 68
vWOB = 192
aWK, aWV, aWQ, aWOA = 0, 64, 128, 192
aH = 128

p = Prog()
tail = []
stamps = []


def stamp(name):
    if SPIN == name:
        p("s_memrealtime s[74:75]")
        p("s_waitcnt lgkmcnt(0)")
    if not PROFILE:
        return
    n = len(stamps)
    stamps.append(name)
    p("s_memrealtime %s" % sr(sTS, 2))
    if "--clk" in sys.argv:
        p("s_memtime s[78:79]")
    p("s_waitcnt lgkmcnt(0)")
    p("v_writelane_b32 %s, %s, %d" % (vr(vPROF), sr(sTS), n))
    if "--clk" in sys.argv:
        p("v_writelane_b32 %s, s78, %d" % (vr(vPROF + 1), n))


def srd(base, nbytes):
    p("s_mov_b32 %s, %d" % (sr(base + 2), nbytes))
    p("s_mov_b32 %s, 0x20000" % sr(base + 3))


def sadd(dst, src, imm):
    p("s_add_u32 %s, %s, 0x%x" % (sr(dst), sr(src), imm))


def local_stores(lines, tag=None):
    slow, join = p.newlabel("slowst"), p.newlabel("joinst")
    p("s_cmp_eq_u32 %s, 0" % sr(sMODE))
    p("s_cbranch_scc1 %s" % slow)
    for l in lines:
        p(l, tag)
    p.label(join)

    def blk():
        p.label(slow)
        for l in lines:
            p(l + (" sc1" if l.startswith("buffer") else ""), tag)
        p("s_branch %s" % join)

    tail.append(blk)


sites = []


def count_site(code):
    if not (PROFILE and "--rc" in sys.argv):
        return lambda: None
    n = len(sites)
    sites.append(code)

    def emit():
        p("s_sub_u32 s83, %s, %s" % (sr(sLIM), sr(sCNT)))
        p("s_add_u32 s83, s83, 1")
        p("v_writelane_b32 %s, s83, %d" % (vr(vPROF), 40 + n))

    return emit


def poll(issue, check, code):
    top, done = p.newlabel("poll"), p.newlabel("polldone")
    cnt = count_site(code)
    p("s_mov_b32 %s, %s" % (sr(sCNT), sr(sLIM)))
    p.label(top)
    cnt()
    issue()
    check()
    p("s_cbranch_vccz %s" % done)
    p("s_sub_u32 %s, %s, 1" % (sr(sCNT), sr(sCNT)))
    p("s_cbranch_scc0 %s" % top)
    p("s_mov_b32 %s, 0" % sr(sLIM))
    p("s_or_b32 %s, %s, %d" % (sr(sERR), sr(sERR), 1 << code))
    p.label(done)


def poll_late(issue, check, code):
    out, join, top = p.newlabel("retry"), p.newlabel("retryjoin"), p.newlabel("retrytop")
    cnt = count_site(code)
    check()
    p("s_cbranch_vccnz %s" % out)
    p.label(join)

    def blk():
        p.label(out)
        p("s_mov_b32 %s, %s" % (sr(sCNT), sr(sLIM)))
        p.label(top)
        cnt()
        issue()
        check()
        p("s_cbranch_vccz %s" % join)
        p("s_sub_u32 %s, %s, 1" % (sr(sCNT), sr(sCNT)))
        p("s_cbranch_scc0 %s" % top)
        p("s_mov_b32 %s, 0" % sr(sLIM))
        p("s_or_b32 %s, %s, %d" % (sr(sERR), sr(sERR), 1 << code))
        p("s_branch %s" % join)

    tail.append(blk)


def sched(primary, at):
    n = 0
    for ins in primary:
        p.put([ins])
        if ins.kind == "mfma":
            p.put(at.pop(n, []))
            n += 1
    for k in sorted(at):
        p.put(at[k])


def place(at, groups, start, step):
    k = start
    for g in groups:
        at.setdefault(int(k), []).extend(g if isinstance(g, list) else [g])
        k += step
    return k


def check_sentinel(regs, tmp):
    regs = list(regs)
    if len(regs) == 1:
        p("v_cmp_eq_u32 vcc, -1, %s" % vr(regs[0]))
        return
    first = True
    i = 0
    while i < len(regs):
        if first:
            if len(regs) >= 3:
                p("v_max3_u32 %s, %s, %s, %s" % (vr(tmp), vr(regs[0]), vr(regs[1]), vr(regs[2])))
                i = 3
            else:
                p("v_max_u32 %s, %s, %s" % (vr(tmp), vr(regs[0]), vr(regs[1])))
                i = 2
            first = False
        elif i + 1 < len(regs):
            p("v_max3_u32 %s, %s, %s, %s" % (vr(tmp), vr(tmp), vr(regs[i]), vr(regs[i + 1])))
            i += 2
        else:
            p("v_max_u32 %s, %s, %s" % (vr(tmp), vr(tmp), vr(regs[i])))
            i += 1
    p("v_cmp_eq_u32 vcc, -1, %s" % vr(tmp))


def unpack(dst, src):
    p("v_lshlrev_b32 %s, 16, %s" % (vr(dst), vr(src)))
    p("v_and_b32 %s, %s, %s" % (vr(dst + 1), sr(sMASK), vr(src)))


def flag_store(soff_sgpr, local=True, tagreg=vTAG, off=0):
    p("s_mov_b64 exec, 1")
    line = "buffer_store_dwordx2 %s, off, %s, %s offset:%d" % (vr(tagreg, 2), sr(sWS, 4), sr(soff_sgpr), off)
    if local:
        local_stores([line])
    else:
        p(line + " sc1")
    p("s_mov_b64 exec, -1")


def barrier():
    p.waitlg()
    p("s_barrier")


def dma_groups(sq, step, const, va, srd_, region, tag):
    out = []
    for n in range(16):

        def one():
            c, r = n >> 2, n & 3
            if r == 0:
                p("s_add_u32 m0, %s, %d" % (sr(sQL + c), region))
            p("s_add_u32 %s, %s, %d" % (sr(sDM), sr(sq + c), const + r * (step - 1024)))
            p("buffer_load_dwordx4 %s, %s, %s offen offset:%d lds" % (vr(va(n)), sr(srd_, 4), sr(sDM), r * 1024), tag)

        out.append(p.cap(one))
    return out


def stage_w(part, region, tag):
    return dma_groups(sQW, 8 * 3072, part * 1024, lambda n: vDmaW if n % 2 == 0 else vDmaW2, sW, region, tag)


def stage_wo(half, region, tag):
    return dma_groups(sQO, 4096, half * 262144, lambda n: vDmaO, sWO, region, tag)


def with_m0(groups, region, idx):
    out, last = [], None
    for n in idx:
        g = [x for x in groups[n] if "m0" not in x.text]
        if (n >> 2) != last:
            g = p.cap(lambda: p("s_add_u32 m0, %s, %d" % (sr(sQL + (n >> 2)), region))) + g
            last = n >> 2
        out.append(g)
    return out


def touch_quarter(srd_, sq, const, va, rows, stride, t):
    p("s_add_u32 %s, %s, %d" % (sr(sDM), sr(sq), const))
    p("s_mov_b32 exec_hi, 0")
    p("buffer_load_dword %s, %s, %s, %s offen" % (vr(vDUM), vr(t), sr(srd_, 4), sr(sDM)))
    p("s_mov_b64 exec, -1")


def remap_m0(groups, region, n0):
    groups = list(groups)
    if groups and n0 % 4:
        groups[0] = p.cap(lambda: p("s_add_u32 m0, %s, %d" % (sr(sQL + (n0 >> 2)), region))) + groups[0]
    return groups


def quarter_tables():
    for c in range(4):
        if "--norot" in sys.argv:
            p("s_mov_b32 %s, %d" % (sr(sT0), c))
        else:
            p("s_add_u32 %s, %s, %d" % (sr(sT0), sr(sRG), c))
            p("s_and_b32 %s, %s, 3" % (sr(sT0), sr(sT0)))
        p("s_mul_i32 %s, %s, %d" % (sr(sQW + c), sr(sT0), 32 * 3072))
        p("s_lshl_b32 %s, %s, 14" % (sr(sQO + c), sr(sT0)))
        p("s_lshl_b32 %s, %s, 12" % (sr(sT0), sr(sT0)))
        p("s_add_u32 %s, %s, %s" % (sr(sQL + c), sr(sT0), sr(sWV14)))


def unstage(region, va, f, r0, step2):
    def body():
        base = va
        if region:
            p("v_add_u32 %s, 0x%x, %s" % (vr(vHi), region, vr(va)))
            base = vHi
        for n in range(16):
            for h in range(2):
                p("ds_read_b64_tr_b16 %s, %s offset:%d" % (vr(r0 + 4 * n + 2 * h, 2, f), vr(base), n * 4096 + h * step2))

    return p.cap(body)


def unstage_w(region, a0):
    return unstage(region, vTrW, "a", a0, 512)


def unstage_wo(region, f, r0):
    return unstage(region, vTrO, f, r0, 2048)


def mix(a, b, na, nb):
    out = []
    a, b = list(a), list(b)
    while a or b:
        for _ in range(na):
            if a:
                x = a.pop(0)
                out.extend(x if isinstance(x, list) else [x])
        for _ in range(nb):
            if b:
                x = b.pop(0)
                out.extend(x if isinstance(x, list) else [x])
    return out


def stats_compute(a, b, pk=True):
    t = b
    if not pk:
        p("v_mul_f32 %s, %s, %s" % (vr(t + 2), vr(vX), vr(vX)))
        p("v_add_f32 %s, %s, %s" % (vr(t), vr(vX), vr(vX + 1)))
        for e in range(1, 16):
            p("v_fmac_f32 %s, %s, %s" % (vr(t + 2), vr(vX + e), vr(vX + e)))
            if e >= 2:
                p("v_add_f32 %s, %s, %s" % (vr(t), vr(t), vr(vX + e)))
        p("v_permlane32_swap_b32 %s, %s" % (vr(t), vr(t + 2)))
        p("v_add_f32 %s, %s, %s" % (vr(a), vr(t), vr(t + 2)))
        p("v_min_u32 %s, -2, %s" % (vr(a), vr(a)))
        return
    p("v_pk_mul_f32 %s, %s, %s" % (vr(t + 2, 2), vr(vX, 2), vr(vX, 2)))
    p("v_pk_add_f32 %s, %s, %s" % (vr(t, 2), vr(vX, 2), vr(vX + 2, 2)))
    for e in range(2, 16, 2):
        p("v_pk_fma_f32 %s, %s, %s, %s" % (vr(t + 2, 2), vr(vX + e, 2), vr(vX + e, 2), vr(t + 2, 2)))
        if e >= 4:
            p("v_pk_add_f32 %s, %s, %s" % (vr(t, 2), vr(t, 2), vr(vX + e, 2)))
    p("v_add_f32 %s, %s, %s" % (vr(t), vr(t), vr(t + 1)))
    p("v_add_f32 %s, %s, %s" % (vr(t + 2), vr(t + 2), vr(t + 3)))
    p("v_permlane32_swap_b32 %s, %s" % (vr(t), vr(t + 2)))
    p("v_add_f32 %s, %s, %s" % (vr(a), vr(t), vr(t + 2)))
    p("v_min_u32 %s, -2, %s" % (vr(a), vr(a)))


def stats_issue(buf, soff):
    for u in range(4):
        p("buffer_load_dwordx4 %s, %s, %s, %s offen offset:%d sc1" % (vr(buf + 4 * u, 4), vr(vSTr), sr(sWS, 4), sr(soff), 512 * u))


def stats_finish(buf, vR, vNM):
    for u in (0, 8):
        p("v_pk_add_f32 %s, %s, %s" % (vr(buf + u, 2), vr(buf + u, 2), vr(buf + u + 2, 2)))
        p("v_pk_add_f32 %s, %s, %s" % (vr(buf + u + 4, 2), vr(buf + u + 4, 2), vr(buf + u + 6, 2)))
    p("v_pk_add_f32 %s, %s, %s" % (vr(buf, 2), vr(buf, 2), vr(buf + 4, 2)))
    p("v_pk_add_f32 %s, %s, %s" % (vr(buf + 8, 2), vr(buf + 8, 2), vr(buf + 12, 2)))
    p("v_pk_add_f32 %s, %s, %s" % (vr(buf, 2), vr(buf, 2), vr(buf + 8, 2)))
    p("v_permlane32_swap_b32 %s, %s" % (vr(buf), vr(buf + 1)))
    p("v_add_f32 %s, %s, %s" % (vr(buf), vr(buf), vr(buf + 1)))
    p("v_mul_f32 %s, %s, %s" % (vr(buf), sr(sINV512), vr(buf)))
    p("v_mov_b32 %s, %s" % (vr(buf + 1), vr(buf)))
    p("v_permlane32_swap_b32 %s, %s" % (vr(buf), vr(buf + 1)))
    p("v_fma_f32 %s, -%s, %s, %s" % (vr(buf + 1), vr(buf), vr(buf), vr(buf + 1)))
    p("v_max_f32 %s, 0, %s" % (vr(buf + 1), vr(buf + 1)))
    p("v_add_f32 %s, %s, %s" % (vr(buf + 1), sr(sEPS5), vr(buf + 1)))
    p("v_rsq_f32 %s, %s" % (vr(vR), vr(buf + 1)))
    p("v_mul_f32 %s, -%s, %s" % (vr(vNM), vr(buf), vr(vR)))


def prologue():
    p("s_cmp_ge_u32 s2, 256")
    p("s_cbranch_scc1 L_exit")
    kern = NAME + "_kernel"
    if SPIN == "entry":
        p("s_memrealtime s[74:75]")
    if PROFILE:
        p("s_memrealtime s[80:81]")
        p("s_memtime s[82:83]")
    for base, off in ((sK, 8), (sV, 16), (sWS, 88), (sSH, 24), (sH, 32), (sQ, 0), (sD, 40), (sW, 56), (sWO, 64), (sOUT, 72)):
        p("s_load_dwordx2 %s, s[0:1], %d" % (sr(base, 2), off))
    p("s_getpc_b64 %s" % sr(sP, 2))
    p("s_and_b32 %s, %s, 0xffffff00" % (sr(sP), sr(sP)))
    p("s_lshr_b32 %s, s2, 3" % sr(sJ))
    p("s_lshl_b32 %s, %s, 10" % (sr(sT0), sr(sJ)))
    p("v_lshl_add_u32 %s, v0, 7, %s" % (vr(S0), sr(sT0)))
    p("v_min_u32 %s, L_exit-%s, %s" % (vr(S0), kern, vr(S0)))
    p("v_cmp_gt_u32 vcc, 8, v0")
    p("s_and_saveexec_b64 %s, vcc" % sr(sTS, 2))
    p("s_cbranch_execz L_nopf")
    p("global_load_dword %s, %s, %s" % (vr(S0 + 1), vr(S0), sr(sP, 2)))
    p.label("L_nopf")
    p("s_mov_b64 exec, -1")
    if PROFILE:
        p("v_mov_b32 %s, 0" % vr(vPROF))
        p("v_mov_b32 %s, 0" % vr(vPROF + 1))
    p("s_and_b32 %s, s2, 7" % sr(sX))
    p("v_lshrrev_b32 %s, 6, v0" % vr(S0 + 2))
    p("v_and_b32 %s, 63, v0" % vr(vLANE))
    p("v_readfirstlane_b32 %s, %s" % (sr(sWV), vr(S0 + 2)))
    srd(sK, 2097152)
    srd(sV, 2097152)
    srd(sSH, 4096)
    p("s_mov_b32 %s, 4096" % sr(sC4096))


def prologue2():
    srd(sWS, WS_BYTES)
    srd(sH, 2097152)
    srd(sQ, 2097152)
    srd(sW, 1572864)
    p("s_lshl_b32 %s, %s, %d" % (sr(sCLS), sr(sX), CLS_SHIFT))
    sadd(sCLS, sCLS, CLS)
    p("s_lshr_b32 %s, %s, 2" % (sr(sG32L), sr(sJ)))
    p("s_and_b32 %s, %s, 3" % (sr(sKS), sr(sJ)))
    p("s_lshl_b32 %s, %s, 2" % (sr(sKS), sr(sKS)))
    p("s_add_u32 %s, %s, %s" % (sr(sKS), sr(sKS), sr(sWV)))


def prologue3():
    srd(sWO, 524288)
    srd(sOUT, 2097152)
    p("s_mov_b32 %s, 0xffff0000" % sr(sMASK))
    p("s_getreg_b32 %s, hwreg(HW_REG_XCC_ID, 0, 4)" % sr(sXCC))
    p("s_mov_b32 %s, 200000" % sr(sLIM))
    p("s_mov_b32 %s, 0" % sr(sERR))
    p("s_mov_b32 %s, 0x358637bd" % sr(sEPS6))
    p("s_mov_b32 %s, 0x3fb8aa3b" % sr(sL2E2))
    p("s_mov_b32 %s, 0x3fb8aa3b" % sr(sL2E2 + 1))
    p("s_mov_b32 %s, 0x358637bd" % sr(sEPS2))
    p("s_mov_b32 %s, 0x358637bd" % sr(sEPS2 + 1))
    p("s_mov_b32 %s, 0x3727c5ac" % sr(sEPS5))
    p("s_mov_b32 %s, 0x3b000000" % sr(sINV512))
    p("s_lshr_b32 %s, %s, 3" % (sr(sRG), sr(sJ)))
    p("s_and_b32 %s, %s, 7" % (sr(sM), sr(sJ)))
    p("s_lshl_b32 %s, %s, 14" % (sr(sWV14), sr(sWV)))
    p("s_lshl_b32 %s, %s, 3" % (sr(sG32), sr(sX)))
    p("s_add_u32 %s, %s, %s" % (sr(sG32), sr(sG32), sr(sG32L)))


vLANE = S0 + 3
vKA, vKB, vUT, vT = S0 + 4, S0 + 5, S0 + 6, S0 + 7
KK = S0 + 8
VV = S0 + 20
SH = S0 + 28
HE = S0 + 32
X0 = vY
KF = S0 + 52
WF = S0 + 74
UF = S0 + 82
UP = S0 + 98
VF = S0 + 106
vST0 = S0 + 119
vDUM = 191
FF = S0 + 112
vHA, vHB, vCL = S0 + 116, S0 + 117, S0 + 118
NPB = opt("npb", 5)


def p0_pair_chunk(vp, vc):
    nb = 5 - NPB
    p("v_and_b32 %s, %d, v0" % (vp, (1 << NPB) - 1))
    if nb:
        p("v_bfe_u32 %s, v0, 6, %d" % (vc, nb))
        p("v_lshl_add_u32 %s, %s, %d, %s" % (vp, vc, NPB, vp))
    if NPB == 5:
        p("v_lshrrev_b32 %s, 5, v0" % vc)
        return
    p("v_bfe_u32 %s, v0, %d, %d" % (vc, NPB, 6 - NPB))
    if nb < 2:
        p("v_lshrrev_b32 %s, %d, v0" % (vr(VF), 6 + nb))
        p("v_lshl_add_u32 %s, %s, %d, %s" % (vc, vr(VF), 6 - NPB, vc))


def p0_issue():
    l = vr(vLANE)
    t = vr(vT)
    p("s_lshl_b32 %s, %s, 7" % (sr(sT0), sr(sX)))
    p("s_lshl_b32 %s, %s, 16" % (sr(sT1), sr(sJ)))
    p("s_add_u32 %s, %s, %s" % (sr(sT1), sr(sT1), sr(sT0)))
    p0_pair_chunk(t, vr(vKA))
    p("v_lshlrev_b32 %s, 13, %s" % (vr(vKA), vr(vKA)))
    p("v_lshl_add_u32 %s, %s, 2, %s" % (vr(vKB), t, vr(vKA)))
    p("v_add_u32 %s, %s, %s" % (vr(vKB), sr(sT1), vr(vKB)))
    p("v_add_u32 %s, 0xfffff400, %s" % (vr(vKA), vr(vKB)))
    p("v_lshlrev_b32 %s, 4, %s" % (vr(vUT), t))
    p("s_lshl_b32 %s, %s, 2" % (sr(sT2), sr(sT0)))
    p.waitlg()
    if PROFILE:
        stamps.append("entry")
        p("v_writelane_b32 %s, s80, 0" % vr(vPROF))
        p("v_writelane_b32 %s, s82, 0" % vr(vPROF + 1))
    stamp("kernarg")
    p("buffer_load_dwordx4 %s, %s, %s, %s offen" % (vr(SH, 4), vr(vUT), sr(sSH, 4), sr(sT2)))
    for r in range(3):
        p("buffer_load_dword %s, %s, %s, 0 offen offset:%d" % (vr(KK + r), vr(vKA), sr(sK, 4), 1024 * r))
    for r in range(8):
        so = "0" if r < 4 else sr(sC4096)
        p("buffer_load_dword %s, %s, %s, %s offen offset:%d" % (vr(KK + 3 + r), vr(vKB), sr(sK, 4), so, 1024 * (r % 4)))
    for r in range(8):
        so = "0" if r < 4 else sr(sC4096)
        p("buffer_load_dword %s, %s, %s, %s offen offset:%d" % (vr(VV + r), vr(vKB), sr(sV, 4), so, 1024 * (r % 4)), "kv")
    if WSOFF:
        p("s_add_u32 %s, %s, 0x%x" % (sr(sWS), sr(sWS), WSOFF))
        p("s_addc_u32 %s, %s, 0" % (sr(sWS + 1), sr(sWS + 1)))
    p("s_load_dwordx2 %s, %s, %d" % (sr(sTAG, 2), sr(sWS, 2), EPOCH))
    prologue2()
    p("s_lshl_b32 %s, %s, 5" % (sr(sT0), sr(sX)))
    p("s_add_u32 %s, %s, %s" % (sr(sT0), sr(sT0), sr(sJ)))
    p("s_lshl_b32 %s, %s, 2" % (sr(sT1), sr(sT0)))
    p("s_add_u32 %s, %s, %s" % (sr(sD), sr(sD), sr(sT1)))
    p("s_addc_u32 %s, %s, 0" % (sr(sD + 1), sr(sD + 1)))
    p("s_load_dword %s, %s, 0" % (sr(sDV), sr(sD, 2)))
    p("s_lshl_b32 %s, %s, 13" % (sr(sT0), sr(sT0)))
    p("v_lshlrev_b32 %s, 5, v0" % vr(vHA))
    p("v_add_u32 %s, %s, %s" % (vr(vHA), sr(sT0), vr(vHA)))
    p("v_add_u32 %s, -8, %s" % (vr(vHB), vr(vHA)))
    p("buffer_load_dwordx2 %s, %s, %s, 0 offen" % (vr(HE, 2), vr(vHB), sr(sH, 4)))
    p("buffer_load_dwordx4 %s, %s, %s, 0 offen" % (vr(HE + 2, 4), vr(vHA), sr(sH, 4)))
    p("buffer_load_dwordx4 %s, %s, %s, 0 offen offset:16" % (vr(HE + 6, 4), vr(vHA), sr(sH, 4)))
    p("s_lshl_b32 %s, %s, 7" % (sr(sT0), sr(sWV)))
    p("s_lshl_b32 %s, %s, 10" % (sr(sT1), sr(sJ)))
    sadd(sT1, sT1, st_off(0))
    p("v_mov_b32 %s, 0x%x" % (t, C_FLAGA))
    p("v_writelane_b32 %s, %s, 1" % (t, sr(sT1)))
    sadd(sT1, sT1, 512)
    p("v_writelane_b32 %s, %s, 2" % (t, sr(sT1)))
    p("s_add_u32 %s, %s, %s" % (sr(sT0), sr(sT0), sr(sCLS)))
    p("s_mov_b64 exec, 7")
    p("buffer_load_dword %s, %s, %s, %s offen sc1" % (vr(vDUM), t, sr(sWS, 4), sr(sT0)))
    p("s_mov_b64 exec, -1")
    prologue3()


def x0_address():
    l, t = vr(vLANE), vr(vT)
    p("s_lshl_b32 %s, %s, 18" % (sr(sT0), sr(sX)))
    p("s_lshl_b32 %s, %s, 15" % (sr(sT1), sr(sG32L)))
    p("s_add_u32 %s, %s, %s" % (sr(sT0), sr(sT0), sr(sT1)))
    p("s_lshl_b32 %s, %s, 6" % (sr(sT1), sr(sKS)))
    p("s_add_u32 %s, %s, %s" % (sr(sT0), sr(sT0), sr(sT1)))
    p("v_and_b32 %s, 31, %s" % (t, l))
    p("v_lshlrev_b32 %s, 10, %s" % (vr(vXrow), t))
    p("v_and_b32 %s, 32, %s" % (t, l))
    p("v_add3_u32 %s, %s, %s, %s" % (vr(vXrow), vr(vXrow), t, sr(sT0)))


def x0_issue():
    p("buffer_load_dwordx4 %s, %s, %s, 0 offen" % (vr(X0, 4), vr(vXrow), sr(sQ, 4)))
    p("buffer_load_dwordx4 %s, %s, %s, 0 offen offset:16" % (vr(X0 + 4, 4), vr(vXrow), sr(sQ, 4)))


def clear_setup():
    for r in range(4):
        p("v_mov_b32 %s, -1" % vr(FF + r))


def clears():
    line = lambda so: "buffer_store_dwordx4 %s, %s, %s, %s offen" % (vr(FF, 4), vr(vL16), sr(sWS, 4), sr(so))
    p("s_lshl_b32 %s, %s, 2" % (sr(sT0), sr(sJ)))
    p("s_add_u32 %s, %s, %s" % (sr(sT0), sr(sT0), sr(sWV)))
    p("s_lshl_b32 %s, %s, 10" % (sr(sT1), sr(sT0)))
    p("s_add_u32 %s, %s, %s" % (sr(sT1), sr(sT1), sr(sCLS)))
    sadd(sT1, sT1, C_STATE)
    p("s_lshl_b32 %s, %s, 8" % (sr(sT2), sr(sT0)))
    p("s_add_u32 %s, %s, %s" % (sr(sT2), sr(sT2), sr(sCLS)))
    sadd(sT2, sT2, C_STATE + 0x20000)
    local_stores([line(sT1), "s_mov_b64 exec, 0xffff", line(sT2), "s_mov_b64 exec, -1"], "clr")
    p("s_lshl_b32 %s, s2, 2" % sr(sT0))
    p("s_add_u32 %s, %s, %s" % (sr(sT0), sr(sT0), sr(sWV)))
    p("s_lshl_b32 %s, %s, 10" % (sr(sT1), sr(sT0)))
    sadd(sT1, sT1, KVP)
    p("s_lshl_b32 %s, %s, 7" % (sr(sT2), sr(sT0)))
    sadd(sT2, sT2, ZP)
    p(line(sT1) + " sc1", "clr")
    p("s_mov_b64 exec, 0xff")
    p(line(sT2) + " sc1", "clr")
    p("s_mov_b64 exec, -1")


def addresses():
    l = vr(vLANE)
    t, t2, t3 = vr(vT), vr(VF), vr(VF + 1)
    a, b = vr(VF + 2), vr(VF + 3)
    p("v_lshlrev_b32 %s, 4, %s" % (vr(vL16), l))
    p("v_lshlrev_b32 %s, 3, %s" % (vr(vL8), l))
    p("s_mul_i32 %s, %s, %d" % (sr(sT0), sr(sWV), 128 * 3072))
    p("s_lshl_b32 %s, %s, 7" % (sr(sT1), sr(sM)))
    p("s_add_u32 %s, %s, %s" % (sr(sT0), sr(sT0), sr(sT1)))
    p("v_lshrrev_b32 %s, 3, %s" % (a, l))
    p("v_and_b32 %s, 2, %s" % (b, a))
    p("v_mul_u32_u24 %s, 0xc00, %s" % (a, a))
    p("v_xor_b32 %s, %s, %s" % (b, l, b))
    p("v_and_b32 %s, 7, %s" % (b, b))
    p("v_lshl_add_u32 %s, %s, 4, %s" % (a, b, a))
    p("v_add_u32 %s, %s, %s" % (vr(vDmaW), sr(sT0), a))
    p("v_xor_b32 %s, 64, %s" % (vr(vDmaW2), vr(vDmaW)))
    p("s_lshl_b32 %s, %s, 16" % (sr(sT0), sr(sG32)))
    p("s_lshl_b32 %s, %s, 12" % (sr(sT1), sr(sKS)))
    p("s_add_u32 %s, %s, %s" % (sr(sT0), sr(sT0), sr(sT1)))
    p("v_and_b32 %s, 31, %s" % (t, l))
    p("v_lshrrev_b32 %s, 5, %s" % (t2, l))
    p("v_lshlrev_b32 %s, 11, %s" % (t3, t2))
    p("v_bfe_u32 %s, %s, 1, 1" % (a, t))
    p("v_lshl_add_u32 %s, %s, 7, %s" % (t3, a, t3))
    p("v_lshrrev_b32 %s, 2, %s" % (a, t))
    p("v_lshl_add_u32 %s, %s, 4, %s" % (t3, a, t3))
    p("v_and_b32 %s, 1, %s" % (a, t))
    p("v_lshl_add_u32 %s, %s, 3, %s" % (vr(vYa), a, t3))
    p("v_add_u32 %s, %s, %s" % (vr(vYa), sr(sT0), vr(vYa)))
    p("s_lshl_b32 %s, %s, 12" % (sr(sT2), sr(sG32L)))
    p("s_lshr_b32 %s, %s, 1" % (sr(sT1), sr(sKS)))
    p("s_lshl_b32 %s, %s, 9" % (sr(sT1), sr(sT1)))
    p("s_add_u32 %s, %s, %s" % (sr(sT0), sr(sT2), sr(sT1)))
    p("s_and_b32 %s, %s, 1" % (sr(sT1), sr(sKS)))
    p("s_lshl_b32 %s, %s, 3" % (sr(sT1), sr(sT1)))
    p("s_add_u32 %s, %s, %s" % (sr(sT0), sr(sT0), sr(sT1)))
    p("v_lshlrev_b32 %s, 2, %s" % (t3, t2))
    p("v_lshl_add_u32 %s, %s, 4, %s" % (vr(vSTw), t, t3))
    p("v_add_u32 %s, %s, %s" % (vr(vSTw), sr(sT0), vr(vSTw)))
    p("v_lshlrev_b32 %s, 11, %s" % (t3, t2))
    p("v_lshl_add_u32 %s, %s, 4, %s" % (vr(vSTr), t, t3))
    p("v_add_u32 %s, %s, %s" % (vr(vSTr), sr(sT2), vr(vSTr)))
    p("s_lshl_b32 %s, %s, 15" % (sr(sT0), sr(sG32L)))
    p("s_lshl_b32 %s, %s, 10" % (sr(sT1), sr(sKS)))
    p("s_add_u32 %s, %s, %s" % (sr(sT0), sr(sT0), sr(sT1)))
    p("v_lshrrev_b32 %s, 4, %s" % (t3, t))
    p("v_lshlrev_b32 %s, 14, %s" % (vr(vXw), t3))
    p("v_lshl_add_u32 %s, %s, 9, %s" % (vr(vXw), t2, vr(vXw)))
    p("v_and_b32 %s, 15, %s" % (t, l))
    p("v_lshl_add_u32 %s, %s, 4, %s" % (vr(vXw), t, vr(vXw)))
    p("v_add_u32 %s, %s, %s" % (vr(vXw), sr(sT0), vr(vXw)))
    p("v_lshrrev_b32 %s, 4, %s" % (t2, l))
    p("s_lshl_b32 %s, %s, 13" % (sr(sT0), sr(sRG)))
    p("s_lshr_b32 %s, %s, 1" % (sr(sT1), sr(sWV)))
    p("s_lshl_b32 %s, %s, 12" % (sr(sT1), sr(sT1)))
    p("s_add_u32 %s, %s, %s" % (sr(sT0), sr(sT0), sr(sT1)))
    p("s_and_b32 %s, %s, 1" % (sr(sT1), sr(sWV)))
    p("s_lshl_b32 %s, %s, 8" % (sr(sT1), sr(sT1)))
    p("s_add_u32 %s, %s, %s" % (sr(sT0), sr(sT0), sr(sT1)))
    p("v_lshlrev_b32 %s, 10, %s" % (t3, t2))
    p("v_lshl_add_u32 %s, %s, 4, %s" % (vr(vSTr2), t, t3))
    p("v_add_u32 %s, %s, %s" % (vr(vSTr2), sr(sT0), vr(vSTr2)))
    p("s_lshl_b32 %s, %s, 6" % (sr(sT0), sr(sWV)))
    sadd(sT0, sT0, TB)
    p("v_and_b32 %s, 1, %s" % (t3, t2))
    p("v_lshlrev_b32 %s, 8, %s" % (t3, t3))
    p("v_lshl_add_u32 %s, %s, 2, %s" % (vr(vTBw), t, t3))
    p("v_add_u32 %s, %s, %s" % (vr(vTBw), sr(sT0), vr(vTBw)))
    p("v_lshrrev_b32 %s, 1, %s" % (t3, t2))
    p("v_lshlrev_b32 %s, 9, %s" % (vr(vSTATEw), t3))
    p("v_lshl_add_u32 %s, %s, 4, %s" % (vr(vSTATEw), t, vr(vSTATEw)))
    p("v_and_b32 %s, 1, %s" % (t3, t2))
    p("v_lshl_add_u32 %s, %s, 3, %s" % (vr(vSTATEw), t3, vr(vSTATEw)))
    p("s_lshl_b32 %s, %s, 19" % (sr(sT0), sr(sX)))
    p("s_lshl_b32 %s, %s, 17" % (sr(sT1), sr(sRG)))
    p("s_add_u32 %s, %s, %s" % (sr(sT0), sr(sT0), sr(sT1)))
    p("s_lshl_b32 %s, %s, 2" % (sr(sT1), sr(sM)))
    p("s_add_u32 %s, %s, %s" % (sr(sT1), sr(sT1), sr(sWV)))
    p("s_lshl_b32 %s, %s, 10" % (sr(sT1), sr(sT1)))
    p("s_add_u32 %s, %s, %s" % (sr(sT0), sr(sT0), sr(sT1)))
    p("v_add_u32 %s, %s, %s" % (vr(vPQw), sr(sT0), vr(vSTATEw)))
    p("v_lshlrev_b32 %s, 4, %s" % (vr(vTB1), t2))
    p("v_add_u32 %s, 0x%x, %s" % (vr(vTB1), TB, vr(vTB1)))
    p("v_lshlrev_b32 %s, 2, %s" % (vr(vTB2), t))
    p("v_add_u32 %s, 0x%x, %s" % (vr(vTB2), TB, vr(vTB2)))
    p("v_lshlrev_b32 %s, 4, %s" % (t3, t2))
    p("v_lshl_add_u32 %s, %s, 6, %s" % (vr(vZr), t, t3))
    p("v_and_b32 %s, 1, %s" % (a, t))
    p("v_lshlrev_b32 %s, 4, %s" % (a, a))
    p("v_mov_b32 %s, 0x3f80" % b)
    p("v_lshlrev_b32 %s, %s, %s" % (a, a, b))
    p("v_and_b32 %s, 2, %s" % (b, t))
    p("v_cmp_eq_u32 vcc, 0, %s" % b)
    p("v_mov_b32 %s, 0x3f803f80" % vr(vONE))
    for r in range(1, 4):
        p("v_mov_b32 %s, %s" % (vr(vONE + r), vr(vONE)))
    p("v_cndmask_b32 %s, 0, %s, vcc" % (vr(vSEL), a))
    p("v_cndmask_b32_e64 %s, %s, 0, vcc" % (vr(vSEL + 1), a))
    p("v_mov_b32 %s, %s" % (vr(vSEL + 2), vr(vSEL)))
    p("v_mov_b32 %s, %s" % (vr(vSEL + 3), vr(vSEL + 1)))
    p("v_lshrrev_b32 %s, 2, %s" % (a, t))
    p("v_lshl_add_u32 %s, %s, 3, %s" % (a, t2, a))
    p("v_bfe_u32 %s, %s, 1, 1" % (b, a))
    p("v_and_b32 %s, 1, %s" % (t3, t2))
    p("v_lshl_add_u32 %s, %s, 1, %s" % (b, t3, b))
    p("v_xor_b32 %s, %s, %s" % (b, sr(sWV), b))
    p("v_lshlrev_b32 %s, 7, %s" % (a, a))
    p("v_lshl_add_u32 %s, %s, 5, %s" % (a, b, a))
    p("v_and_b32 %s, 3, %s" % (b, t))
    p("v_lshl_add_u32 %s, %s, 3, %s" % (vr(vTrW), b, a))
    p("v_lshrrev_b32 %s, 2, %s" % (a, t))
    p("v_xor_b32 %s, %s, %s" % (b, sr(sWV), a))
    p("v_lshlrev_b32 %s, 6, %s" % (b, b))
    p("v_lshl_add_u32 %s, %s, 8, %s" % (b, a, b))
    p("v_lshrrev_b32 %s, 1, %s" % (a, t2))
    p("v_lshl_add_u32 %s, %s, 10, %s" % (b, a, b))
    p("v_and_b32 %s, 1, %s" % (a, t2))
    p("v_lshl_add_u32 %s, %s, 4, %s" % (b, a, b))
    p("v_and_b32 %s, 1, %s" % (a, t))
    p("v_lshl_add_u32 %s, %s, 5, %s" % (b, a, b))
    p("v_bfe_u32 %s, %s, 1, 1" % (a, t))
    p("v_lshl_add_u32 %s, %s, 3, %s" % (vr(vTrO), a, b))
    p("s_lshl_b32 %s, %s, 16" % (sr(sT0), sr(sWV)))
    p("s_and_b32 %s, %s, 3" % (sr(sT1), sr(sJ)))
    p("s_lshl_b32 %s, %s, 8" % (sr(sT1), sr(sT1)))
    p("s_add_u32 %s, %s, %s" % (sr(sT0), sr(sT0), sr(sT1)))
    p("v_lshlrev_b32 %s, 2, %s" % (a, t2))
    p("v_xor_b32 %s, %s, %s" % (a, t, a))
    p("v_lshlrev_b32 %s, 4, %s" % (a, a))
    p("v_lshl_add_u32 %s, %s, 10, %s" % (a, t2, a))
    p("v_add_u32 %s, %s, %s" % (vr(vDmaO), sr(sT0), a))


def p0_compute():
    for d in range(4):
        src0 = SH + (d >> 1)
        src1 = SH + 2 + (d >> 1)
        if d & 1:
            p("v_and_b32 %s, %s, %s" % (vr(WF + 2 * d), sr(sMASK), vr(src0)))
            p("v_and_b32 %s, %s, %s" % (vr(WF + 2 * d + 1), sr(sMASK), vr(src1)))
        else:
            p("v_lshlrev_b32 %s, 16, %s" % (vr(WF + 2 * d), vr(src0)))
            p("v_lshlrev_b32 %s, 16, %s" % (vr(WF + 2 * d + 1), vr(src1)))
    for r in range(11):
        unpack(KF + 2 * r, KK + r)
    for t in range(8):
        p("v_pk_mul_f32 %s, %s, %s" % (vr(UF + 2 * t, 2), vr(KF + 2 * t, 2), vr(WF + 6, 2)))
    for d in (2, 1, 0):
        for t in range(8):
            p("v_pk_fma_f32 %s, %s, %s, %s" % (vr(UF + 2 * t, 2), vr(KF + 2 * (t + 3 - d), 2), vr(WF + 2 * d, 2), vr(UF + 2 * t, 2)))
    for t in range(8):
        unpack(KF + 2 * t, VV + t)
    for t in range(8):
        p("v_pk_mul_f32 %s, %s, %s" % (vr(UF + 2 * t, 2), vr(UF + 2 * t, 2), vr(KF + 2 * t, 2)))
    for c in range(2):
        for n in range(4):
            p("v_cvt_pk_bf16_f32 %s, %s, %s" % (vr(UP + 4 * c + n), vr(UF + 2 * (7 - 2 * n) + c), vr(UF + 2 * (6 - 2 * n) + c)))
        if UTL:
            p("ds_write_b128 %s, %s offset:%d" % (vr(vKA), vr(UP + 4 * c, 4), 128 * c))
        else:
            p("buffer_store_dwordx4 %s, %s, %s, %s offen sc1" % (vr(UP + 4 * c, 4), vr(vUT), sr(sWS, 4), sr(sCLS if c == 0 else sT3)), "ut")
    if UTL:
        barrier()
        for c in range(2):
            p("ds_read_b128 %s, %s offset:%d" % (vr(UP + 4 * c, 4), vr(vKB), 4096 * c))
        for c in range(2):
            p("buffer_store_dwordx4 %s, %s, %s, %s offen sc1" % (vr(UP + 4 * c, 4), vr(vUT), sr(sWS, 4), sr(sCLS if c == 0 else sT3)), "ut")


UTL = opt("utl", 1)


def ut_address():
    t = vr(vT)
    if UTL:
        a, b = vr(VF), vr(VF + 1)
        p("v_and_b32 %s, 31, v0" % a)
        p("v_lshrrev_b32 %s, 5, v0" % t)
        p("v_xor_b32 %s, %s, %s" % (t, t, a))
        p("v_xor_b32 %s, 7, %s" % (t, t))
        p("v_and_b32 %s, 7, %s" % (t, t))
        p("v_lshlrev_b32 %s, 4, %s" % (t, t))
        p("v_lshl_add_u32 %s, %s, 8, %s" % (vr(vKA), a, t))
        p("v_add_u32 %s, 0x%x, %s" % (vr(vKA), UX, vr(vKA)))
        p("v_lshlrev_b32 %s, 4, v0" % vr(vKB))
        p("v_add_u32 %s, 0x%x, %s" % (vr(vKB), UX, vr(vKB)))
        p("v_lshrrev_b32 %s, 4, v0" % a)
        p("v_xor_b32 %s, v0, %s" % (a, a))
        p("v_and_b32 %s, 7, %s" % (a, a))
        p("v_lshrrev_b32 %s, 3, v0" % b)
        p("v_lshlrev_b32 %s, 12, %s" % (b, b))
        p("v_lshl_add_u32 %s, %s, 4, %s" % (a, a, b))
        p("s_lshl_b32 %s, %s, 7" % (sr(sT1), sr(sJ)))
        p("s_sub_u32 %s, 3968, %s" % (sr(sT0), sr(sT1)))
        p("v_add_u32 %s, %s, %s" % (vr(vUT), sr(sT0), a))
        sadd(sT3, sCLS, 32 * 4096)
        return
    p("s_lshl_b32 %s, %s, 7" % (sr(sT1), sr(sJ)))
    p("s_sub_u32 %s, 4080, %s" % (sr(sT0), sr(sT1)))
    p0_pair_chunk(vr(vUT), t)
    p("v_lshlrev_b32 %s, 13, %s" % (vr(vUT), vr(vUT)))
    p("v_lshlrev_b32 %s, 4, %s" % (t, t))
    p("v_sub_u32 %s, %s, %s" % (vr(vUT), vr(vUT), t))
    p("v_add_u32 %s, %s, %s" % (vr(vUT), sr(sT0), vr(vUT)))
    sadd(sT3, sCLS, 4096)


def h_copies():
    A, B = KF, KF + 8
    C = KF + 16
    t = vr(vT)
    wa = vr(vHA)
    p("v_and_b32 %s, 127, v0" % t)
    p("s_lshr_b32 %s, %s, 1" % (sr(sT0), sr(sWV)))
    p("s_lshl_b32 %s, %s, 16" % (sr(sT1), sr(sDV)))
    p("s_and_b32 %s, %s, %s" % (sr(sT2), sr(sDV), sr(sMASK)))
    p("s_cmp_eq_u32 %s, 0" % sr(sT0))
    p("s_cselect_b32 %s, %s, %s" % (sr(sT1), sr(sT1), sr(sT2)))
    p("v_cmp_eq_u32 vcc, 0, %s" % t)
    p("v_lshlrev_b32 %s, 16, %s" % (vr(C), vr(HE + 2)))
    p("v_add_f32 %s, %s, %s" % (vr(C), sr(sT1), vr(C)))
    p("v_cvt_pk_bf16_f32 %s, %s, %s" % (vr(C), vr(C), vr(C)))
    p("v_bfi_b32 %s, %s, %s, %s" % (vr(C), sr(sMASK), vr(HE + 2), vr(C)))
    p("v_cndmask_b32 %s, %s, %s, vcc" % (vr(HE + 2), vr(HE + 2), vr(C)))
    p("v_cndmask_b32_e64 %s, %s, 0, vcc" % (vr(HE), vr(HE)))
    p("v_cndmask_b32_e64 %s, %s, 0, vcc" % (vr(HE + 1), vr(HE + 1)))
    p("s_mul_i32 %s, %s, %d" % (sr(sT0), sr(sT0), HCH))
    sadd(sT0, sT0, HB + 32)
    p("v_lshlrev_b32 %s, 5, %s" % (wa, t))
    p("v_add_u32 %s, %s, %s" % (wa, sr(sT0), wa))
    p("ds_write_b128 %s, %s offset:%d" % (wa, vr(HE + 2, 4), 3 * HCOPY))
    p("ds_write_b128 %s, %s offset:%d" % (wa, vr(HE + 6, 4), 3 * HCOPY + 16))
    for n in range(8):
        p("v_alignbit_b32 %s, %s, %s, 16" % (vr(A + n), vr(HE + n + 1), vr(HE + n)))
    p("ds_write_b128 %s, %s offset:%d" % (wa, vr(A, 4), 0))
    p("ds_write_b128 %s, %s offset:%d" % (wa, vr(A + 4, 4), 16))
    for n in range(8):
        p("v_alignbit_b32 %s, %s, %s, 16" % (vr(B + n), vr(HE + n + 2), vr(HE + n + 1)))
    p("ds_write_b128 %s, %s offset:%d" % (wa, vr(B, 4), 2 * HCOPY))
    p("ds_write_b128 %s, %s offset:%d" % (wa, vr(B + 4, 4), 2 * HCOPY + 16))
    for n in range(8):
        p("v_mov_b32 %s, %s" % (vr(UF + n), vr(HE + n + 1)))
    p("ds_write_b128 %s, %s offset:%d" % (wa, vr(UF, 4), HCOPY))
    p("ds_write_b128 %s, %s offset:%d" % (wa, vr(UF + 4, 4), HCOPY + 16))


def lds_zero():
    z = KF
    t, a = vr(vT), vr(vHB)
    for r in range(4):
        p("v_mov_b32 %s, 0" % vr(z + r))
    skip = p.newlabel("zero")
    skip2 = p.newlabel("zero")
    p("s_cmp_lg_u32 %s, 0" % sr(sWV))
    p("s_cbranch_scc1 %s" % skip)
    p("v_lshrrev_b32 %s, 5, v0" % t)
    p("v_mul_u32_u24 %s, %d, %s" % (a, UCH - 512, t))
    p("v_lshl_add_u32 %s, v0, 4, %s" % (a, a))
    p("v_add_u32 %s, 0x%x, %s" % (a, UB + 4096, a))
    p("ds_write_b128 %s, %s" % (a, vr(z, 4)))
    p.label(skip)
    p("s_cmp_lg_u32 %s, 1" % sr(sWV))
    p("s_cbranch_scc1 %s" % skip2)
    p("v_bfe_u32 %s, v0, 1, 3" % t)
    p("v_mul_u32_u24 %s, %d, %s" % (a, HCOPY, t))
    p("v_and_b32 %s, 1, v0" % t)
    p("v_lshl_add_u32 %s, %s, 4, %s" % (a, t, a))
    p("v_add_u32 %s, 0x%x, %s" % (a, HB, a))
    p("ds_write_b128 %s, %s" % (a, vr(z, 4)))
    p.label(skip2)


def afrag_preload():
    l = vr(vLANE)
    a, t = vr(vHA), vr(vT)
    p("s_lshr_b32 %s, %s, 1" % (sr(sT0), sr(sWV)))
    p("s_mul_i32 %s, %s, %d" % (sr(sT0), sr(sT0), HCH))
    p("s_and_b32 %s, %s, 1" % (sr(sT1), sr(sWV)))
    p("s_lshl_b32 %s, %s, 8" % (sr(sT1), sr(sT1)))
    p("s_add_u32 %s, %s, %s" % (sr(sT0), sr(sT0), sr(sT1)))
    sadd(sT0, sT0, HB + 8)
    p("v_and_b32 %s, 3, %s" % (t, l))
    p("v_mul_u32_u24 %s, %d, %s" % (a, HCOPY, t))
    p("v_and_b32 %s, 12, %s" % (t, l))
    p("v_lshl_add_u32 %s, %s, 1, %s" % (a, t, a))
    p("v_and_b32 %s, 48, %s" % (t, l))
    p("v_add3_u32 %s, %s, %s, %s" % (a, a, t, sr(sT0)))
    for rho in range(4):
        for aa in range(8):
            off = 512 * aa + 64 * rho
            r = aH + 4 * (8 * rho + aa)
            p("ds_read_b64 %s, %s offset:%d" % (ar(r, 2), a, off))
            p("ds_read_b64 %s, %s offset:%d" % (ar(r + 2, 2), a, off + 8))


def handoff_ut():
    F = KF
    E = KF + 4
    FB = KF + 8
    top, fast, got = p.newlabel("h1"), p.newlabel("h1fast"), p.newlabel("h1got")
    slow, slowtop = p.newlabel("h1slow"), p.newlabel("h1slowtop")
    sadd(sT0, sCLS, C_FLAGA)
    p("v_and_b32 %s, 0xff, %s" % (vr(E), vr(vL8)))
    p("s_lshl_b32 %s, %s, 13" % (sr(sT3), sr(sJ)))
    p("s_add_u32 %s, %s, %s" % (sr(sT3), sr(sT3), sr(sCLS)))
    p("s_lshl_b32 %s, %s, 11" % (sr(sT1), sr(sWV)))
    p("s_add_u32 %s, %s, %s" % (sr(sT3), sr(sT3), sr(sT1)))
    p("s_lshr_b32 %s, %s, 1" % (sr(sT2), sr(sWV)))
    p("s_lshl_b32 %s, %s, 9" % (sr(sT2), sr(sT2)))
    p("s_add_u32 %s, %s, %s" % (sr(sT1), sr(sT1), sr(sT2)))
    p("s_add_u32 m0, %s, %d" % (sr(sT1), UB))
    p("s_mov_b32 %s, %d" % (sr(sCNT), 0 if FORCE_SLOW else 48))
    p("s_mov_b32 %s, 1" % sr(sMODE))
    p.label(top)
    p("buffer_load_dwordx2 %s, %s, %s, %s offen sc1" % (vr(F, 2), vr(E), sr(sWS, 4), sr(sT0)))
    p("v_cmp_ne_u64 vcc, %s, %s" % (sr(sP, 2), vr(F, 2)))
    if not FORCE_SLOW:
        p("s_cbranch_vccz %s" % got)
    p("s_sub_u32 %s, %s, 1" % (sr(sCNT), sr(sCNT)))
    p("s_cbranch_scc0 %s" % top)
    p("s_branch %s" % slow)
    p.label(got)

    def blk():
        p.label(slow)
        p("s_lshl_b32 %s, %s, 8" % (sr(sT1), sr(sX)))
        sadd(sT1, sT1, FLAGB)
        p("s_lshl_b32 %s, %s, 3" % (sr(sT2), sr(sJ)))
        p("s_add_u32 %s, %s, %s" % (sr(sT2), sr(sT2), sr(sT1)))
        flag_store(sT2, local=False)
        p("s_mov_b32 %s, %s" % (sr(sCNT), sr(sLIM)))
        p.label(slowtop)
        p("buffer_load_dwordx2 %s, %s, %s, %s offen sc1" % (vr(F, 2), vr(E), sr(sWS, 4), sr(sT0)))
        p("buffer_load_dwordx2 %s, %s, %s, %s offen sc1" % (vr(FB, 2), vr(E), sr(sWS, 4), sr(sT1)))
        p("s_mov_b32 %s, 1" % sr(sMODE))
        if not FORCE_SLOW:
            p("v_cmp_ne_u64 vcc, %s, %s" % (sr(sP, 2), vr(F, 2)))
            p("s_cbranch_vccz %s" % got)
        p("s_mov_b32 %s, 0" % sr(sMODE))
        p("v_cmp_ne_u64 vcc, %s, %s" % (sr(sTAG, 2), vr(FB, 2)))
        p("s_cbranch_vccz %s" % got)
        p("s_sub_u32 %s, %s, 1" % (sr(sCNT), sr(sCNT)))
        p("s_cbranch_scc0 %s" % slowtop)
        p("s_mov_b32 %s, 0" % sr(sLIM))
        p("s_or_b32 %s, %s, 1" % (sr(sERR), sr(sERR)))
        p("s_branch %s" % got)

    tail.append(blk)
    p("buffer_load_dwordx4 %s, %s, %s offen sc1 lds" % (vr(vL16), sr(sWS, 4), sr(sT3)))
    p("buffer_load_dwordx4 %s, %s, %s offen offset:1024 sc1 lds" % (vr(vL16), sr(sWS, 4), sr(sT3)), "udma")


CACC = S0 + 8
CB = S0 + 40
CR = S0 + 40
CY = S0 + 96
vCW = S0 + 72
vCB, vCE, vYw = S0 + 4, S0 + 5, S0 + 6


def conv_addresses():
    l = vr(vLANE)
    t = vr(vT)
    p("s_lshr_b32 %s, %s, 1" % (sr(sT0), sr(sWV)))
    p("s_mul_i32 %s, %s, %d" % (sr(sT0), sr(sT0), UCH))
    p("s_and_b32 %s, %s, 1" % (sr(sT1), sr(sWV)))
    p("s_lshl_b32 %s, %s, 8" % (sr(sT1), sr(sT1)))
    p("s_add_u32 %s, %s, %s" % (sr(sT0), sr(sT0), sr(sT1)))
    sadd(sT0, sT0, UB + 480)
    p("v_and_b32 %s, 15, %s" % (t, l))
    p("v_lshlrev_b32 %s, 5, %s" % (vr(vCB), t))
    p("v_sub_u32 %s, %s, %s" % (vr(vCB), sr(sT0), vr(vCB)))
    p("v_lshrrev_b32 %s, 1, %s" % (vr(vYw), t))
    p("v_lshlrev_b32 %s, 16, %s" % (vr(vYw), vr(vYw)))
    p("v_and_b32 %s, 1, %s" % (t, l))
    p("v_lshl_add_u32 %s, %s, 6, %s" % (vr(vYw), t, vr(vYw)))
    p("v_and_b32 %s, 48, %s" % (t, l))
    p("v_add_u32 %s, %s, %s" % (vr(vCB), vr(vCB), t))
    p("v_add_u32 %s, %s, %s" % (vr(vYw), t, vr(vYw)))
    p("s_lshl_b32 %s, %s, 5" % (sr(sT0), sr(sX)))
    p("s_add_u32 %s, %s, %s" % (sr(sT0), sr(sT0), sr(sJ)))
    p("s_lshl_b32 %s, %s, 8" % (sr(sT0), sr(sT0)))
    p("v_add_u32 %s, %s, %s" % (vr(vYw), sr(sT0), vr(vYw)))
    p("s_or_b32 %s, %s, 0x80000000" % (sr(sTGY), sr(sTAG)))
    for e in range(8):
        p("v_mov_b32 %s, %s" % (vr(CY + 2 * e + 1), sr(sTGY)))
    p("s_lshl_b32 %s, %s, 10" % (sr(sT0), sr(sWV)))
    sadd(sT0, sT0, EX)
    p("v_add_u32 %s, %s, %s" % (vr(vCW), sr(sT0), vr(vL16)))
    p("s_lshl_b32 %s, %s, 12" % (sr(sT0), sr(sWV)))
    sadd(sT1, sT0, EX)
    p("v_add_u32 %s, %s, %s" % (vr(vCE), sr(sT1), vr(vL16)))
    p("s_sub_u32 %s, 0x%x, %s" % (sr(sT1), EX + 7 * 4096, sr(sT0)))
    p("v_add_u32 %s, %s, %s" % (vr(vCW + 1), sr(sT1), vr(vL16)))


def conv():
    def rd(m, rho):
        p("ds_read_b128 %s, %s offset:%d" % (vr(CB + 4 * m, 4), vr(vCB), 512 * (7 - m) + 64 * rho))

    def mm(a, m, rho, first):
        acc = vr(CACC + 4 * (a + m), 4)
        p("v_mfma_f32_16x16x32_bf16 %s, %s, %s, %s" % (acc, ar(aH + 4 * (8 * rho + a), 4), vr(CB + 4 * m, 4), "0" if first else acc))

    def wr(jt):
        p("ds_write_b128 %s, %s offset:%d" % (vr(vCW), vr(CACC + 4 * jt, 4), 4096 * jt))

    for m in range(8):
        rd(m, 0)

    def body():
        pend = []

        def tick():
            for x in pend:
                x[0] -= 1
            while pend and pend[0][0] <= 0:
                rd(*pend.pop(0)[1])

        for rho in range(3):
            if rho == 2 and not opt("abl", 0) & 2:
                p.waitvm("wk")
                p("s_barrier")
            for m in range(8):
                for a in range(8 - m):
                    mm(a, m, rho, rho == 0 and m == 0)
                    tick()
                pend.append([opt("rdel", 2), (m, rho + 1)])
                if opt("rdel", 2) == 0:
                    tick()
        for jt in range(8):
            for a in range(jt + 1):
                mm(a, jt - a, 3, False)
                tick()
                if jt == 3 and a == 0:
                    barrier()
                if jt == 3 and a in (1, 2, 3):
                    wr(a - 1)
                if jt > 3 and a == 3:
                    wr(jt - 1)

    def x0_stats():
        for e in range(8):
            unpack(vX + 2 * e, X0 + e)
        stats_compute(vST0, S0 + 76, False)

    def st0():
        sadd(sT0, sCLS, st_off(0))
        local_stores(["buffer_store_dword %s, %s, %s, %s offen" % (vr(vST0), vr(vSTw), sr(sWS, 4), sr(sT0))], "clr")

    def tq():
        t = S0 + 74
        p("s_mul_i32 %s, %s, %d" % (sr(sT2), sr(sWV), 128 * 3072))
        p("s_lshl_b32 %s, %s, 7" % (sr(sT3), sr(sM)))
        p("s_add_u32 %s, %s, %s" % (sr(sT2), sr(sT2), sr(sT3)))
        p("v_mul_u32_u24 %s, 0x180, %s" % (vr(t), vr(vL8)))
        p("v_add_u32 %s, %s, %s" % (vr(t), sr(sT2), vr(t)))
        touch_quarter(sW, sQW, 0, None, 0, 0, t)

    WK, WV = WKV[:16], WKV[16:]
    at = {}
    AB_ = opt("abl", 0)
    k = 0
    n0 = NS0 + NSA + NSB + NSC
    cold = with_m0(WK, R1, range(n0, 16)) + with_m0(WV, R2, range(4))
    if opt("tq", 1):
        cold.append(p.cap(tq))
    late = lambda bit, k: 1000 + 100 * bit if AB_ >> bit & 1 else k
    place(at, cold, late(0, 0), opt("cstep", 4))
    place(at, p.cap(layer_scalars), 1, 0.9)
    place(at, unstage_w(R1, aWK), late(2, 72), 1.05)
    k = place(at, p.cap(x0_stats), late(3, opt("xs", 84)), 0.9)
    k = place(at, [p.cap(st0)], late(4, k), 1)
    warm = with_m0(WV, R2, range(4, 16))
    place(at, warm[:NWC], late(5, opt("ws", 80)), DSTEP)
    if FINE:
        at.setdefault(143, []).extend(p.cap(stamp, "c_mfma"))
    sched(p.cap(body), at)
    wr(7)
    if FINE: stamp("c_last")
    p("s_lshl_b32 %s, %s, 19" % (sr(sT1), sr(sWV)))
    sadd(sT0, sT1, YB)
    p("s_sub_u32 %s, 0x%x, %s" % (sr(sT1), YB + 7 * 524288, sr(sT1)))
    p.waitvm("clr")
    barrier()
    if FINE: stamp("c_bar2")
    for k2 in range(2):
        for w in range(4):
            p("ds_read_b128 %s, %s offset:%d" % (vr(CR + 16 * k2 + 4 * w, 4), vr(vCE if k2 == 0 else vCW + 1), 1024 * w))
    for k2 in range(2):
        lo, hi = CR + 16 * k2, CR + 16 * k2 + 8
        for c in (lo, hi):
            for e in (0, 2):
                p("v_pk_add_f32 %s, %s, %s" % (vr(c + e, 2), vr(c + e, 2), vr(c + 4 + e, 2)))
        for e in range(4):
            p("v_cvt_pk_bf16_f32 %s, %s, %s" % (vr(CY + 8 * k2 + 2 * e), vr(lo + e), vr(hi + e)))
            if e & 1:
                p("buffer_store_dwordx4 %s, %s, %s, %s offen offset:%d sc1" % (vr(CY + 8 * k2 + 2 * e - 2, 4), vr(vYw), sr(sWS, 4), sr(sT0 + k2), 64 * (e - 1)))
    skip = p.newlabel("hello")
    p("s_cmp_lg_u32 %s, 1" % sr(sWV))
    p("s_cbranch_scc1 %s" % skip)
    p("s_lshl_b32 %s, %s, 3" % (sr(sT0), sr(sJ)))
    p("s_add_u32 %s, %s, %s" % (sr(sT0), sr(sT0), sr(sCLS)))
    sadd(sT0, sT0, C_HELLO)
    flag_store(sT0)
    p.label(skip)
    return warm[NWC:]


vF7, vFF, vKVw, vZq = vYa, vDmaW2, vTrW, vDmaW


def layer_scalars():
    t0, t1 = sr(sT0), sr(sT1)
    add = lambda d, a, b: p("s_add_u32 %s, %s, %s" % (d, a, b))
    shl = lambda d, a, n: p("s_lshl_b32 %s, %s, %d" % (d, a, n))
    shl(t0, sr(sG32L), 4)
    add(t0, t0, sr(sKS))
    shl(t0, t0, 3)
    add(t0, t0, sr(sCLS))
    sadd(sFXw, sT0, C_FLAGX)
    p("s_lshr_b32 %s, %s, 1" % (t1, sr(sWV)))
    shl(t0, sr(sRG), 1)
    add(t0, t0, t1)
    shl(t0, t0, 7)
    add(t0, t0, sr(sCLS))
    sadd(sFXr, sT0, C_FLAGX)
    shl(t0, sr(sRG), 16)
    add(t0, t0, sr(sWV14))
    add(sr(sASRC), t0, sr(sCLS))
    shl(t0, sr(sM), 2)
    add(t0, t0, sr(sWV))
    shl(t1, sr(sX), 2)
    add(t1, t1, sr(sRG))
    shl(sr(sKVw), t0, 7)
    add(sr(sKVw), sr(sKVw), t1)
    shl(sr(sKVw), sr(sKVw), 7)
    sadd(sKVw, sKVw, KVP)
    shl(sr(sZw), t0, 5)
    add(sr(sZw), sr(sZw), t1)
    shl(sr(sZw), sr(sZw), 6)
    sadd(sZw, sZw, ZP)
    shl(t1, sr(sRG), 5)
    add(t0, t0, t1)
    shl(t0, t0, 3)
    add(t0, t0, sr(sCLS))
    sadd(sFPw, sT0, C_FLAGPQ)
    shl(t0, sr(sRG), 8)
    add(t0, t0, sr(sCLS))
    sadd(sFPr, sT0, C_FLAGPQ)
    shl(t0, sr(sJ), 2)
    add(t0, t0, sr(sWV))
    shl(t0, t0, 12)
    sadd(sKVr, sT0, KVP)
    shl(t0, sr(sJ), 7)
    add(t0, t0, sr(sWV))
    shl(t0, t0, 4)
    sadd(sZr, sT0, ZP)
    p("s_lshr_b32 %s, %s, 1" % (t1, sr(sWV)))
    shl(t0, sr(sJ), 1)
    add(t0, t0, t1)
    shl(t0, t0, 6)
    p("s_and_b32 %s, %s, 1" % (t1, sr(sWV)))
    add(t0, t0, t1)
    shl(t0, t0, 3)
    add(t0, t0, sr(sCLS))
    sadd(sSTw, sT0, C_STATE)
    shl(t1, sr(sWV), 12)
    add(t0, t1, sr(sCLS))
    sadd(sSTr, sT0, C_STATE)
    sadd(sSTr + 1, sSTr, 16384)
    shl(t0, sr(sG32), 16)
    add(t0, t0, t1)
    sadd(sPQr, sT0, YB)
    sadd(sPQr + 1, sPQr, 16384)
    sadd(sSTo, sCLS, st_off(1))
    sadd(sST2, sCLS, st_off(2))
    p("s_mov_b32 %s, 0x%x" % (sr(sYB0), YB))
    p("s_mov_b32 %s, 0x%x" % (sr(sYB1), YB + 65536))
    p("s_mov_b32 %s, 0xffff0000" % sr(sLM))
    p("s_mov_b32 %s, 0xffff0000" % sr(sLM + 1))


def next_layer_scalars():
    for r_, d_ in ((sKVw, 0x80000), (sKVr, 0x80000), (sZw, 0x10000), (sZr, 0x10000), (sSTw, 0x8000), (sSTr, 0x8000), (sSTr + 1, 0x8000), (sSTo, st_off(3) - st_off(1)), (sYB0, 32768), (sYB1, 32768), (sPQr, 32768), (sPQr + 1, 32768)):
        sadd(r_, r_, d_)


def colsum(a0, acc, transposed):
    def body():
        for ks in range(16):
            A, B = vr(vONE, 4), ar(a0 + 4 * ks, 4)
            if transposed:
                A, B = B, A
            p("v_mfma_f32_16x16x32_bf16 %s, %s, %s, %s" % (vr(acc, 4), A, B, "0" if ks == 0 else vr(acc, 4)))

    return p.cap(body)


N0 = S0 + 32
YR = S0 + 88


def normalise(vR, vNM):
    for e in range(0, 16, 2):
        p("v_pk_fma_f32 %s, %s, %s, %s op_sel_hi:[1,0,0]" % (vr(N0 + e, 2), vr(vX + e, 2), vr(vR, 2), vr(vNM, 2)))


def y_shadow(wvrest):
    F = S0 + 72

    def hello_issue():
        p("buffer_load_dwordx2 %s, %s, %s, %s offen sc1" % (vr(F, 2), vr(F + 2), sr(sWS, 4), sr(sT3)))

    def hello_check():
        p("v_cmp_ne_u64 vcc, %s, %s" % (sr(sTAG, 2), vr(F, 2)))

    p("v_and_b32 %s, 0xff, %s" % (vr(F + 2), vr(vL8)))
    sadd(sT3, sCLS, C_HELLO)
    p("v_add_u32 %s, 0x%x, %s" % (vr(vAB), AB, vr(vL16)))
    def tob(half):
        t = F + 10
        if half == 0:
            p("v_lshrrev_b32 %s, 4, %s" % (vr(t), vr(vL8)))
            p("v_lshlrev_b32 %s, 10, %s" % (vr(t), vr(t)))
            p("v_and_b32 %s, 8, %s" % (vr(t + 1), vr(vL8)))
            p("v_lshl_add_u32 %s, %s, 4, %s" % (vr(t), vr(t + 1), vr(t)))
            p("s_lshl_b32 %s, %s, 16" % (sr(sT0), sr(sWV)))
            p("s_and_b32 %s, %s, 3" % (sr(sT1), sr(sJ)))
            p("s_lshl_b32 %s, %s, 8" % (sr(sT1), sr(sT1)))
            p("s_add_u32 %s, %s, %s" % (sr(sT0), sr(sT0), sr(sT1)))
            p("v_add_u32 %s, %s, %s" % (vr(t), sr(sT0), vr(t)))
        touch_quarter(sWO, sQO, 262144 * half, None, 0, 0, t)

    for g in wvrest:
        p.put(g)
    if opt("tob", 0):
        tob(0)
        tob(1)
    hello_issue()
    p.waitvm("wv")
    p("s_barrier")
    WQ = stage_w(0, R1, "wq")
    NQ = opt("nq", 10)
    at = {}
    place(at, unstage_w(R2, aWV), 0, 0.5)
    place(at, WQ[:NQ], 0, 3)
    sched(colsum(aWK, S0 + 8, False) + colsum(aWV, S0 + 60, False), at)
    p("v_mov_b32 %s, %s" % (vr(vCSK), vr(S0 + 8)))
    p("v_mov_b32 %s, %s" % (vr(vCSV), vr(S0 + 60)))
    t, t1 = vr(F + 8), vr(F + 9)
    p("s_mul_i32 %s, %s, 5120" % (sr(sT1), sr(sJ)))
    sadd(sT1, sT1, C_STATE)
    p("s_lshl_b32 %s, %s, 7" % (sr(sT2), sr(sJ)))
    sadd(sT2, sT2, C_FLAGX)
    p("v_lshl_add_u32 %s, %s, 4, %s" % (t, vr(vL8), sr(sT1)))
    p("v_mov_b32 %s, %s" % (t1, sr(sT2)))
    p("v_cmp_gt_u32 vcc, 0x140, %s" % vr(vL8))
    p("v_cndmask_b32 %s, %s, %s, vcc" % (t, t1, t))
    poll_late(hello_issue, hello_check, 1)
    stamp("hello")
    SB = S0 + 12
    sadd(sT1, sCLS, st_off(0))
    stats_issue(SB, sT1)

    def touch():
        skip = p.newlabel("touch")
        p("s_cmp_lg_u32 %s, 3" % sr(sWV))
        p("s_cbranch_scc1 %s" % skip)
        p("buffer_load_dword %s, %s, %s, %s offen sc1" % (vr(vDUM), t, sr(sWS, 4), sr(sCLS)))
        p.label(skip)

    if opt("ytouch", 0) == 0:
        touch()

    def issue_y():
        p("s_mov_b32 %s, 0x%x" % (sr(sT0), YB))
        for u in range(8):
            p("buffer_load_dwordx2 %s, %s, %s, %s offen offset:%d sc1" % (vr(YR + 2 * u, 2), vr(vYa), sr(sWS, 4), sr(sT0), 256 * u))

    def check_y():
        T = S0 + 12
        for u in range(4):
            p("v_bitop3_b32 %s, %s, %s, %s bitop3:0x7e" % (vr(T + u), vr(YR + 4 * u + 1), vr(YR + 4 * u + 3), sr(sTGY)))
        p("v_or3_b32 %s, %s, %s, %s" % (vr(T), vr(T), vr(T + 1), vr(T + 2)))
        p("v_or_b32 %s, %s, %s" % (vr(T), vr(T), vr(T + 3)))
        p("v_cmp_ne_u32 vcc, 0, %s" % vr(T))

    issue_y()
    stats_finish(SB, S0 + 28, S0 + 30)
    normalise(S0 + 28, S0 + 30)
    stamp("ypoll")
    poll_late(issue_y, check_y, 2)
    stamp("ygot")
    for u in range(8):
        unpack(vY + 2 * u, YR + 2 * u)
    return WQ[NQ:]


def gate_and_publish(L, after=()):
    XP = S0 + 48
    for e in range(0, 16, 2):
        p("v_pk_fma_f32 %s, %s, %s, %s" % (vr(vX + e, 2), vr(N0 + e, 2), vr(vY + e, 2), vr(vX + e, 2)))
    for e in range(8):
        p("v_cvt_pk_bf16_f32 %s, %s, %s" % (vr(XP + e), vr(vX + 2 * e), vr(vX + 2 * e + 1)))
    local_stores(
        [
            "buffer_store_dwordx4 %s, %s, %s, %s offen" % (vr(XP, 4), vr(vXw), sr(sWS, 4), sr(sCLS)),
            "buffer_store_dwordx4 %s, %s, %s, %s offen offset:256" % (vr(XP + 4, 4), vr(vXw), sr(sWS, 4), sr(sCLS)),
        ],
        "xst",
    )
    for g in after:
        p.put(g)
    stats_compute(S0 + 56, S0 + 58)
    if L == 0:
        p("v_and_b32 %s, 0x7f, %s" % (vr(vF7), vr(vL8)))
    p("s_add_u32 m0, %s, %d" % (sr(sWV14), AB))
    p("s_mov_b32 %s, %s" % (sr(sT1), sr(sASRC)))
    p.waitvm("xst")
    local_stores(
        [
            "s_mov_b64 exec, 1",
            "buffer_store_dwordx2 %s, off, %s, %s offset:%d" % (vr(vTAG, 2), sr(sWS, 4), sr(sFXw), L * 0x400),
            "s_mov_b64 exec, -1",
            "buffer_store_dword %s, %s, %s, %s offen" % (vr(S0 + 56), vr(vSTw), sr(sWS, 4), sr(sSTo)),
        ]
    )


GA = S0 + 8
GK, GV = S0 + 40, S0 + 56
GR, GNM, GC = S0 + 72, S0 + 88, S0 + 104
STAGES = [0, 2, 3, 5, 8, 12, 16]
NUP = opt("nup", 8)


def a_read1(ks, tt, nb=2):
    p("ds_read_b128 %s, %s offset:%d" % (vr(GA + 16 * (ks % nb) + 4 * tt, 4), vr(vAB), tt * 16384 + ks * 1024), "ra%d_%d" % (ks, tt))


def gemm_kv(L):
    F = GR
    fl_issue = lambda: p("buffer_load_dwordx2 %s, %s, %s, %s offen offset:%d sc1" % (vr(F, 2), vr(vF7), sr(sWS, 4), sr(sFXr), L * 0x400))
    fl_check = lambda: p("v_cmp_ne_u64 vcc, %s, %s" % (sr(sTAG, 2), vr(F, 2)))
    if L == 0:
        fl_issue()
        p.put(unstage_w(R1, aWQ))
        poll_late(fl_issue, fl_check, 3)
    else:
        poll(fl_issue, fl_check, 3)
    stamp("xflag%d" % L)

    def dma(ks):
        if ks and ks % 4 == 0:
            p("s_add_u32 m0, m0, 4096")
            sadd(sT1, sT1, 4096)
        p("buffer_load_dwordx4 %s, %s, %s offen offset:%d sc1 lds" % (vr(vL16), sr(sWS, 4), sr(sT1), 1024 * (ks % 4)), "a%d" % ks)

    D = [p.cap(dma, ks) for ks in range(16)]
    if L == 1:
        for ks in range(NUP):
            p.put(D[ks])
    else:
        p.put(D[0] + D[1])
        at = {}
        place(at, D[2:NUP], 0, 3)
        sched(colsum(aWQ, GK, True), at)
        for e in range(4):
            p("v_mov_b32 %s, %s" % (vr(vCSQ + e), vr(GK + e)))
    SB = GC

    def st_issue():
        for u in range(2):
            p("buffer_load_dwordx4 %s, %s, %s, %s offen offset:%d sc1" % (vr(SB + 4 * u, 4), vr(vSTr2), sr(sWS, 4), sr(sSTo), 512 * u))

    def st_fin():
        for a_, b_ in ((0, 2), (1, 3), (4, 6), (5, 7), (0, 4), (1, 5)):
            p("v_add_f32 %s, %s, %s" % (vr(SB + a_), vr(SB + a_), vr(SB + b_)))
        p("v_permlane16_swap_b32 %s, %s" % (vr(SB), vr(SB + 1)))
        p("v_add_f32 %s, %s, %s" % (vr(SB), vr(SB), vr(SB + 1)))
        p("v_mov_b32 %s, %s" % (vr(SB + 1), vr(SB)))
        p("v_permlane32_swap_b32 %s, %s" % (vr(SB), vr(SB + 1)))
        p("v_add_f32 %s, %s, %s" % (vr(SB), vr(SB), vr(SB + 1)))
        p("v_mul_f32 %s, %s, %s" % (vr(SB), sr(sINV512), vr(SB)))
        p("v_mov_b32 %s, %s" % (vr(SB + 1), vr(SB)))
        p("v_permlane16_swap_b32 %s, %s" % (vr(SB), vr(SB + 1)))
        p("v_fma_f32 %s, -%s, %s, %s" % (vr(SB + 1), vr(SB), vr(SB), vr(SB + 1)))
        p("v_max_f32 %s, 0, %s" % (vr(SB + 1), vr(SB + 1)))
        p("v_add_f32 %s, %s, %s" % (vr(SB + 1), sr(sEPS5), vr(SB + 1)))
        p("v_rsq_f32 %s, %s" % (vr(SB + 2), vr(SB + 1)))
        p("v_mul_f32 %s, -%s, %s" % (vr(SB + 3), vr(SB), vr(SB + 2)))
        p("v_cndmask_b32 %s, %s, %s, %s" % (vr(SB + 2), vr(SB + 2), vr(SB + 3), sr(sLM, 2)))
        p("ds_write_b32 %s, %s" % (vr(vTBw), vr(SB + 2)), "tb")

    def tables():
        for tt in range(4):
            p("ds_read_b128 %s, %s offset:%d" % (vr(GNM + 4 * tt, 4), vr(vTB1), 256 + 64 * tt))
        for tt in range(4):
            p("ds_read_b128 %s, %s offset:%d" % (vr(GR + 4 * tt, 4), vr(vTB1), 64 * tt))

    def consts():
        for e in range(16):
            p("v_fma_f32 %s, %s, %s, %s" % (vr(GC + e), vr(GNM + e), vr(vCSK), sr(sEPS6)))
            p("v_mul_f32 %s, %s, %s" % (vr(GNM + e), vr(GNM + e), vr(vCSV)))

    def lanes():
        p("v_and_b32 %s, 0x78, %s" % (vr(vKVw), vr(vL8)))
        p("v_and_b32 %s, 0x300, %s" % (vr(vZq), vr(vL16)))
        p("v_lshl_add_u32 %s, %s, 4, %s" % (vr(vKVw), vr(vZq), vr(vKVw)))
        p("v_and_b32 %s, 0x3c0, %s" % (vr(vZq), vr(vZr)))
        p("v_and_b32 %s, 0xff, %s" % (vr(vFF), vr(vL8)))

    def body():
        p.waitvm("a1")
        barrier()
        if FINE: stamp("g_a%d" % L)
        for tt in range(4):
            a_read1(0, tt)
        for ks in range(16):
            if ks + 1 in STAGES[:-1]:
                p.waitvm("a%d" % (STAGES[STAGES.index(ks + 1) + 1] - 1))
                p("s_barrier")
            if ks == 12:
                p.waitlg("tb")
                p("s_barrier")
            for tt in range(4):
                if tt in (0, 2):
                    p.waitlg("ra%d_%d" % (ks, tt + 1))
                A = vr(GA + 16 * (ks & 1) + 4 * tt, 4)
                for acc, w in ((GK, aWK), (GV, aWV)):
                    d = vr(acc + 4 * tt, 4)
                    p("v_mfma_f32_16x16x32_bf16 %s, %s, %s, %s" % (d, A, ar(w + 4 * ks, 4), "0" if ks == 0 else d))
                    if acc == GK and ks < 15:
                        a_read1(ks + 1, tt)

    at = {}
    GS = opt("gs", 5)
    k = place(at, D[NUP:12], 1, GS)
    k = place(at, [[x] for x in p.cap(st_issue)], k, GS)
    k = place(at, D[12:], k, GS)
    chk = p.cap(poll_late, st_issue, lambda: check_sentinel(range(SB, SB + 8), SB + 8), 4)
    place(at, chk[:4], 63, 1)
    place(at, [chk[4:]], 67, 1)
    place(at, p.cap(st_fin), 69, 1.15)
    place(at, p.cap(tables), 96, 1)
    place(at, p.cap(consts), 103, 0.72)
    wq = []
    if L == 0:
        place(at, p.cap(lanes), 3, 2)
        wq = stage_wo(0, R1, "woa")
        n = (128 - int(k)) // opt("wstep", 6)
        place(at, wq[:n], k + 2, opt("wstep", 6))
        wq = wq[n:]
    sched(p.cap(body), at)
    stamp("gemmkv%d" % L)
    PK, PV, T = GA, GA + 8, GA + 16

    def epi(tt):
        Rr, CV, CK = GR + 4 * tt, GNM + 4 * tt, GC + 4 * tt
        k0, v0 = GK + 4 * tt, GV + 4 * tt
        for e in (0, 2):
            p("v_pk_fma_f32 %s, %s, %s, %s" % (vr(k0 + e, 2), vr(k0 + e, 2), vr(Rr + e, 2), vr(CK + e, 2)))
        for e in (0, 2):
            p("v_pk_mul_f32 %s, %s, %s" % (vr(T + e, 2), vr(k0 + e, 2), sr(sL2E2, 2)))
        for e in (0, 2):
            p("v_pk_fma_f32 %s, %s, %s, %s" % (vr(v0 + e, 2), vr(v0 + e, 2), vr(Rr + e, 2), vr(CV + e, 2)))
        for e in range(4):
            p("v_exp_f32_e64 %s, %s clamp" % (vr(T + e), vr(T + e)))
        for e in range(4):
            p("v_max_f32 %s, %s, %s" % (vr(k0 + e), sr(sEPS6), vr(k0 + e)))
        for e in (0, 2):
            p("v_pk_add_f32 %s, %s, %s" % (vr(k0 + e, 2), vr(k0 + e, 2), vr(T + e, 2)))
        for e in (0, 2):
            p("v_cvt_pk_bf16_f32 %s, %s, %s" % (vr(PV + 2 * tt + e // 2), vr(v0 + e), vr(v0 + e + 1)))
        for e in (0, 2):
            p("v_cvt_pk_bf16_f32 %s, %s, %s" % (vr(PK + 2 * tt + e // 2), vr(k0 + e), vr(k0 + e + 1)))

    KV, Z = GR, GR + 4
    for tt in range(4):
        epi(tt)
    p("v_mfma_f32_16x16x32_bf16 %s, %s, %s, 0" % (vr(KV, 4), vr(PK, 4), vr(PV, 4)))
    p("v_mfma_f32_16x16x32_bf16 %s, %s, %s, %s" % (vr(KV, 4), vr(PK + 4, 4), vr(PV + 4, 4), vr(KV, 4)))
    p("v_mfma_f32_16x16x32_bf16 %s, %s, %s, 0" % (vr(Z, 4), vr(PK, 4), vr(vONE, 4)))
    p("v_mfma_f32_16x16x32_bf16 %s, %s, %s, %s" % (vr(Z, 4), vr(PK + 4, 4), vr(vONE, 4), vr(Z, 4)))
    q_prefetch()
    p("v_cvt_pk_bf16_f32 %s, %s, %s" % (vr(KV), vr(KV), vr(KV + 1)))
    p("v_cvt_pk_bf16_f32 %s, %s, %s" % (vr(KV + 1), vr(KV + 2), vr(KV + 3)))
    p("v_min_u32 %s, -2, %s" % (vr(KV), vr(KV)))
    p("v_min_u32 %s, -2, %s" % (vr(KV + 1), vr(KV + 1)))
    p("buffer_store_dwordx2 %s, %s, %s, %s offen sc1" % (vr(KV, 2), vr(vKVw), sr(sWS, 4), sr(sKVw)))
    for e in range(4):
        p("v_min_u32 %s, -2, %s" % (vr(Z + e), vr(Z + e)))
    p("s_mov_b32 exec_lo, 0x00010001")
    p("s_mov_b32 exec_hi, 0x00010001")
    p("buffer_store_dwordx4 %s, %s, %s, %s offen sc1" % (vr(Z, 4), vr(vZr), sr(sWS, 4), sr(sZw)))
    p("s_mov_b64 exec, -1")
    stamp("kvpub%d" % L)
    return wq


GQ = S0 + 56
GT = S0 + 96
GQC = S0 + 104
RP = S0 + 72
RZ = S0 + 88
RD = S0 + 96
RT = S0 + 100
RF_ = S0 + 102


def q_prefetch():
    for tt in range(4):
        p("ds_read_b32 %s, %s offset:%d" % (vr(GT + 2 * tt), vr(vTB2), 64 * tt))
        p("ds_read_b32 %s, %s offset:%d" % (vr(GT + 2 * tt + 1), vr(vTB2), 256 + 64 * tt))


def red_issue():
    for u in range(8):
        p("buffer_load_dwordx2 %s, %s, %s, %s offen offset:%d sc1" % (vr(RP + 2 * u, 2), vr(vL8), sr(sWS, 4), sr(sKVr), 512 * u))
    for u in range(2):
        p("buffer_load_dwordx4 %s, %s, %s, %s offen offset:%d sc1" % (vr(RZ + 4 * u, 4), vr(vZq), sr(sWS, 4), sr(sZr), 1024 * u))


def gemm_q(L, wrest):
    at = {}
    for ks in range(2):
        for tt in range(4):
            a_read1(ks, tt, 3)
    place(at, wrest, 0, 5)

    def body():
        for ks in range(16):
            for tt in range(4):
                if tt in (0, 2):
                    p.waitlg("ra%d_%d" % (ks, tt + 1))
                B = vr(GA + 16 * (ks % 3) + 4 * tt, 4)
                d = vr(GQ + 4 * tt, 4)
                p("v_mfma_f32_16x16x32_bf16 %s, %s, %s, %s" % (d, ar(aWQ + 4 * ks, 4), B, "0" if ks == 0 else d))
                if ks < 14:
                    a_read1(ks + 2, tt, 3)

    def consts():
        for tt in range(4):
            for e in range(4):
                p("v_fma_f32 %s, %s, %s, %s" % (vr(GQC + 4 * tt + e), vr(GT + 2 * tt + 1), vr(vCSQ + e), sr(sEPS6)))

    place(at, p.cap(consts), 2, 2)
    RF = opt("rf%d" % L, 0)
    if RF == 0:
        place(at, p.cap(red_issue), opt("rg", 44), 2)
    sched(p.cap(body), at)
    if FINE: stamp("q_mm%d" % L)
    T = GA
    PQ = GA + 8
    lines = []
    red = p.cap(red_issue) if RF == 1 else []
    for tt in range(4):
        Rr = GT + 2 * tt
        q0 = GQ + 4 * tt
        for e in (0, 2):
            p("v_pk_fma_f32 %s, %s, %s, %s op_sel_hi:[1,0,1]" % (vr(q0 + e, 2), vr(q0 + e, 2), vr(Rr, 2), vr(GQC + 4 * tt + e, 2)))
        for e in (0, 2):
            p("v_pk_mul_f32 %s, %s, %s" % (vr(T + e, 2), vr(q0 + e, 2), sr(sL2E2, 2)))
        for e in range(4):
            p("v_exp_f32_e64 %s, %s clamp" % (vr(T + e), vr(T + e)))
        for e in range(4):
            p("v_max_f32 %s, %s, %s" % (vr(q0 + e), sr(sEPS6), vr(q0 + e)))
        for e in (0, 2):
            p("v_pk_add_f32 %s, %s, %s" % (vr(q0 + e, 2), vr(q0 + e, 2), vr(T + e, 2)))
        for e in (0, 2):
            p("v_cvt_pk_bf16_f32 %s, %s, %s" % (vr(PQ + 2 * tt + e // 2), vr(q0 + e), vr(q0 + e + 1)))
        lines.append(
            "buffer_store_dwordx2 %s, %s, %s, %s offen offset:%d" % (vr(PQ + 2 * tt, 2), vr(vPQw), sr(sWS, 4), sr(sYB0 if tt < 2 else sYB1), 256 * (tt & 1))
        )
        if tt & 1:
            local_stores(lines, "pqst")
            lines = []
    p.put(red)


OPQ = S0 + 8
OST = S0 + 40
OD = S0 + 72
OF = S0 + 104
vOW, vOR, OT = S0 + 116, S0 + 117, S0 + 118


def head_off(u):
    return (u & 3) * 1024 + (u >> 2) * 16384


def reduce_state(L):
    poll_late(red_issue, lambda: check_sentinel(range(RP, RP + 24), RT), 5)
    stamp("kvgot%d" % L)
    for e in (0, 2):
        p("v_pk_add_f32 %s, %s, %s" % (vr(RZ + e, 2), vr(RZ + e, 2), vr(RZ + 4 + e, 2)))
    for u, sh in enumerate((8, 4, 2, 1)):
        p("v_mfma_f32_16x16x32_bf16 %s, %s, %s, %s" % (vr(RD, 4), vr(vSEL, 4), vr(RP + 4 * u, 4), "0" if u == 0 else vr(RD, 4)))
        for e in range(4):
            p("v_add_f32_dpp %s, %s, %s row_ror:%d row_mask:0xf bank_mask:0xf" % (vr(RZ + e), vr(RZ + e), vr(RZ + e), sh))
    p("v_cvt_pk_bf16_f32 %s, %s, %s" % (vr(RZ), vr(RZ), vr(RZ + 1)))
    p("v_cvt_pk_bf16_f32 %s, %s, %s" % (vr(RZ + 1), vr(RZ + 2), vr(RZ + 3)))
    p("v_cvt_pk_bf16_f32 %s, %s, %s" % (vr(RD), vr(RD), vr(RD + 1)))
    p("v_cvt_pk_bf16_f32 %s, %s, %s" % (vr(RD + 1), vr(RD + 2), vr(RD + 3)))
    for e in range(2):
        p("v_cndmask_b32 %s, %s, %s, %s" % (vr(RD + e), vr(RD + e), vr(RZ + e), sr(sLM, 2)))
    for e in range(2):
        p("v_min_u32 %s, -2, %s" % (vr(RD + e), vr(RD + e)))
    local_stores(
        [
            "s_mov_b32 exec_hi, 0",
            "buffer_store_dwordx2 %s, %s, %s, %s offen" % (vr(RD, 2), vr(vL16), sr(sWS, 4), sr(sSTw)),
            "s_mov_b64 exec, -1",
        ]
    )
    stamp("stpub%d" % L)


def attn_out(L):
    def issue_pq(h):
        for u in range(4 * h, 4 * h + 4):
            p("buffer_load_dwordx4 %s, %s, %s, %s offen offset:%d sc1" % (vr(OPQ + 4 * u, 4), vr(vL16), sr(sWS, 4), sr(sPQr + h), 1024 * (u & 3)))

    def issue(h):
        for u in range(4 * h, 4 * h + 4):
            p("buffer_load_dwordx4 %s, %s, %s, %s offen offset:%d sc1" % (vr(OST + 4 * u, 4), vr(vL16), sr(sWS, 4), sr(sSTr + h), 1024 * (u & 3)))

    def check(h):
        o = [OPQ + 16 * h + 2 * n + 1 for n in range(8)]
        p("v_or3_b32 %s, %s, %s, %s" % (vr(OT + 1), vr(o[0]), vr(o[1]), vr(o[2])))
        p("v_or3_b32 %s, %s, %s, %s" % (vr(OT + 1), vr(OT + 1), vr(o[3]), vr(o[4])))
        p("v_or3_b32 %s, %s, %s, %s" % (vr(OT + 1), vr(OT + 1), vr(o[5]), vr(o[6])))
        p("v_or_b32 %s, %s, %s" % (vr(OT + 1), vr(OT + 1), vr(o[7])))
        p("v_ashrrev_i32 %s, 31, %s" % (vr(OT + 1), vr(OT + 1)))
        check_sentinel([OT + 1] + [OST + 16 * h + 2 * n for n in range(8)], OT)

    both = lambda h: (issue_pq(h), issue(h))
    PM = opt("pqmode", 1)
    issue_pq(0)
    if PM == 0:
        issue_pq(1)
    issue(0)
    if L == 0:
        p.waitvm("woa")
    p("s_barrier")
    p("s_lshl_b32 %s, %s, 12" % (sr(sT0), sr(sWV)))
    p("v_add_u32 %s, 0x%x, %s" % (vr(vOR), OB, vr(vL16)))
    p("v_add_u32 %s, %s, %s" % (vr(vOW), sr(sT0), vr(vOR)))
    wob = []
    if L == 0:
        p.put(unstage_wo(R1, "a", aWOA))
        wob = stage_wo(1, R2, "wob")
    late = (p.cap(issue_pq, 1) if PM else []) + p.cap(issue, 1)
    if PM == 2:
        p.put(late)
        late = []
    poll_late(lambda: both(0), lambda: check(0), 8)
    stamp("stgot%d" % L)

    def mm(u):
        p("v_mfma_f32_32x32x16_bf16 %s, %s, %s, 0" % (vr(OD + 16 * (u & 1), 16), vr(OST + 4 * u, 4), vr(OPQ + 4 * u, 4)))

    def fin(u):
        d = OD + 16 * (u & 1)
        of = OF + 4 * (u & 1)
        p("v_add_f32 %s, %s, %s" % (vr(d + 8), sr(sEPS6), vr(d + 8)))
        p("v_rcp_f32 %s, %s" % (vr(d + 8), vr(d + 8)))
        for e in range(8):
            p("v_mul_f32 %s, %s, %s" % (vr(d + e), vr(d + e), vr(d + 8)))
        for e in range(4):
            p("v_cvt_pk_bf16_f32 %s, %s, %s" % (vr(of + e), vr(d + 2 * e), vr(d + 2 * e + 1)))
        p("ds_write_b128 %s, %s offset:%d" % (vr(vOW), vr(of, 4), head_off(u)), "ow")

    def wreg(h):
        return ar(aWOA + 4 * h, 4) if h < 16 else vr(vWOB + 4 * (h - 16), 4)

    def breg(h):
        return (OST + 4 * (h % 4)) if (h // 4) % 2 == 0 else (OPQ + 4 * (h % 4))

    def rdb(h):
        p("ds_read_b128 %s, %s offset:%d" % (vr(breg(h), 4), vr(vOR), 1024 * h))

    def wm(h):
        p("v_mfma_f32_32x32x16_bf16 %s, %s, %s, %s" % (vr(vX, 16), wreg(h), vr(breg(h), 4), vr(vX, 16)))

    mm(0)
    mm(1)
    p.put(late)
    NB1 = opt("nb1", 4)
    for u in range(4):
        fin(u)
        if u < 2:
            mm(u + 2)
        if u < NB1 and wob:
            p.put(wob.pop(0))
    if FINE: stamp("o_a%d" % L)
    barrier()
    if FINE: stamp("o_b%d" % L)
    for h in range(8):
        rdb(h)
    poll_late(lambda: both(1), lambda: check(1), 10)
    mm(4)
    mm(5)

    HB2 = 13

    def first():
        for h in range(HB2 + 1):
            wm(h)
            if 1 <= h <= 8:
                rdb(h + 7)
            if h == 2:
                mm(6)
            if h == 5:
                mm(7)

    at = {}
    place(at, p.cap(fin, 4), 0, 0.2)
    place(at, p.cap(fin, 5), 4, 0.2)
    place(at, p.cap(fin, 6), 8, 0.26)
    place(at, p.cap(fin, 7), 12, 0.26)
    place(at, wob, 0, 0.9)
    sched(p.cap(first), at)
    if FINE: stamp("o_c%d" % L)
    if L == 0:
        p.waitvm("wob")
    p.waitlg("ow")
    p("s_barrier")
    if FINE: stamp("o_d%d" % L)
    un = unstage_wo(R2, "v", vWOB) if L == 0 else []
    p.put(un[:5])
    for h in range(16, HB2 + 8):
        rdb(h)

    def second():
        for h in range(HB2 + 1, 32):
            wm(h)
            if h + 7 < 32:
                rdb(h + 7)

    at = {}
    if L == 0:
        place(at, un[5:], 0, 0.5)
        place(at, p.cap(next_layer_scalars), 2, 1)
    sched(p.cap(second), at)
    stamp("wo%d" % L)


def stats_hop():
    stats_compute(S0 + 8, S0 + 10)
    local_stores(["buffer_store_dword %s, %s, %s, %s offen" % (vr(S0 + 8), vr(vSTw), sr(sWS, 4), sr(sST2))])
    B = S0 + 12
    poll(lambda: stats_issue(B, sST2), lambda: check_sentinel(range(B, B + 16), S0 + 28), 9)
    stats_finish(B, S0 + 28, S0 + 30)
    normalise(S0 + 28, S0 + 30)
    stamp("stats2")


def main():
    prologue()
    p0_issue()
    lds_zero()
    ut_address()
    clear_setup()
    quarter_tables()
    addresses()
    global WKV
    WKV = stage_w(1, R1, "wk") + stage_w(2, R2, "wv")
    wk = lambda a, n: [x for g in with_m0(WKV[:16], R1, range(a, a + n)) for x in g]
    p.put(wk(0, NS0))
    x0_address()
    stamp("issued")
    if PROFILE or SPIN == "kvgot":
        p.waitvm("kv")
        stamp("kvgot")
    p0_compute()
    p.put(wk(NS0, NSA))
    stamp("p0")
    p("s_add_u32 %s, %s, 16" % (sr(sTAG), sr(sTAG)))
    p("s_addc_u32 %s, %s, 0" % (sr(sTAG + 1), sr(sTAG + 1)))
    p("v_mov_b32 %s, %s" % (vr(vTAG), sr(sTAG)))
    p("v_mov_b32 %s, %s" % (vr(vTAG + 1), sr(sTAG + 1)))
    p("s_add_u32 %s, %s, %s" % (sr(sP), sr(sTAG), sr(sXCC)))
    p("s_addc_u32 %s, %s, 0" % (sr(sP + 1), sr(sTAG + 1)))
    h_copies()
    if FINE: stamp("hcop")
    p("v_mov_b32 %s, %s" % (vr(VF), sr(sP)))
    p("v_mov_b32 %s, %s" % (vr(VF + 1), sr(sP + 1)))
    p("s_lshl_b32 %s, %s, 3" % (sr(sT0), sr(sJ)))
    p("s_add_u32 %s, %s, %s" % (sr(sT0), sr(sT0), sr(sCLS)))
    sadd(sT0, sT0, C_FLAGA)
    p.waitvm("ut")
    barrier()
    skip = p.newlabel("fa")
    p("s_cmp_lg_u32 %s, 0" % sr(sWV))
    p("s_cbranch_scc1 %s" % skip)
    p("s_mov_b64 exec, 1")
    p("buffer_store_dwordx2 %s, off, %s, %s" % (vr(VF, 2), sr(sWS, 4), sr(sT0)))
    p("s_mov_b64 exec, -1")
    p.label(skip)
    stamp("flagA")
    p.put(wk(NS0 + NSA, NSB))
    afrag_preload()
    handoff_ut()
    stamp("utflag")
    clears()
    p.put(wk(NS0 + NSA + NSB, NSC))
    x0_issue()
    conv_addresses()
    p.waitvm("udma")
    barrier()
    stamp("convstart")
    wvrest = conv()
    stamp("convdone")
    wqrest = y_shadow(wvrest)
    for L in range(2):
        gate_and_publish(L, wqrest if L == 0 else ())
        stamp("xpub%d" % L)
        if L == 0:
            p.waitvm("wq")
        barrier()
        gemm_q(L, gemm_kv(L))
        stamp("qdone%d" % L)
        reduce_state(L)
        attn_out(L)
        if L == 0:
            stats_hop()
    XP = S0 + 8
    for e in range(8):
        p("v_cvt_pk_bf16_f32 %s, %s, %s" % (vr(XP + e), vr(vX + 2 * e), vr(vX + 2 * e + 1)))
        if e == 3:
            p("buffer_store_dwordx4 %s, %s, %s, 0 offen" % (vr(XP, 4), vr(vXrow), sr(sOUT, 4)))
    p("buffer_store_dwordx4 %s, %s, %s, 0 offen offset:16" % (vr(XP + 4, 4), vr(vXrow), sr(sOUT, 4)))
    skip = p.newlabel("epoch")
    p("s_or_b32 %s, s2, %s" % (sr(sT0), sr(sWV)))
    p("s_cmp_lg_u32 %s, 0" % sr(sT0))
    p("s_cbranch_scc1 %s" % skip)
    p("s_mov_b32 %s, %d" % (sr(sT0), EPOCH))
    flag_store(sT0, local=False)
    p.label(skip)
    if PROFILE:
        p.waitvm()
        stamp("end")
        p("v_writelane_b32 %s, %s, 63" % (vr(vPROF), sr(sERR)))
        p("v_writelane_b32 %s, %s, 62" % (vr(vPROF), sr(sMODE)))
        p("v_writelane_b32 %s, %s, 61" % (vr(vPROF), sr(sXCC)))
        p("s_lshl_b32 %s, s2, 10" % sr(sT0))
        sadd(sT0, sT0, PROF)
        p("s_lshl_b32 %s, %s, 8" % (sr(sT1), sr(sWV)))
        p("s_add_u32 %s, %s, %s" % (sr(sT0), sr(sT0), sr(sT1)))
        p("v_lshrrev_b32 %s, 2, %s" % (vr(S0), vr(vL16)))
        p("buffer_store_dword %s, %s, %s, %s offen" % (vr(vPROF), vr(S0), sr(sWS, 4), sr(sT0)))
        sadd(sT0, sT0, 0x40000)
        p("buffer_store_dword %s, %s, %s, %s offen" % (vr(vPROF + 1), vr(S0), sr(sWS, 4), sr(sT0)))
    if SPIN:
        if SPIN == "end":
            p.waitvm()
            stamp("end")
        p.label("L_spin")
        p("s_memrealtime s[76:77]")
        p("s_waitcnt lgkmcnt(0)")
        p("s_sub_u32 s76, s76, s74")
        p("s_cmp_lt_u32 s76, 4000")
        p("s_cbranch_scc1 L_spin")
    p("s_endpgm")
    i = 0
    while i < len(tail):
        tail[i]()
        i += 1
    p.label("L_exit")
    p("s_endpgm")


main()

HEAD = open("cdna_kernels/%s.s.ref" % NAME).read().split("; Override launch geometry")[0]
body = p.text()
src = (
    HEAD
    + "; One persistent launch, one workgroup per CU; generated by a script (phases hand data over through d_ws).\n"
    + "; @launch grid=(256,1,1) block=(256,1,1) lds=%d\n" % LDS_BYTES
    + """.amdgcn_target "amdgcn-amd-amdhsa--gfx950"
.text
.globl {n}_kernel
.p2align 8
.type {n}_kernel,@function
{n}_kernel:
""".format(n=NAME)
    + body
    + """.section .rodata,"a"
.p2align 6
.amdhsa_kernel {n}_kernel
  .amdhsa_next_free_vgpr 512
  .amdhsa_next_free_sgpr 102
  .amdhsa_accum_offset 256
  .amdhsa_group_segment_fixed_size 0
  .amdhsa_kernarg_size 96
  .amdhsa_user_sgpr_count 2
  .amdhsa_user_sgpr_kernarg_segment_ptr 1
  .amdhsa_system_sgpr_workgroup_id_x 1
  .amdhsa_float_denorm_mode_32 3
.end_amdhsa_kernel
""".format(n=NAME)
)
LIST = [a.split("=")[1] for a in sys.argv if a.startswith("--list=")]
if LIST:
    main_l = "; @launch kernel=%s_kernel grid=(256,1,1) block=(256,1,1) lds=%d\n" % (NAME, LDS_BYTES)
    triv = "; @launch kernel=triv_kernel grid=(256,1,1) block=(64,1,1) lds=0\n"
    lines = "".join(main_l if c == "m" else triv for c in LIST[0])
    src = src.replace("; @launch grid=(256,1,1) block=(256,1,1) lds=%d\n" % LDS_BYTES, lines)
    src = src.replace(""".section .rodata,"a"
""", """.globl triv_kernel
.p2align 8
.type triv_kernel,@function
triv_kernel:
    s_endpgm
.section .rodata,"a"
.p2align 6
.amdhsa_kernel triv_kernel
  .amdhsa_next_free_vgpr 8
  .amdhsa_next_free_sgpr 16
  .amdhsa_accum_offset 8
  .amdhsa_group_segment_fixed_size 0
  .amdhsa_kernarg_size 96
  .amdhsa_user_sgpr_count 2
  .amdhsa_user_sgpr_kernarg_segment_ptr 1
  .amdhsa_system_sgpr_workgroup_id_x 1
.end_amdhsa_kernel
""")
open(OUT, "w").write(src)
if PROFILE:
    open(OUT + ".stamps", "w").write("\n".join(stamps))
    print("poll sites:", sites)
print("wrote", OUT, "instructions:", sum(1 for l in body.split("\n") if l.startswith("    ") and not l.strip().startswith(";")))
```
